```python
import torch

def _softmax(x, axis=-1):
    return torch.softmax(x, dim=axis)

def _gelu(x):
    return torch.nn.functional.gelu(x, approximate='tanh')

def _silu(x):
    return torch.nn.functional.silu(x)

def _sigmoid(x):
    return torch.sigmoid(x)

def _layernorm(x, axis=-1, eps=1e-05):
    m = x.mean(dim=axis, keepdim=True)
    v = x.var(dim=axis, keepdim=True, unbiased=False)
    return (x - m) / torch.sqrt(v + eps)

def _scatter_add(tgt, idx, src, axis=0):
    return tgt.clone().index_add_(axis, idx, src)

def _segment_sum(src, seg, n):
    out = torch.zeros((n,) + src.shape[1:], dtype=src.dtype)
    return out.index_add_(0, seg, src)

def _pad(x, pw):
    flat = tuple((v for pair in reversed(pw) for v in pair))
    return torch.nn.functional.pad(x, flat)
kernel_name = 'adaLN_cond__sliding_block__glu_gated_geglu__prompt'

def setup_inputs():

    _w = lambda a: (lambda t: t.to(torch.bfloat16) if t.is_floating_point() else t)(torch.as_tensor(a))

    def _A_setup():
        B, S, D = (1, 2048, 640)
        return {'x': _w((lambda *s: torch.randn(*s, dtype=torch.bfloat16) * 0.05)(B, S, D)), 'wqkv': _w((lambda *s: torch.randn(*s, dtype=torch.bfloat16) * 0.05)(D, 3 * D)), 'wo': _w((lambda *s: torch.randn(*s, dtype=torch.bfloat16) * 0.05)(D, D))}
    _A_in = _A_setup()

    def _B_setup():
        B, S, Dm, Df = (1, 2048, 640, 1536)
        return {'x': _w((lambda *s: torch.randn(*s, dtype=torch.bfloat16) * 0.05)(B, S, Dm)), 'w_gate': _w((lambda *s: torch.randn(*s, dtype=torch.bfloat16) * 0.8)(Dm, Df) * Dm ** (-0.5)), 'w_up': _w((lambda *s: torch.randn(*s, dtype=torch.bfloat16) * 0.8)(Dm, Df) * Dm ** (-0.5)), 'w_down': _w((lambda *s: torch.randn(*s, dtype=torch.bfloat16) * 0.8)(Df, Dm) * Df ** (-0.5))}
    _B_in = _B_setup()
    return {'A_x': _A_in['x'], 'A_wqkv': _A_in['wqkv'], 'A_wo': _A_in['wo'], 'B_x': _B_in['x'], 'B_w_gate': _B_in['w_gate'], 'B_w_up': _B_in['w_up'], 'B_w_down': _B_in['w_down'], 'c': _w((lambda *s: torch.randn(*s, dtype=torch.bfloat16) * 0.2)(1, 640) * 8.0), 'w_mod': _w((lambda *s: torch.randn(*s, dtype=torch.bfloat16) * 0.2)(640, 6 * 640) * 640 ** (-0.5) * 8.0)}

def reference(A_x, A_wqkv, A_wo, B_x, B_w_gate, B_w_up, B_w_down, c, w_mod):

    def _A_ref(x, wqkv, wo):
        B, S, D = x.shape
        H = 32
        Dh = D // H
        W = 256
        qkv = (lambda x, *d: x.permute(*d))((x @ wqkv).reshape(B, S, 3, H, Dh), 2, 0, 3, 1, 4)
        q, k, v = (qkv[0], qkv[1], qkv[2])
        scores = torch.einsum('bhqd,bhkd->bhqk', q, k) * Dh ** (-0.5)
        idx = torch.arange(S)
        mask = (idx[:, None] - idx[None, :] >= 0) & (idx[:, None] - idx[None, :] < W)
        scores = torch.where(mask[None, None], scores, -1000000000.0)
        p = _softmax(scores, axis=-1)
        o = torch.einsum('bhqk,bhkd->bhqd', p, v)
        return (lambda x, *d: x.permute(*d))(o, 0, 2, 1, 3).reshape(B, S, D) @ wo

    def _B_ref(x, w_gate, w_up, w_down):
        g = torch.einsum('bsd,df->bsf', x, w_gate)
        u = torch.einsum('bsd,df->bsf', x, w_up)
        h = _gelu(g) * u
        return torch.einsum('bsf,fd->bsd', h, w_down)
    x = A_x
    mod = (_silu(c) @ w_mod).reshape(c.shape[0], 6, 1, -1)
    sa, ca, ga, sb, cb, gb = (mod[:, 0].clone(), mod[:, 1].clone(), mod[:, 2].clone(), mod[:, 3].clone(), mod[:, 4].clone(), mod[:, 5].clone())
    h = _layernorm(x, axis=-1) * (1 + ca) + sa
    x = x + ga * _A_ref(h, A_wqkv, A_wo)
    h = _layernorm(x, axis=-1) * (1 + cb) + sb
    x = x + gb * _B_ref(h, B_w_gate, B_w_up, B_w_down)
    return x
```

```python
import re

REG_RE = re.compile(r'^(-|\|)?([vas])(?:(\d+)|\[(\d+):(\d+)\])\|?$')
TRANS = ('v_exp_f32', 'v_log_f32', 'v_rcp_f32', 'v_rsq_f32', 'v_sqrt_f32', 'v_sin_f32', 'v_cos_f32')


def regs_of(tok):
    tok = tok.strip()
    m = re.match(r'^(?:abs|neg)\((.*)\)$', tok)
    if m:
        tok = m.group(1)
    if tok == 'vcc':
        return {('s', 106), ('s', 107)}
    if tok == 'vcc_lo':
        return {('s', 106)}
    if tok == 'vcc_hi':
        return {('s', 107)}
    if tok == 'exec':
        return {('s', 126), ('s', 127)}
    if tok == 'exec_lo':
        return {('s', 126)}
    if tok == 'exec_hi':
        return {('s', 127)}
    if tok == 'm0':
        return {('s', 124)}
    m = REG_RE.match(tok)
    if not m:
        return set()
    f = m.group(2)
    if m.group(3) is not None:
        return {(f, int(m.group(3)))}
    return {(f, i) for i in range(int(m.group(4)), int(m.group(5)) + 1)}


def split_ops(rest):
    ops, depth, cur = [], 0, ''
    for ch in rest:
        if ch in '[(':
            depth += 1
        elif ch in '])':
            depth -= 1
        if ch == ',' and depth == 0:
            ops.append(cur.strip())
            cur = ''
        else:
            cur += ch
    last = cur.strip()
    mods = ''
    if last:
        parts = last.split(None, 1)
        ops.append(parts[0])
        if len(parts) > 1:
            mods = parts[1]
    return ops, mods


class Inst:
    __slots__ = ('text', 'mn', 'kind', 'rd', 'wr', 'states', 'passes', 'A', 'B', 'C', 'D', 'dpp', 'wide_store', 'lds_dma', 'sdata')

    def __init__(self, text):
        self.text = text
        parts = text.split(None, 1)
        mn = parts[0]
        self.mn = mn
        ops, mods = split_ops(parts[1]) if len(parts) > 1 else ([], '')
        R = [regs_of(o) for o in ops]
        self.rd, self.wr = set(), set()
        self.states = 1
        self.passes = 0
        self.A = self.B = self.C = self.D = set()
        self.dpp = False
        self.wide_store = False
        self.lds_dma = False
        self.sdata = set()
        allmods = ' ' + mods + ' '
        if mn.startswith('v_mfma'):
            self.kind = 'mfma'
            self.D, self.A, self.B, self.C = R[0], R[1], R[2], R[3]
            self.wr = set(R[0])
            self.rd = R[1] | R[2] | R[3]
            self.passes = 8 if '32x32' in mn else 4
        elif mn.startswith('v_'):
            self.kind = 'valu'
            base = re.sub(r'_(e32|e64|dpp|sdwa)$', '', mn)
            if base in TRANS:
                self.kind = 'trans'
            if base == 'v_nop':
                pass
            elif base.startswith('v_permlane') and 'swap' in base:
                self.wr = R[0] | R[1]
                self.rd = R[0] | R[1]
            elif base in ('v_add_co_u32', 'v_sub_co_u32', 'v_addc_co_u32', 'v_subb_co_u32'):
                self.wr = R[0] | R[1]
                for r in R[2:]:
                    self.rd |= r
            else:
                self.wr = set(R[0])
                for r in R[1:]:
                    self.rd |= r
                if base.startswith('v_fmac') or base.startswith('v_dot2c') or base.startswith('v_writelane'):
                    self.rd |= R[0]
            if mn.endswith('_dpp') or 'row_' in mods or 'quad_perm' in mods:
                self.dpp = True
                self.rd |= R[0]
        elif mn.startswith('ds_'):
            self.kind = 'ds'
            if mn.startswith('ds_read') or mn.startswith('ds_bpermute') or mn.startswith('ds_permute') or mn.startswith('ds_swizzle'):
                self.wr = set(R[0])
                for r in R[1:]:
                    self.rd |= r
            else:
                for r in R:
                    self.rd |= r
        elif mn.startswith('buffer_') or mn.startswith('global_'):
            self.kind = 'vmem'
            if mn in ('buffer_wbl2', 'buffer_inv'):
                pass
            elif ' lds ' in allmods or mn.startswith('global_load_lds'):
                self.lds_dma = True
                for r in R:
                    self.rd |= r
                self.rd |= {('s', 124)}
            elif '_load' in mn:
                self.wr = set(R[0])
                for r in R[1:]:
                    self.rd |= r
            elif mn.startswith('buffer_atomic') and ' sc0 ' in allmods:
                self.wr = set(R[0])
                for r in R:
                    self.rd |= r
            else:
                for r in R:
                    self.rd |= r
                if mn.endswith('x4') or mn.endswith('x3'):
                    self.wide_store = True
                    self.sdata = R[0] if mn.startswith('buffer_') else R[1]
        elif mn.startswith('s_load') or mn.startswith('s_buffer_load') or mn in ('s_memtime', 's_memrealtime'):
            self.kind = 'smem'
            self.wr = set(R[0])
            for r in R[1:]:
                self.rd |= r
        elif mn.startswith('s_'):
            self.kind = 'salu'
            if mn == 's_nop':
                self.states = int(ops[0], 0) + 1
            elif mn.startswith(('s_cmp', 's_cbranch', 's_branch', 's_waitcnt', 's_barrier', 's_endpgm', 's_sleep', 's_setprio', 's_bitcmp')):
                for r in R:
                    self.rd |= r
            else:
                if R:
                    self.wr = set(R[0])
                for r in R[1:]:
                    self.rd |= r
                if mn.startswith(('s_addk', 's_mulk')):
                    self.rd |= R[0]
                if 'saveexec' in mn:
                    self.wr |= {('s', 126), ('s', 127)}
        else:
            raise ValueError('unknown instruction: ' + text)


def isv(rs):
    return {r for r in rs if r[0] != 's'}


def iss(rs):
    return {r for r in rs if r[0] == 's'}


def need_states(p, q):
    n = 0
    pv = p.kind in ('valu', 'trans')
    qv = q.kind in ('valu', 'trans')
    if pv:
        wv, ws = isv(p.wr), iss(p.wr)
        if q.kind == 'mfma' and wv & q.rd:
            n = max(n, 2)
        if qv and wv & q.rd:
            if q.mn.startswith('v_permlane') or q.dpp:
                n = max(n, 2)
            if q.mn.startswith(('v_readfirstlane', 'v_readlane')):
                n = max(n, 1)
            if p.kind == 'trans':
                n = max(n, 1)
            if 'sdwa' in p.mn or 'op_sel:' in p.text:
                n = max(n, 1)
        if p.kind == 'trans' and q.kind in ('ds', 'vmem') and wv & q.rd:
            n = max(n, 1)
        if ws:
            if qv and ws & q.rd:
                n = max(n, 4 if q.mn.startswith(('v_readlane', 'v_writelane')) else 2)
            if q.kind == 'vmem' and ws & q.rd:
                n = max(n, 5)
            if q.kind in ('salu', 'smem') and ws & q.rd:
                n = max(n, 1)
    if p.kind == 'mfma':
        big = 12 if p.passes == 8 else 8
        if q.kind == 'mfma':
            if p.D & (q.A | q.B):
                n = max(n, big)
            if p.D & q.C and not (p.D == q.C and p.mn == q.mn):
                n = max(n, big - 2)
            if p.D & q.D and not (p.D == q.C and p.mn == q.mn):
                n = max(n, big - 2)
        elif qv or q.kind in ('ds', 'vmem'):
            if p.D & (q.rd | q.wr):
                n = max(n, big)
            if qv and p.C & q.wr:
                n = max(n, 7 if p.passes == 8 else 3)
    if p.kind == 'salu' and ('s', 124) in p.wr and q.lds_dma:
        n = max(n, 1)
    if p.wide_store and p.sdata & q.wr:
        n = max(n, 2)
    return n


class K:
    def __init__(self):
        self.out = []
        self.hist = []
        self.vm = []
        self.lg = []
        self.sm = set()
        self.smem_out = False
        self.nid = 0
        self.ninst = 0
        self.nops = 0
        self.maxv = -1
        self.maxa = -1
        self.maxs = -1

    def raw(self, text):
        self.out.append(text)

    def comment(self, text):
        self.out.append('    ; ' + text)

    def _emit(self, inst):
        need = 0
        dist = 0
        for p in reversed(self.hist):
            n = need_states(p, inst)
            if n - dist > need:
                need = n - dist
            dist += p.states
            if dist >= 20:
                break
        while need > 0:
            c = min(need, 16)
            nop = Inst('s_nop %d' % (c - 1))
            self.out.append('    ' + nop.text)
            self.hist.append(nop)
            self.nops += 1
            need -= c
        self.out.append('    ' + inst.text)
        self.hist.append(inst)
        if len(self.hist) > 64:
            self.hist = self.hist[-32:]
        self.ninst += 1
        for f, n in inst.rd | inst.wr:
            if f == 'v':
                self.maxv = max(self.maxv, n)
            elif f == 'a':
                self.maxa = max(self.maxa, n)
            elif n < 102:
                self.maxs = max(self.maxs, n)

    def _wait(self, vm=None, lg=None):
        parts = []
        if vm is not None and vm < len(self.vm):
            parts.append('vmcnt(%d)' % min(vm, 63))
            self.vm = self.vm[len(self.vm) - vm:] if vm > 0 else []
        if lg is not None and (lg < len(self.lg) or (lg == 0 and self.smem_out)):
            if self.smem_out:
                lg = 0
            parts.append('lgkmcnt(%d)' % min(lg, 15))
            self.lg = self.lg[len(self.lg) - lg:] if lg > 0 else []
            if lg == 0:
                self.sm = set()
                self.smem_out = False
        if parts:
            self._emit(Inst('s_waitcnt ' + ' '.join(parts)))

    def __call__(self, text):
        inst = Inst(text)
        touched = inst.rd | inst.wr
        vm = lg = None
        for k, (_, d) in enumerate(self.vm):
            if d & touched:
                vm = len(self.vm) - 1 - k
        for k, (_, d) in enumerate(self.lg):
            if d & touched:
                lg = len(self.lg) - 1 - k
        if self.sm & touched:
            lg = 0
        if vm is not None or lg is not None:
            self._wait(vm, lg)
        self._emit(inst)
        self.nid += 1
        if inst.kind == 'vmem':
            self.vm.append((self.nid, set(inst.wr)))
        elif inst.kind == 'ds':
            self.lg.append((self.nid, set(inst.wr)))
        elif inst.kind == 'smem':
            self.sm |= inst.wr
            self.smem_out = True
        return self.nid

    def wait_vm(self, tok):
        for k, (i, _) in enumerate(self.vm):
            if i == tok:
                self._wait(vm=len(self.vm) - 1 - k)
                return

    def wait_lg(self, tok):
        for k, (i, _) in enumerate(self.lg):
            if i == tok:
                self._wait(lg=len(self.lg) - 1 - k)
                return

    def drain(self, vm=True, lg=True, force=False):
        if force:
            parts = []
            if vm:
                parts.append('vmcnt(0)')
                self.vm = []
            if lg:
                parts.append('lgkmcnt(0)')
                self.lg = []
                self.sm = set()
                self.smem_out = False
            self._emit(Inst('s_waitcnt ' + ' '.join(parts)))
        else:
            self._wait(0 if vm else None, 0 if lg else None)

    def label(self, name, safe=False):
        self.out.append(name + ':')

    def pad(self, n):
        while n > 0:
            c = min(n, 16)
            self._emit(Inst('s_nop %d' % (c - 1)))
            n -= c

    def text(self):
        return '\n'.join(self.out) + '\n'


def vr(f, lo, n):
    return '%s%d' % (f, lo) if n == 1 else '%s[%d:%d]' % (f, lo, lo + n - 1)


def V(lo, n=1):
    return vr('v', lo, n)


def A(lo, n=1):
    return vr('a', lo, n)


def S(lo, n=1):
    return vr('s', lo, n)


def f2u(x):
    import struct
    return struct.unpack('<I', struct.pack('<f', x))[0]
```

```python
from asmgen import *
from layout import *
from gen_prep import srd, header, descriptor, unpack, rbf, LOG2E

WS, XS, OUTS = 's[4:7]', 's[8:11]', 's[12:15]'
sW, sI, sJ, sTH, sCB, sTB, sTE = 's16', 's17', 's18', 's19', 's20', 's21', 's22'
sFLAG, sTMO = 's64', 's65'
vL16, vLANE, vOFA = 'v255', 'v254', 'v253'
KVP = 5136
RING, RING0 = 152, 64
AUG = 152 * 1024
SCR = 158 * 1024
M32 = 'v_mfma_f32_32x32x16_bf16'
M16 = 'v_mfma_f32_16x16x32_bf16'


class G:
    prof = False
    stop = 99
    nstamp = 0


def stamp(k):
    if G.prof:
        k.drain(vm=False)
        k('s_memtime %s' % S(66 + 2 * G.nstamp, 2))
        k.drain(vm=False)
        G.nstamp += 1


def set_flag(k, base, sidx):
    k('s_lshl_b32 s24, %s, 2' % sidx)
    k('s_add_u32 s24, s24, %d' % base)
    k('v_mov_b32 v252, %s' % sFLAG)
    k.drain(lg=False, force=True)
    k('s_mov_b64 exec, 1')
    k('buffer_store_dword v252, off, %s, s24 sc1' % WS)
    k('s_mov_b64 exec, -1')


def poll(k, vaddr, soff, name):
    k('s_mov_b32 %s, 0x20000' % sTMO)
    k.label('L_poll_%s' % name)
    k('buffer_load_dword v252, %s, %s, %s offen sc1' % (vaddr, WS, soff))
    k.drain(lg=False, force=True)
    k('v_cmp_ne_u32 vcc, %s, v252' % sFLAG)
    k('s_cbranch_vccz L_pdone_%s' % name)
    k('s_sub_u32 %s, %s, 1' % (sTMO, sTMO))
    k('s_cbranch_scc0 L_poll_%s' % name)
    k.label('L_pdone_%s' % name)


class Fill:
    def __init__(self, k):
        self.k, self.q = k, []

    def add(self, x):
        self.q.append(x)

    def run(self, n):
        while n > 0 and self.q:
            x = self.q.pop(0)
            if callable(x):
                x()
            else:
                self.k(x)
            n -= 1

    def flush(self):
        self.run(1 << 30)


def dma_group(k, sm0, sglob):
    k('s_mov_b32 m0, %s' % sm0)
    t = None
    for b in range(4):
        t = k('buffer_load_dwordx4 %s, %s, %s offen offset:%d lds' % (vL16, WS, sglob, 1024 * b))
    return t


def setup(k):
    k('s_cmp_ge_u32 s2, 256')
    k('s_cbranch_scc1 L_main_end')
    srd(k, 4, 'ws')
    srd(k, 8, 'x')
    srd(k, 12, 'out')
    k('v_lshrrev_b32 v1, 6, v0')
    k('v_and_b32 %s, 63, v0' % vLANE)
    k('v_readfirstlane_b32 %s, v1' % sW)
    k('v_lshlrev_b32 %s, 4, %s' % (vL16, vLANE))
    k('s_bfe_u32 s24, s2, 0x20001')
    k('s_lshl_b32 s24, s24, 2')
    k('s_lshr_b32 s25, s2, 6')
    k('s_add_u32 %s, s24, s25' % sI)
    k('s_and_b32 %s, s2, 1' % sTH)
    k('s_bfe_u32 %s, s2, 0x30003' % sCB)
    k('s_lshl_b32 s24, %s, 3' % sTH)
    k('s_add_u32 %s, s24, %s' % (sJ, sCB))
    k('s_lshl_b32 s24, %s, 2' % sI)
    k('s_add_u32 %s, s24, %s' % (sTB, sW))
    k('s_lshl_b32 s25, %s, 1' % sTH)
    k('s_add_u32 %s, s24, s25' % sTE)
    k('s_mov_b32 %s, 1' % sFLAG)
    k('v_lshrrev_b32 v1, 4, %s' % vLANE)
    k('v_and_b32 v2, 15, %s' % vLANE)
    k('v_lshlrev_b32 v2, 4, v2')
    k('v_lshl_add_u32 %s, v1, 9, v2' % vOFA)
    k.drain(force=True)


QF = 224


def phase_c(k):
    k.comment('---- phase C: QKV')
    aK, aV, aT, aQ, WB = 0, 16, 32, 48, 64
    k('s_mul_i32 s25, %s, 163840' % sJ)
    k('s_lshl_b32 s24, %s, 12' % sW)
    k('s_add_u32 s25, s25, s24')
    k('s_add_u32 s25, s25, %d' % WQKV)
    k('s_mul_i32 s26, %s, 40960' % sTB)
    k('s_add_u32 s26, s26, %d' % H1)
    k('v_add_u32 v100, 61440, %s' % vL16)
    k('v_add_u32 v101, 122880, %s' % vL16)
    tok = []
    for n in range(10):
        tok.append(dma_group(k, 's24', 's25'))
        if n < 9:
            k('s_add_u32 s24, s24, 16384')
            k('s_add_u32 s25, s25, 16384')
        if n < 8:
            for ks in range(5 * n, 5 * n + 5):
                k('buffer_load_dwordx4 %s, %s, %s, s26 offen offset:%d' % (A(4 * ks, 4), vL16, WS, 1024 * (ks & 3)))
                if ks & 3 == 3:
                    k('s_add_u32 s26, s26, 4096')
    ready = [-1]

    def need(nbytes):
        n = -(-nbytes // 16384) - 1
        n |= 1
        if n > ready[0]:
            k.wait_vm(tok[n])
            k('s_barrier')
            ready[0] = n

    def rd1(ks, t):
        if t == 0:
            need((ks + 1) * 3072)
        base, off = (vL16, ks * 3072) if ks < 20 else ('v100', (ks - 20) * 3072)
        k('ds_read_b128 %s, %s offset:%d' % (V(WB + 12 * (ks % 3) + 4 * t, 4), base, off + 1024 * t))

    def rd2(ks):
        if ks == 0:
            need(163840)
        k('ds_read_b128 %s, v101 offset:%d' % (V(104 + 4 * (ks % 6), 4), 1024 * ks))

    for ks in range(2):
        for t in range(3):
            rd1(ks, t)
    for ks in range(40):
        for t in range(3):
            acc = V(16 * t, 16)
            k('%s %s, %s, %s, %s' % (M32, acc, V(WB + 12 * (ks % 3) + 4 * t, 4), A(4 * ks, 4), acc if ks else '0'))
            if ks + 2 < 40:
                rd1(ks + 2, t)
            elif ks == 38 or t < 2:
                rd2((ks - 38) * 3 + t)
    stamp(k)
    PK = 128
    f = Fill(k)
    f.add('s_lshl_b32 s24, %s, 4' % sTB)
    f.add('s_add_u32 s27, s24, %s' % sJ)
    f.add('s_mul_i32 s25, s27, 5120')
    f.add('s_add_u32 s25, s25, %d' % KV)
    f.add('s_add_u32 s26, s25, 4096')
    f.add('v_and_b32 v102, 31, %s' % vLANE)
    f.add('v_lshlrev_b32 v102, 5, v102')
    f.add('v_lshrrev_b32 v103, 5, %s' % vLANE)
    f.add('v_lshl_add_u32 v102, v103, 4, v102')
    for b in range(5):
        for d in range(4):
            f.add('v_cvt_pk_bf16_f32 %s, %s, %s' % (V(PK + 4 * b + d), V(8 * b + 2 * d), V(8 * b + 2 * d + 1)))
        va = 'v102' if b in (2, 3) else vL16
        if b < 4:
            f.add('buffer_store_dwordx4 %s, %s, %s, s25 offen offset:%d sc1' % (V(PK + 4 * b, 4), va, WS, 1024 * b))
        else:
            f.add('buffer_store_dwordx4 %s, %s, %s, s26 offen sc1' % (V(PK + 4 * b, 4), va, WS))
    f.add('s_add_u32 s24, %s, 8' % sW)
    f.add('s_mul_i32 s24, s24, %d' % KVP)
    f.add('v_add_u32 v148, s24, %s' % vL16)
    f.add('v_add_u32 v149, s24, v102')
    f.add('s_barrier')
    for b in range(5):
        f.add('ds_write_b128 %s, %s offset:%d' % ('v149' if b in (2, 3) else 'v148', V(PK + 4 * b, 4), 1024 * b))
    f.add('v_min_u32 v150, 11, %s' % vLANE)
    f.add('v_mul_u32_u24 v150, %d, v150' % KVP)
    f.add('v_mov_b32 v152, 0x3f803f80')
    f.add('v_mov_b32 v153, 0x3f803f80')
    f.add('ds_write_b64 v150, v[152:153] offset:5120')
    c = (DH ** -0.5) * LOG2E
    f.add('s_mov_b32 s28, %s' % hex(f2u(c)))
    f.add('s_mov_b32 s29, s28')
    f.add('v_pk_mul_f32 v[40:41], v[40:41], s[28:29]')
    f.add('v_pk_mul_f32 v[42:43], v[42:43], s[28:29]')
    f.add('v_cvt_pk_bf16_f32 v40, v40, v41')
    f.add('v_cvt_pk_bf16_f32 v41, v42, v43')
    f.add('v_cmp_gt_u32 vcc, 32, %s' % vLANE)
    for d in range(2):
        f.add('v_cndmask_b32 %s, 0, %s, vcc' % (V(QF + 4 + d), V(40 + d)))
        f.add('v_cndmask_b32 %s, %s, 0, vcc' % (V(QF + 12 + d), V(40 + d)))
        f.add('v_mov_b32 %s, 0' % V(QF + 6 + d))
        f.add('v_mov_b32 %s, 0' % V(QF + 14 + d))
    acc = V(aQ, 16)
    for ks in range(40):
        k('%s %s, %s, %s, %s' % (M32, acc, V(104 + 4 * (ks % 6), 4), A(4 * ks, 4), acc if ks else '0'))
        if ks + 5 < 40:
            rd2(ks + 5)
        f.run(4)
    f.flush()
    set_flag(k, FKV, 's27')
    for d in range(8):
        k('v_pk_mul_f32 %s, %s, s[28:29]' % (V(aQ + 2 * d, 2), V(aQ + 2 * d, 2)))
        k('v_cvt_pk_bf16_f32 %s, %s, %s' % (V(QF + (d & 3) + 8 * (d >> 2)), V(aQ + 2 * d), V(aQ + 2 * d + 1)))
    stamp(k)


def ring_dma(k, g0, g1):
    assert (g1 - g0) % 4 == 0 or True
    t = None
    for g in range(g0, g1, 4):
        k('s_add_u32 s24, %s, %d' % (sW, g))
        k('s_min_u32 s24, s24, %d' % (g1 - 1))
        k('s_lshl_b32 s25, s24, 12')
        k('s_add_u32 s25, s25, s23')
        k('s_add_u32 s24, s24, %d' % (RING0 // 4))
        for _ in range(2):
            k('s_cmp_ge_u32 s24, %d' % (RING // 4))
            k('s_cselect_b32 s26, %d, 0' % (RING // 4))
            k('s_sub_u32 s24, s24, s26')
        k('s_lshl_b32 s24, s24, 12')
        t = dma_group(k, 's24', 's25')
    return t


def w16_loads(k, base, nks, ks0, ks1, areg):
    k('s_lshl_b32 s24, %s, 2' % sCB)
    k('s_add_u32 s24, s24, %s' % sW)
    k('s_mul_i32 s24, s24, %d' % (nks * 5120))
    k('s_add_u32 s24, s24, %d' % (base + ks0 * 5120))
    n = 0
    for ks in range(ks0, ks1):
        for ct in range(5):
            k('buffer_load_dwordx4 %s, %s, %s, s24 offen offset:%d' % (A(areg(ks, ct), 4), vL16, WS, 1024 * (n & 3)))
            n += 1
            if n & 3 == 0:
                k('s_add_u32 s24, s24, 4096')


def phase_d(k):
    k.comment('---- phase D: attention')
    k('s_lshl_b32 s24, %s, 2' % sI)
    k('s_lshl_b32 s25, %s, 1' % sW)
    k('s_add_u32 s24, s24, s25')
    k('v_mov_b32 v200, 0x7fffffff')
    k('s_cmp_lt_u32 s24, 8')
    k('s_cbranch_scc1 L_kv_nopoll')
    k('s_sub_u32 s24, s24, 8')
    k('s_lshl_b32 s24, s24, 4')
    k('s_add_u32 s24, s24, %s' % sJ)
    k('s_lshl_b32 s25, s24, 2')
    k('s_add_u32 s25, s25, %d' % FKV)
    k('v_and_b32 v200, 1, %s' % vLANE)
    k('v_lshlrev_b32 v200, 6, v200')
    poll(k, 'v200', 's25', 'kv')
    k('v_mov_b32 v200, %s' % vL16)
    k.label('L_kv_nopoll')
    k('s_mul_i32 s25, s24, 5120')
    k('s_add_u32 s25, s25, %d' % KV)
    for sl in range(2):
        for b in range(5):
            if b == 4:
                k('s_add_u32 s25, s25, 4096')
            k('buffer_load_dwordx4 %s, v200, %s, s25 offen offset:%d sc1' % (A(160 + 20 * sl + 4 * b, 4), WS, 1024 * (b & 3)))
        if sl == 0:
            k('s_add_u32 s25, s25, %d' % (16 * 5120 - 4096))
    stamp(k)
    for r in range(16):
        kl = 8 * (r >> 2) + (r & 3)
        k('s_mov_b32 %s, 0x%x' % (S(32 + 2 * r), (0xffffffff << kl) & 0xffffffff))
        k('s_mov_b32 %s, 0x%x' % (S(33 + 2 * r), (0xffffffff << (kl + 4)) & 0xffffffff))
    PM = 208
    k('v_mov_b32 v201, 0xffff')
    k('v_mov_b32 v202, 0xffff0000')
    for p in range(8):
        k('v_cndmask_b32 %s, 0, v201, %s' % (V(PM + p), S(32 + 4 * p, 2)))
        k('v_cndmask_b32 v203, 0, v202, %s' % S(34 + 4 * p, 2))
        k('v_or_b32 %s, %s, v203' % (V(PM + p), V(PM + p)))
    vK, vST, vB0, VA = 'v216', 'v217', 'v218', 220
    k('s_mul_i32 s24, %s, %d' % (sW, KVP))
    k('v_add_u32 %s, s24, %s' % (vK, vL16))
    k('v_and_b32 v201, 3, %s' % vLANE)
    k('v_bfe_u32 v202, %s, 2, 2' % vLANE)
    k('v_lshrrev_b32 v203, 5, %s' % vLANE)
    k('v_lshl_add_u32 v202, v203, 2, v202')
    k('v_cmp_eq_u32 vcc, 0, v201')
    k('v_cndmask_b32 %s, 0, 16, vcc' % vST)
    k('v_mov_b32 v204, 5120')
    k('v_mov_b32 v205, 4104')
    k('v_cndmask_b32 %s, v204, v205, vcc' % vB0)
    k('v_and_b32 v203, 16, %s' % vLANE)
    k('v_cmp_eq_u32 vcc, 0, v203')
    k('v_cndmask_b32 %s, %s, 32, vcc' % (vST, vST))
    k('v_lshlrev_b32 v201, 3, v201')
    k('v_add_u32 v201, 2048, v201')
    k('v_cndmask_b32 %s, %s, v201, vcc' % (vB0, vB0))
    k('v_mad_u32_u24 %s, %s, v202, %s' % (vB0, vST, vB0))
    k('v_add_u32 %s, s24, %s' % (vB0, vB0))
    k('s_sub_i32 s27, 8, %s' % sTB)
    k('s_max_i32 s27, s27, 0')
    k('s_lshl_b32 s24, %s, 1' % sW)
    k('s_mul_i32 s24, s24, %d' % KVP)
    k('v_add_u32 v200, s24, %s' % vL16)
    for sl in range(2):
        for b in range(5):
            k('ds_write_b128 v200, %s offset:%d' % (A(160 + 20 * sl + 4 * b, 4), KVP * sl + 1024 * b))
    k.drain(vm=False)
    k('s_barrier')
    w16_loads(k, WO, 5, 0, 5, lambda ks, ct: 4 * (5 * ks + ct))
    k('s_mul_i32 s23, %s, 245760' % sJ)
    k('s_add_u32 s23, s23, %d' % WGU)
    ring_dma(k, 0, (RING - RING0) // 4)
    stamp(k)
    k('s_mul_i32 s28, %s, 40960' % sTB)
    k('s_add_u32 s28, s28, %d' % O)
    k('s_lshl_b32 s24, %s, 9' % sJ)
    k('s_add_u32 s29, s28, s24')
    k('s_add_u32 s29, s29, 32768')
    k('s_lshl_b32 s24, %s, 11' % sJ)
    k('s_add_u32 s28, s28, s24')
    KB, VB, PB, OA, MX, OT = 144, 168, 184, 144 + 0, 204, 240
    order = [8, 0, 1, 2, 3, 4, 5, 6, 7]
    for X in range(2):
        Q1, Q2 = V(QF + 8 * X, 4), V(QF + 8 * X + 4, 4)
        for n, (kk, rd) in enumerate(((0, 0), (0, 1), (1, 0), (1, 1))):
            k('v_mad_u32_u24 %s, %s, %d, %s' % (V(VA + n), vST, 16 * kk + 8 * rd + 32 * X, vB0))

        def rdk(n):
            u = order[n]
            k('ds_read_b128 %s, %s offset:%d' % (V(KB + 8 * (n % 3), 4), vK, u * KVP + 1024 * X))
            k('ds_read_b128 %s, %s offset:%d' % (V(KB + 8 * (n % 3) + 4, 4), vK, u * KVP + 4096))

        f = Fill(k)

        def post(u):
            def fix():
                lab = 'L_fix_%d_%d' % (X, u)
                for r in range(1):
                    k('v_mov_b32 v206, %s' % V(16 * u))
                k('s_cmp_gt_u32 s27, %d' % u)
                k('s_cbranch_scc0 %s' % lab)
                for r in range(16):
                    k('v_mov_b32 %s, 0xf149f2ca' % V(16 * u + r))
                k.label(lab)
            f.add(fix)
            if u == 0:
                for r in range(16):
                    f.add('v_cndmask_b32 %s, %s, %s, %s' % (V(r), V(r), V(128 + r), S(32 + 2 * r, 2)))
            for p in range(8):
                m = V(MX + (p & 1))
                if u == 0 and p < 2:
                    f.add('v_max_f32 %s, %s, %s' % (m, V(2 * p), V(2 * p + 1)))
                else:
                    f.add('v_max3_f32 %s, %s, %s, %s' % (m, m, V(16 * u + 2 * p), V(16 * u + 2 * p + 1)))

        rdk(0)
        rdk(1)
        for n in range(9):
            u = order[n]
            sreg = V(16 * u, 16)
            k('%s %s, %s, %s, 0' % (M32, sreg, V(KB + 8 * (n % 3), 4), Q1))
            f.run(5)
            k('%s %s, %s, %s, %s' % (M32, sreg, V(KB + 8 * (n % 3) + 4, 4), Q2, sreg))
            if n + 2 < 9:
                rdk(n + 2)
            if n >= 2:
                post(order[n - 1])
            f.run(4)
        post(order[8])

        pv = [(1, 0), (1, 1), (2, 0), (2, 1), (3, 0), (3, 1), (4, 0), (4, 1), (5, 0), (5, 1), (6, 0), (6, 1), (7, 0), (7, 1),
              (8, 0), (8, 1), (0, 0), (0, 1)]

        def rdv(n):
            u, kk = pv[n]
            for rd in range(2):
                k('ds_read_b64_tr_b16 %s, %s offset:%d' % (V(VB + 4 * (n % 4) + 2 * rd, 2), V(VA + 2 * kk + rd), u * KVP))

        rdv(0)
        rdv(1)
        f.flush()
        k('v_max_f32 v204, v204, v205')
        k('v_mov_b32 v205, v204')
        k('v_permlane32_swap_b32 v204, v205')
        k('v_max_f32 v204, v204, v205')
        oacc = V(OA, 16)
        pend = []
        nv = [0]

        def issue():
            if pend:
                n, preg = pend.pop(0)
                k('%s %s, %s, %s, %s' % (M32, oacc, V(VB + 4 * (n % 4), 4), preg, oacc if n else '0'))
                if n + 2 < 18:
                    rdv(n + 2)

        for ti, u in enumerate([1, 2, 3, 4, 5, 6, 7, 0]):
            P = PB + 8 * (ti & 1)
            if u == 0:
                P = 128
            for h in range(2):
                for p in range(4 * h, 4 * h + 4):
                    s2 = V(16 * u + 2 * p, 2)
                    k('v_pk_add_f32 %s, %s, v[204:205] op_sel_hi:[1,0] neg_lo:[0,1] neg_hi:[0,1]' % (s2, s2))
                issue()
                for r in range(8 * h, 8 * h + 8):
                    k('v_exp_f32 %s, %s' % (V(16 * u + r), V(16 * u + r)))
                for p in range(4 * h, 4 * h + 4):
                    k('v_cvt_pk_bf16_f32 %s, %s, %s' % (V(P + p), V(16 * u + 2 * p), V(16 * u + 2 * p + 1)))
                if u != 0:
                    pend.append((2 * ti + h, V(P + 4 * h, 4)))
        for p in range(8):
            k('v_and_b32 %s, %s, %s' % (V(136 + p), V(128 + p), V(PM + p)))
            if p == 3:
                issue()
        pend += [(14, V(136, 4)), (15, V(140, 4))]
        issue()
        for p in range(8):
            k('v_xor_b32 %s, %s, %s' % (V(128 + p), V(128 + p), V(136 + p)))
            if p == 3:
                issue()
        pend += [(16, V(128, 4)), (17, V(132, 4))]
        while pend:
            issue()
        k('v_rcp_f32 v204, %s' % V(OA + 12))
        for p in range(6):
            k('v_pk_mul_f32 %s, %s, v[204:205] op_sel_hi:[1,0]' % (V(OA + 2 * p, 2), V(OA + 2 * p, 2)))
        for p in range(4):
            k('v_cvt_pk_bf16_f32 %s, %s, %s' % (V(244 + p), V(OA + 2 * p), V(OA + 2 * p + 1)))
        k('buffer_store_dwordx4 v[244:247], %s, %s, s28 offen offset:%d sc1' % (vL16, WS, 1024 * X))
        for p in range(2):
            k('v_cvt_pk_bf16_f32 %s, %s, %s' % (V(OT + 2 * X + p), V(OA + 8 + 2 * p), V(OA + 9 + 2 * p)))
    k('s_mov_b32 exec_hi, 0')
    k('buffer_store_dwordx4 %s, %s, %s, s29 offen sc1' % (V(OT, 4), vL16, WS))
    k('s_mov_b64 exec, -1')
    stamp(k)
    k('s_lshl_b32 s27, %s, 4' % sTB)
    k('s_add_u32 s27, s27, %s' % sJ)
    set_flag(k, FO, 's27')
    stamp(k)


def colconst_issue(k, which, tmp):
    k('s_mul_i32 s24, %s, 320' % sCB)
    k('s_add_u32 s24, s24, %d' % (MODP + which * 2560))
    k('v_min_u32 %s, 304, %s' % (V(tmp + 16), vL16))
    for p in range(4):
        k('buffer_load_dwordx4 %s, %s, %s, s24 offen' % (V(tmp + 4 * p, 4), V(tmp + 16), WS))
        if p < 3:
            k('s_add_u32 s24, s24, %d' % (3840 * 4))


def colconst_finish(k, tmp, dst):
    for h in range(2):
        x = [V(tmp + 4 * p + 2 * h, 2) for p in range(4)]
        k('v_pk_add_f32 %s, %s, %s' % (x[0], x[0], x[1]))
        k('v_pk_add_f32 %s, %s, %s' % (x[2], x[2], x[3]))
        k('v_pk_add_f32 %s, %s, %s' % (x[0], x[0], x[2]))
    for d in range(4):
        rbf(k, V(tmp + d))
    k('s_mul_i32 s24, %s, 320' % sW)
    k('s_add_u32 s24, s24, %d' % SCR)
    k('v_add_u32 %s, s24, %s' % (V(tmp + 16), V(tmp + 16)))
    k('ds_write_b128 %s, %s' % (V(tmp + 16), V(tmp, 4)))
    k('v_lshrrev_b32 %s, 4, %s' % (V(tmp + 4), vLANE))
    k('v_lshl_add_u32 %s, %s, 5, s24' % (V(tmp + 5), V(tmp + 4)))
    k('v_lshl_add_u32 %s, %s, 4, s24' % (V(tmp + 6), V(tmp + 4)))
    k.drain(vm=False)
    for ct in range(4):
        k('ds_read_b128 %s, %s offset:%d' % (V(dst + 4 * ct, 4), V(tmp + 5), 128 * (ct >> 1) + 16 * (ct & 1)))
    k('ds_read_b128 %s, %s offset:256' % (V(dst + 16, 4), V(tmp + 6)))


def row_offsets(k, va, vb):
    k('v_and_b32 %s, 15, %s' % (va, vLANE))
    k('v_mul_u32_u24 %s, 1280, %s' % (va, va))
    k('v_lshrrev_b32 %s, 4, %s' % (vb, vLANE))
    k('v_lshl_add_u32 %s, %s, 3, %s' % (vb, vb, va))
    k('v_and_b32 v251, 48, %s' % vLANE)
    k('v_add_u32 %s, v251, %s' % (va, va))
    k('s_lshl_b32 s26, %s, 1' % sTE)
    k('s_add_u32 s26, s26, %s' % sW)
    k('s_mul_i32 s26, s26, %d' % (16 * 1280))
    k('s_mul_i32 s24, %s, 160' % sCB)
    k('s_add_u32 s26, s26, s24')


def poll8(k, base, name):
    k('s_lshl_b32 s25, %s, 2' % sTE)
    k('s_add_u32 s25, s25, %s' % sW)
    k('s_lshl_b32 s25, s25, 4')
    k('s_add_u32 s25, s25, %d' % base)
    k('v_and_b32 v250, 3, %s' % vLANE)
    k('v_lshlrev_b32 v250, 2, v250')
    k('v_bfe_u32 v251, %s, 2, 1' % vLANE)
    k('v_lshl_add_u32 v250, v251, 6, v250')
    poll(k, 'v250', 's25', name)


def ksplit_gemm(k, nks, wreg, actreg, act_loads, early):
    t_s = 's27'

    def tile(s):
        k('s_add_u32 %s, %s, %d' % (t_s, sW, s + 1))
        k('s_and_b32 %s, %s, 3' % (t_s, t_s))

    for s in range(early):
        tile(s)
        act_loads(s, t_s)
    f = Fill(k)
    for s in range(4):
        acc = 20 * (s & 1)
        n = 0
        for ks in range(nks):
            for ct in range(5):
                a = V(acc + 4 * ct, 4)
                k('%s %s, %s, %s, %s' % (M16, a, A(wreg(ks, ct), 4), actreg(s, ks), a if ks else '0'))
                n += 1
                if n > 4:
                    f.run(1)
        f.flush()
        if s + early < 4:
            tile(s + early)
            act_loads(s + early, t_s)
        if s < 3:
            f.add('s_add_u32 s27, %s, %d' % (sW, s + 1))
            f.add('s_and_b32 s27, s27, 3')
            f.add('s_mul_i32 s27, s27, 15360')
            f.add('v_add_u32 v60, s27, %s' % vL16)
            for ct in range(5):
                f.add('ds_write_b128 v60, %s offset:%d' % (V(acc + 4 * ct, 4), 5120 * s + 1024 * ct))
        if s == 2:
            f.add(lambda: k.drain(vm=False))
            f.add('s_barrier')
            f.add('s_mul_i32 s27, %s, 15360' % sW)
            f.add('v_add_u32 v60, s27, %s' % vL16)
            R = [40, 112, 132]
            for q in range(3):
                for ct in range(5):
                    f.add('ds_read_b128 %s, v60 offset:%d' % (V(R[q] + 4 * ct, 4), 5120 * q + 1024 * ct))
            for q in (1, 2):
                for p in range(10):
                    f.add('v_pk_add_f32 %s, %s, %s' % (V(40 + 2 * p, 2), V(40 + 2 * p, 2), V(R[q] + 2 * p, 2)))
    for p in range(10):
        k('v_pk_add_f32 %s, %s, %s' % (V(20 + 2 * p, 2), V(20 + 2 * p, 2), V(40 + 2 * p, 2)))


def xreduce(k, r, t):
    k('v_mov_b32 %s, %s' % (t, r))
    k('v_permlane16_swap_b32 %s, %s' % (r, t))
    k('v_add_f32 %s, %s, %s' % (r, r, t))
    k('v_mov_b32 %s, %s' % (t, r))
    k('v_permlane32_swap_b32 %s, %s' % (r, t))
    k('v_add_f32 %s, %s, %s' % (r, r, t))


def phase_e(k):
    k.comment('---- phase E: O projection')
    XR, GA = 160, 172
    colconst_issue(k, 2, 192)
    row_offsets(k, 'v210', 'v211')
    k('buffer_load_dwordx4 %s, v210, %s, s26 offen' % (V(XR, 4), XS))
    k('buffer_load_dwordx4 %s, v210, %s, s26 offen offset:64' % (V(XR + 4, 4), XS))
    k('buffer_load_dwordx2 %s, v211, %s, s26 offen offset:128' % (V(XR + 8, 2), XS))
    colconst_finish(k, 192, GA)
    k('s_barrier')
    poll8(k, FO, 'o')
    stamp(k)

    def act_loads(s, t):
        k('s_lshr_b32 s24, %s, 1' % t)
        k('s_add_u32 s24, s24, %s' % sTE)
        k('s_mul_i32 s24, s24, 40960')
        k('s_and_b32 s25, %s, 1' % t)
        k('s_lshl_b32 s25, s25, 8')
        k('s_add_u32 s24, s24, s25')
        k('s_add_u32 s24, s24, %d' % O)
        k('s_lshl_b32 s25, %s, 11' % sW)
        k('s_add_u32 s25, s25, s24')
        k('s_add_u32 s25, s25, 32768')
        k('s_lshl_b32 s28, %s, 13' % sW)
        k('s_add_u32 s24, s24, s28')
        for ks in range(4):
            k('buffer_load_dwordx4 %s, %s, %s, s24 offen offset:%d sc1' % (A(100 + 4 * (5 * s + ks), 4), vOFA, WS, 2048 * (ks & 1)))
            if ks == 1:
                k('s_add_u32 s24, s24, 4096')
        k('buffer_load_dwordx4 %s, %s, %s, s25 offen sc1' % (A(100 + 4 * (5 * s + 4), 4), vOFA, WS))

    ksplit_gemm(k, 5, lambda ks, ct: 4 * (5 * ks + ct), lambda s, ks: A(100 + 4 * (5 * s + ks), 4), act_loads, 4)
    stamp(k)
    for d in range(10):
        unpack(k, 'v0', 'v1', V(XR + d))
        k('v_pk_fma_f32 %s, %s, %s, v[0:1]' % (V(20 + 2 * d, 2), V(20 + 2 * d, 2), V(GA + 2 * d, 2)))
        k('v_cvt_pk_bf16_f32 %s, %s, %s' % (V(XR + d), V(20 + 2 * d), V(21 + 2 * d)))
    k('s_lshr_b32 s24, %s, 1' % sW)
    k('s_add_u32 s24, s24, %s' % sTE)
    k('s_mul_i32 s24, s24, 40960')
    k('s_mul_i32 s25, %s, 5120' % sCB)
    k('s_add_u32 s24, s24, s25')
    k('s_and_b32 s25, %s, 1' % sW)
    k('s_lshl_b32 s25, s25, 8')
    k('s_add_u32 s24, s24, s25')
    k('s_add_u32 s24, s24, %d' % X1)
    k('s_add_u32 s25, s24, 4096')
    k('buffer_store_dwordx4 %s, %s, %s, s24 offen sc1' % (V(XR, 4), vOFA, WS))
    k('buffer_store_dwordx4 %s, %s, %s, s24 offen offset:2048 sc1' % (V(XR + 4, 4), vOFA, WS))
    k('v_and_b32 v2, 15, %s' % vLANE)
    k('v_lshlrev_b32 v2, 4, v2')
    k('v_lshrrev_b32 v3, 5, %s' % vLANE)
    k('v_lshl_add_u32 v2, v3, 9, v2')
    k('v_bfe_u32 v3, %s, 4, 1' % vLANE)
    k('v_lshl_add_u32 v2, v3, 3, v2')
    k('buffer_store_dwordx2 %s, v2, %s, s25 offen sc1' % (V(XR + 8, 2), WS))
    k('v_pk_add_f32 v[4:5], v[20:21], v[22:23]')
    for d in range(2, 10):
        k('v_pk_add_f32 v[4:5], v[4:5], %s' % V(20 + 2 * d, 2))
    k('v_add_f32 v4, v4, v5')
    xreduce(k, 'v4', 'v5')
    k('v_mul_f32 v6, %s, v4' % hex(f2u(1.0 / 80)))
    for d in range(10):
        x = V(20 + 2 * d, 2)
        k('v_pk_add_f32 %s, %s, v[6:7] op_sel_hi:[1,0] neg_lo:[0,1] neg_hi:[0,1]' % (x, x))
        if d == 0:
            k('v_pk_mul_f32 v[8:9], %s, %s' % (x, x))
        else:
            k('v_pk_fma_f32 v[8:9], %s, %s, v[8:9]' % (x, x))
    k('v_add_f32 v5, v8, v9')
    xreduce(k, 'v5', 'v6')
    k('s_lshl_b32 s27, %s, 1' % sTE)
    k('s_add_u32 s27, s27, %s' % sW)
    k('s_lshl_b32 s27, s27, 3')
    k('s_add_u32 s27, s27, %s' % sCB)
    k('s_lshl_b32 s24, s27, 7')
    k('s_add_u32 s24, s24, %d' % STATS)
    k('v_lshlrev_b32 v2, 3, %s' % vLANE)
    k('s_mov_b64 exec, 0xffff')
    k('buffer_store_dwordx2 v[4:5], v2, %s, s24 offen sc1' % WS)
    k('s_mov_b64 exec, -1')
    for d in range(10):
        k('v_accvgpr_write_b32 %s, %s' % (A(240 + d), V(XR + d)))
    set_flag(k, FX1, 's27')
    stamp(k)


def split2(k, hi, lo, x):
    k('v_cvt_pk_bf16_f32 %s, %s, %s' % (hi, x, x))
    k('v_and_b32 %s, 0xffff0000, %s' % (lo, hi))
    k('v_sub_f32 %s, %s, %s' % (x, x, lo))
    k('v_cvt_pk_bf16_f32 %s, %s, %s' % (lo, x, x))


def phase_f(k):
    k.comment('---- phase F: gate/up')
    WB, BA, CK = 96, 144, 148
    k('s_barrier')
    k('s_mul_i32 s23, %s, 245760' % sJ)
    k('s_add_u32 s23, s23, %d' % WGU)
    ring_dma(k, (RING - RING0) // 4, RING // 4)
    k('s_min_u32 s24, %s, 2' % sW)
    k('s_mul_i32 s25, %s, 3' % sJ)
    k('s_add_u32 s25, s25, s24')
    k('s_lshl_b32 s25, s25, 9')
    k('s_add_u32 s25, s25, %d' % CSB)
    k('v_and_b32 v160, 31, %s' % vLANE)
    k('v_lshrrev_b32 v161, 5, %s' % vLANE)
    k('v_lshlrev_b32 v162, 2, v160')
    k('v_lshl_add_u32 v162, v161, 8, v162')
    for p in range(8):
        k('buffer_load_dword %s, v162, %s, s25 offen' % (V(164 + 2 * p), WS))
        k('buffer_load_dword %s, v162, %s, s25 offen offset:128' % (V(165 + 2 * p), WS))
        if p < 7:
            k('s_add_u32 s25, s25, %d' % (48 * 512))
    for st in (4, 2, 1):
        for p in range(st):
            k('v_pk_add_f32 %s, %s, %s' % (V(164 + 2 * p, 2), V(164 + 2 * p, 2), V(164 + 2 * (p + st), 2)))
    split2(k, 'v166', 'v167', 'v164')
    split2(k, 'v168', 'v169', 'v165')
    k('s_mov_b32 s26, 0xffff')
    k('v_bfi_b32 v172, s26, v166, v167')
    k('v_bfi_b32 v173, s26, v166, v168')
    k('v_bfi_b32 v174, s26, v169, v168')
    for d in range(5):
        k('v_mov_b32 %s, 0' % V(175 + d))
    k('s_lshl_b32 s24, s24, 11')
    k('s_add_u32 s24, s24, %d' % AUG)
    k('v_lshlrev_b32 v162, 4, v160')
    k('v_lshl_add_u32 v162, v161, 10, v162')
    k('v_add_u32 v162, s24, v162')
    k('ds_write_b128 v162, v[172:175]')
    k('ds_write_b128 v162, v[176:179] offset:512')
    k('v_add_u32 v154, 65536, %s' % vL16)
    k('v_add_u32 v155, 131072, %s' % vL16)
    k('s_lshl_b32 s25, %s, 6' % sTB)
    k('s_add_u32 s25, s25, %d' % FX1)
    k('v_and_b32 v250, 15, %s' % vLANE)
    k('v_lshlrev_b32 v250, 2, v250')
    poll(k, 'v250', 's25', 'x1')
    stamp(k)
    k('s_mul_i32 s26, %s, 40960' % sTB)
    k('s_add_u32 s26, s26, %d' % X1)
    for ks in range(40):
        k('buffer_load_dwordx4 %s, %s, %s, s26 offen offset:%d sc1' % (A(4 * ks, 4), vL16, WS, 1024 * (ks & 3)))
        if ks & 3 == 3:
            k('s_add_u32 s26, s26, 4096')
    k('s_lshl_b32 s25, %s, 11' % sTB)
    k('s_add_u32 s25, s25, %d' % STATS)
    k('v_and_b32 v160, 15, %s' % vLANE)
    k('v_lshlrev_b32 v160, 3, v160')
    k('v_bfe_u32 v162, %s, 4, 1' % vLANE)
    k('v_lshl_add_u32 v160, v162, 10, v160')
    k('v_lshl_add_u32 v160, v161, 9, v160')
    for c in range(4):
        k('buffer_load_dwordx2 %s, v160, %s, s25 offen offset:%d sc1' % (V(164 + 2 * c, 2), WS, 128 * c))
    k.drain(vm=False)
    k('s_barrier')

    def stats():
        k('v_add_f32 v172, v164, v166')
        k('v_add_f32 v173, v168, v170')
        k('v_add_f32 v172, v172, v173')
        k('v_mov_b32 v173, v172')
        k('v_permlane32_swap_b32 v172, v173')
        k('v_add_f32 v172, v172, v173')
        k('v_mul_f32 v172, %s, v172' % hex(f2u(-1.0 / 640)))
        k('v_add_f32 v173, v165, v167')
        k('v_add_f32 v174, v169, v171')
        k('v_add_f32 v173, v173, v174')
        k('v_mov_b32 v175, 0')
        for c in range(4):
            k('v_fma_f32 v174, %s, v176, v172' % V(164 + 2 * c))
            k('v_fmac_f32 v175, v174, v174')
        k('v_fmac_f32 v173, 0x42a00000, v175')
        k('v_mov_b32 v174, v173')
        k('v_permlane32_swap_b32 v173, v174')
        k('v_add_f32 v173, v173, v174')
        k('v_mov_b32 %s, %s' % (V(CK + 4), hex(f2u(1e-5))))
        k('v_fmac_f32 %s, %s, v173' % (V(CK + 4), hex(f2u(1.0 / 640))))
        k('v_rsq_f32 v174, %s' % V(CK + 4))
        k('v_mul_f32 v173, %s, v174' % V(CK + 4))
        cc = -2.0 * 0.7978845608028654 * LOG2E
        k('v_mul_f32 %s, %s, v174' % (V(CK), hex(f2u(cc))))
        k('v_mul_f32 v175, v174, v174')
        k('v_mul_f32 v175, %s, v175' % hex(f2u(0.044715)))
        k('v_mul_f32 %s, %s, v175' % (V(CK + 2), V(CK)))
        split2(k, 'v164', 'v165', 'v172')
        split2(k, 'v166', 'v167', 'v173')
        k('s_mov_b32 s26, 0xffff')
        k('v_mov_b32 %s, v164' % V(BA))
        k('v_bfi_b32 %s, s26, v165, v166' % V(BA + 1))
        k('v_bfi_b32 %s, s26, v166, v167' % V(BA + 2))
        k('v_mov_b32 %s, 0' % V(BA + 3))

    k('v_mov_b32 v176, %s' % hex(f2u(1.0 / 80)))

    def ldsaddr(byte):
        base = [vL16, 'v154', 'v155'][byte >> 16]
        return base, byte & 0xffff

    steps = []
    for ks in range(41):
        for t in range(4):
            byte = ((RING0 + 4 * ks + t) % RING) * 1024 if ks < 40 else AUG + 1024 * t
            steps.append((t, byte, A(4 * ks, 4) if ks < 40 else V(BA, 4), ks == 0, 4 * ks + t if ks < 40 else None))
    n1 = len(steps)
    for ks in range(41):
        for t in range(2):
            byte = ((RING0 + 160 + 2 * ks + t) % RING) * 1024 if ks < 40 else AUG + 1024 * (4 + t)
            steps.append((4 + t, byte, A(4 * ks, 4) if ks < 40 else V(BA, 4), ks == 0, 160 + 2 * ks + t if ks < 40 else None))
    AH, NB = 8, 12
    refill = {32: (38, 46), 64: (46, 54), 96: (54, 60)}
    toks = []
    vis = [RING]

    def rd(n):
        blk = steps[n][4]
        if blk is not None and blk >= vis[0]:
            t, g1 = toks.pop(0)
            k.wait_vm(t)
            k('s_barrier')
            vis[0] = 4 * g1
        base, off = ldsaddr(steps[n][1])
        k('ds_read_b128 %s, %s offset:%d' % (V(WB + 4 * (n % NB), 4), base, off))

    f = Fill(k)
    k('s_mul_i32 s28, %s, 98304' % sTB)
    k('s_mul_i32 s24, %s, 6144' % sJ)
    k('s_add_u32 s28, s28, s24')
    k('s_add_u32 s28, s28, %d' % HH)
    k('s_add_u32 s29, s28, 4096')

    def gelu(p, add):
        g, u, T0 = 32 * p, 32 * p + 16, 160
        for e in range(8):
            a, b, t = V(g + 2 * e, 2), V(u + 2 * e, 2), V(T0 + 2 * (e & 3), 2)
            t0, t1 = V(T0 + 2 * (e & 3)), V(T0 + 2 * (e & 3) + 1)
            add('v_pk_mul_f32 %s, %s, %s' % (t, a, a))
            add('v_pk_fma_f32 %s, %s, %s, %s op_sel_hi:[1,0,0]' % (t, t, V(CK + 2, 2), V(CK, 2)))
            add('v_pk_mul_f32 %s, %s, %s' % (t, t, a))
            add('v_exp_f32 %s, %s' % (t0, t0))
            add('v_exp_f32 %s, %s' % (t1, t1))
            add('v_pk_mul_f32 %s, %s, %s' % (b, a, b))
            add('v_pk_fma_f32 %s, %s, %s, %s op_sel_hi:[1,0,0]' % (t, t, V(CK + 4, 2), V(CK + 4, 2)))
            add('v_rcp_f32 %s, %s' % (t0, t0))
            add('v_rcp_f32 %s, %s' % (t1, t1))
            add('s_nop 0')
            add('v_pk_mul_f32 %s, %s, %s' % (b, b, t))
            add('v_cvt_pk_bf16_f32 %s, %s, %s' % (V(g + e), V(u + 2 * e), V(u + 2 * e + 1)))
            if e & 3 == 3:
                blk = 2 * p + (e >> 2)
                add('buffer_store_dwordx4 %s, %s, %s, %s offen offset:%d sc1' %
                    (V(g + (e & 4), 4), vL16, WS, 's28' if blk < 4 else 's29', 1024 * (blk & 3)))

    for n in range(AH):
        rd(n)
    for n, (t, byte, B, first, blk) in enumerate(steps):
        if n in refill:
            k('s_barrier')
            g0, g1 = refill[n]
            toks.append((ring_dma(k, g0, g1), g1))
        if n == 120:
            stats()
        acc = V(16 * t, 16)
        k('%s %s, %s, %s, %s' % (M32, acc, V(WB + 4 * (n % NB), 4), B, '0' if first else acc))
        if n + AH < len(steps):
            rd(n + AH)
        if n == n1 + 2:
            gelu(0, f.add)
            gelu(1, f.add)
        f.run(3)
    f.flush()
    stamp(k)
    gelu(2, k)
    stamp(k)
    k('s_lshl_b32 s27, %s, 4' % sTB)
    k('s_add_u32 s27, s27, %s' % sJ)
    set_flag(k, FH, 's27')
    stamp(k)


def phase_g(k):
    k.comment('---- phase G: down projection')
    GB = 208
    colconst_issue(k, 5, 228)
    w16_loads(k, WD, 12, 0, 12, lambda ks, ct: 4 * (5 * ks + ct))
    colconst_finish(k, 228, GB)
    k('s_barrier')
    poll8(k, FH, 'h')
    stamp(k)

    def areg(s, ks):
        return V(64 + 48 * (s % 3) + 4 * ks, 4)

    def act_loads(s, t):
        k('s_lshr_b32 s24, %s, 1' % t)
        k('s_add_u32 s24, s24, %s' % sTE)
        k('s_mul_i32 s24, s24, 98304')
        k('s_and_b32 s25, %s, 1' % t)
        k('s_lshl_b32 s25, s25, 8')
        k('s_add_u32 s24, s24, s25')
        k('s_mul_i32 s25, %s, 24576' % sW)
        k('s_add_u32 s24, s24, s25')
        k('s_add_u32 s24, s24, %d' % HH)
        for ks in range(12):
            k('buffer_load_dwordx4 %s, %s, %s, s24 offen offset:%d sc1' % (areg(s, ks), vOFA, WS, 2048 * (ks & 1)))
            if ks & 1 and ks < 11:
                k('s_add_u32 s24, s24, 4096')

    ksplit_gemm(k, 12, lambda ks, ct: 4 * (5 * ks + ct), areg, act_loads, 3)
    stamp(k)
    row_offsets(k, 'v60', 'v61')
    for d in range(10):
        k('v_accvgpr_read_b32 v2, %s' % A(240 + d))
        unpack(k, 'v0', 'v1', 'v2')
        k('v_pk_fma_f32 %s, %s, %s, v[0:1]' % (V(20 + 2 * d, 2), V(20 + 2 * d, 2), V(GB + 2 * d, 2)))
        k('v_cvt_pk_bf16_f32 %s, %s, %s' % (V(40 + d), V(20 + 2 * d), V(21 + 2 * d)))
    k('buffer_store_dwordx4 v[40:43], v60, %s, s26 offen' % OUTS)
    k('buffer_store_dwordx4 v[44:47], v60, %s, s26 offen offset:64' % OUTS)
    k('buffer_store_dwordx2 v[48:49], v61, %s, s26 offen offset:128' % OUTS)


def gen_main(prof=False, stop=99):
    G.prof, G.stop, G.nstamp = prof, stop, 0
    k = K()
    header(k, 'main_kernel')
    setup(k)
    stamp(k)
    for n, ph in enumerate((phase_c, phase_d, phase_e, phase_f, phase_g)):
        if n < stop:
            ph(k)
    if prof:
        k.drain(force=True)
        stamp(k)
        k('s_lshl_b32 s24, s2, 2')
        k('s_add_u32 s24, s24, %s' % sW)
        k('s_lshl_b32 s24, s24, 8')
        k('s_add_u32 s24, s24, %d' % PROF)
        k('s_mov_b64 exec, 1')
        for n in range(G.nstamp):
            k('v_mov_b32 v0, %s' % S(66 + 2 * n))
            k('v_mov_b32 v1, %s' % S(67 + 2 * n))
            k('buffer_store_dwordx2 v[0:1], off, %s, s24 offset:%d' % (WS, 8 * n))
    k.label('L_main_end')
    k('s_endpgm')
    assert G.nstamp <= 18, G.nstamp
    return k.text(), descriptor('main_kernel', 512, 102, 256), k
```

```python
from asmgen import *
from layout import *

LOG2E = 1.4426950408889634
NAME = 'adaLN_cond__sliding_block__glu_gated_geglu__prompt'
KA = dict(x=0, wqkv=8, wo=16, wg=32, wu=40, wd=48, c=56, wmod=64, out=72, dbg=80, ws=88)
SIZE = dict(x=T * D * 2, wqkv=D * 3 * D * 2, wo=D * D * 2, wg=D * F * 2, wu=D * F * 2, wd=F * D * 2, c=D * 2,
            wmod=D * 6 * D * 2, out=T * D * 2, dbg=256, ws=WS_END)


def magic(d, n):
    for sh in range(8, 24):
        m = -(-(1 << sh) // d)
        if all((x * m) >> sh == x // d for x in range(n)) and (n - 1) * m < (1 << 32):
            return m, sh
    raise ValueError


def sdiv(k, dst, src, d, n):
    m, sh = magic(d, n)
    k('s_mul_i32 %s, %s, %d' % (dst, src, m))
    k('s_lshr_b32 %s, %s, %d' % (dst, dst, sh))


def vdiv(k, dst, src, d, n):
    m, sh = magic(d, n)
    k('v_mul_u32_u24 %s, %d, %s' % (dst, m, src))
    k('v_lshrrev_b32 %s, %d, %s' % (dst, sh, dst))


def srd(k, sb, name):
    k('s_load_dwordx2 %s, s[0:1], %d' % (S(sb, 2), KA[name]))
    k('s_mov_b32 %s, %d' % (S(sb + 2), SIZE[name]))
    k('s_mov_b32 %s, 0x20000' % S(sb + 3))


def unpack(k, dlo, dhi, src):
    k('v_lshlrev_b32 %s, 16, %s' % (dlo, src))
    k('v_and_b32 %s, 0xffff0000, %s' % (dhi, src))


def rbf(k, r):
    k('v_cvt_pk_bf16_f32 %s, %s, %s' % (r, r, r))
    k('v_lshlrev_b32 %s, 16, %s' % (r, r))


def header(k, name):
    k.raw('.globl %s' % name)
    k.raw('.p2align 8')
    k.raw('.type %s,@function' % name)
    k.raw('%s:' % name)


def descriptor(name, nv, ns, acc):
    return '''.p2align 6
.amdhsa_kernel %s
  .amdhsa_next_free_vgpr %d
  .amdhsa_next_free_sgpr %d
  .amdhsa_accum_offset %d
  .amdhsa_group_segment_fixed_size 0
  .amdhsa_kernarg_size 96
  .amdhsa_user_sgpr_count 2
  .amdhsa_user_sgpr_kernarg_segment_ptr 1
  .amdhsa_system_sgpr_workgroup_id_x 1
  .amdhsa_float_denorm_mode_32 3
.end_amdhsa_kernel
''' % (name, nv, ns, acc)


WS = 's[4:7]'


def gen_mod():
    k = K()
    header(k, 'mod_kernel')
    k('s_cmp_ge_u32 s2, 240')
    k('s_cbranch_scc1 L_mod_end')
    srd(k, 4, 'ws')
    srd(k, 8, 'c')
    srd(k, 12, 'wmod')
    sdiv(k, 's16', 's2', 60, 240)
    k('s_mul_i32 s17, s16, 60')
    k('s_sub_u32 s17, s2, s17')
    k('v_and_b32 v1, 7, v0')
    k('v_lshrrev_b32 v2, 3, v0')
    k('v_mul_u32_u24 v3, 7680, v2')
    k('v_lshl_add_u32 v3, v1, 4, v3')
    k('v_lshlrev_b32 v4, 1, v2')
    k('s_mul_i32 s18, s16, %d' % (160 * 7680))
    k('s_lshl_b32 s19, s17, 7')
    k('s_add_u32 s18, s18, s19')
    k('s_mul_i32 s19, s16, 320')
    for it in range(5):
        k('buffer_load_ushort %s, v4, s[8:11], s19 offen offset:%d' % (V(8 + it), 64 * it))
    for it in range(5):
        k('buffer_load_dwordx4 %s, v3, s[12:15], s18 offen' % V(16 + 4 * it, 4))
        if it < 4:
            k('s_add_u32 s18, s18, %d' % (32 * 7680))
    for it in range(5):
        c = V(8 + it)
        k('v_lshlrev_b32 %s, 16, %s' % (c, c))
        k('v_mul_f32 v13, %s, %s' % (hex(f2u(-LOG2E)), c))
        k('v_exp_f32 v13, v13')
        k('v_add_f32 v13, 1.0, v13')
        k('v_rcp_f32 v13, v13')
        k('v_mul_f32 %s, %s, v13' % (c, c))
        rbf(k, c)
    for it in range(5):
        for d in range(4):
            unpack(k, 'v14', 'v15', V(16 + 4 * it + d))
            if it == 0:
                k('v_mul_f32 %s, %s, v14' % (V(40 + 2 * d), V(8)))
                k('v_mul_f32 %s, %s, v15' % (V(41 + 2 * d), V(8)))
            else:
                k('v_fmac_f32 %s, %s, v14' % (V(40 + 2 * d), V(8 + it)))
                k('v_fmac_f32 %s, %s, v15' % (V(41 + 2 * d), V(8 + it)))
    for n in range(4):
        k('v_permlane32_swap_b32 %s, %s' % (V(40 + n), V(44 + n)))
    for n in range(4):
        k('v_add_f32 %s, %s, %s' % (V(40 + n), V(40 + n), V(44 + n)))
    for n in range(2):
        k('v_permlane16_swap_b32 %s, %s' % (V(40 + n), V(42 + n)))
    for n in range(2):
        k('v_add_f32 %s, %s, %s' % (V(40 + n), V(40 + n), V(42 + n)))
    for n in range(2):
        k('v_add_f32_dpp %s, %s, %s row_ror:8 row_mask:0xf bank_mask:0xf' % (V(42 + n), V(40 + n), V(40 + n)))
    k('v_lshrrev_b32 v5, 6, v0')
    k('v_lshlrev_b32 v5, 8, v5')
    k('v_lshl_add_u32 v5, v1, 5, v5')
    k('v_bfe_u32 v6, v0, 4, 2')
    k('v_lshl_add_u32 v5, v6, 3, v5')
    k('ds_write_b64 v5, v[42:43]')
    k.drain()
    k('s_barrier')
    k('v_cmp_gt_u32 vcc, 64, v0')
    k('s_and_saveexec_b64 s[20:21], vcc')
    k('s_cbranch_execz L_mod_end')
    k('v_lshlrev_b32 v5, 2, v0')
    for n in range(4):
        k('ds_read_b32 %s, v5 offset:%d' % (V(44 + n), 256 * n))
    k('v_add_f32 v44, v44, v45')
    k('v_add_f32 v46, v46, v47')
    k('v_add_f32 v44, v44, v46')
    k('s_mul_i32 s18, s16, %d' % (3840 * 4))
    k('s_lshl_b32 s19, s17, 8')
    k('s_add_u32 s18, s18, s19')
    k('buffer_store_dword v44, v5, s[4:7], s18 offen offset:%d' % MODP)
    k.label('L_mod_end')
    k('s_endpgm')
    return k.text(), descriptor('mod_kernel', 64, 32, 64)


def mod_final_to_lds(k, first, second, nq, soff, ldsbase, tmp):
    rounds = -(-2 * nq // 256)
    for r in range(rounds):
        t, a, b = V(tmp), V(tmp + 1), V(tmp + 2)
        k('v_add_u32 %s, %d, v0' % (t, 256 * r))
        k('v_cmp_le_u32 vcc, %d, %s' % (nq, t))
        k('v_mov_b32 %s, %d' % (a, first * 2560))
        k('v_mov_b32 %s, %d' % (b, second * 2560 - nq * 16))
        k('v_cndmask_b32 %s, %s, %s, vcc' % (a, a, b))
        k('v_lshl_add_u32 %s, %s, 4, %s' % (a, t, a))
        k('v_mov_b32 %s, 0' % b)
        k('v_cndmask_b32 %s, %s, 1.0, vcc' % (b, b))
        k('v_cmp_gt_u32 vcc, %d, %s' % (2 * nq, t))
        k('s_and_saveexec_b64 s[30:31], vcc')
        lab = 'L_mf_%d_%d' % (k.nid, r)
        k('s_cbranch_execz %s' % lab)
        k('s_mov_b32 s28, %s' % (soff if soff else '0'))
        for p in range(4):
            k('buffer_load_dwordx4 %s, %s, s[4:7], s28 offen' % (V(tmp + 4 + 4 * p, 4), a))
            if p < 3:
                k('s_add_u32 s28, s28, %d' % (3840 * 4))
        for d in range(4):
            x = [V(tmp + 4 + 4 * p + d) for p in range(4)]
            k('v_add_f32 %s, %s, %s' % (x[0], x[0], x[1]))
            k('v_add_f32 %s, %s, %s' % (x[2], x[2], x[3]))
            k('v_add_f32 %s, %s, %s' % (x[0], x[0], x[2]))
            rbf(k, x[0])
            k('v_add_f32 %s, %s, %s' % (x[0], x[0], b))
            rbf(k, x[0])
        k('v_lshlrev_b32 %s, 4, %s' % (t, t))
        k('ds_write_b128 %s, %s offset:%d' % (t, V(tmp + 4, 4), ldsbase))
        k.label(lab)
        k.drain(force=True)
        k('s_mov_b64 exec, s[30:31]')


def stage40(k, nrows, pitch, srdname, rowexpr, soff):
    n = nrows * 40
    rounds = -(-n // 256)
    for it in range(rounds):
        c, row, cc, l = V(8), V(9), V(10), V(12 + it)
        k('v_add_u32 %s, %d, v0' % (c, 256 * it))
        vdiv(k, row, c, 40, 256 * rounds)
        k('v_mul_u32_u24 %s, 40, %s' % (cc, row))
        k('v_sub_u32 %s, %s, %s' % (cc, c, cc))
        k('v_mul_u32_u24 %s, %d, %s' % (l, pitch, row))
        k('v_lshl_add_u32 %s, %s, 4, %s' % (l, cc, l))
        rowexpr(k, row, V(11))
        k('v_lshl_add_u32 %s, %s, 4, %s' % (row, cc, row))
        if 256 * (it + 1) > n:
            k('v_cmp_le_u32 vcc, %d, %s' % (n, c))
            k('v_mov_b32 %s, 0x7fffffff' % V(11))
            k('v_cndmask_b32 %s, %s, %s, vcc' % (row, row, V(11)))
        k('buffer_load_dwordx4 %s, %s, %s, %s offen' % (V(20 + 4 * it, 4), row, srdname, soff))
    for it in range(rounds):
        k('ds_write_b128 %s, %s' % (V(12 + it), V(20 + 4 * it, 4)))
    k.drain()
    k('s_barrier')


def lane_parts(k):
    k('v_and_b32 v1, 63, v0')
    k('v_lshrrev_b32 v2, 6, v0')
    k('v_readfirstlane_b32 s16, v2')
    k('v_and_b32 v3, 3, v0')
    k('v_bfe_u32 v4, v0, 2, 2')
    k('v_bfe_u32 v5, v0, 4, 2')
    k('v_lshlrev_b32 v6, 4, v1')


def job_wqkv(k):
    P = 656
    srd(k, 8, 'wqkv')
    sdiv(k, 's18', 's17', 6, 240)
    k('s_mul_i32 s19, s18, 6')
    k('s_sub_u32 s19, s17, s19')
    k('s_and_b32 s20, s19, 1')
    k('s_lshr_b32 s19, s19, 1')
    k('s_mul_i32 s21, s18, %d' % (16 * 3840))
    k('s_mul_i32 s22, s19, 1280')
    k('s_add_u32 s21, s21, s22')
    k('s_mul_i32 s22, s20, 640')
    k('s_add_u32 s21, s21, s22')
    stage40(k, 16, P, 's[8:11]', lambda k, row, t: k('v_mul_u32_u24 %s, 3840, %s' % (row, row)), 's21')
    k('v_lshrrev_b32 v8, 1, v5')
    k('v_lshl_add_u32 v9, v8, 3, v4')
    k('v_mul_u32_u24 v9, %d, v9' % P)
    k('s_mul_i32 s22, s16, 160')
    k('v_add_u32 v9, s22, v9')
    k('v_and_b32 v10, 1, v5')
    k('v_mul_u32_u24 v10, 40, v10')
    k('v_lshlrev_b32 v11, 1, v3')
    k('v_and_b32 v11, 2, v11')
    k('v_lshrrev_b32 v12, 1, v3')
    k('v_or_b32 v11, v11, v12')
    k('s_cmp_eq_u32 s19, 2')
    k('s_cselect_b64 vcc, -1, 0')
    k('v_cndmask_b32 v11, v3, v11, vcc')
    k('v_lshl_add_u32 v10, v11, 3, v10')
    k('v_add_u32 v10, v9, v10')
    k('v_mul_u32_u24 v11, 40, v3')
    k('v_add3_u32 v11, v9, v11, 32')
    for jl in range(2):
        for rd in range(2):
            k('ds_read_b64_tr_b16 %s, v10 offset:%d' % (V(20 + 4 * jl + 2 * rd, 2), 80 * jl + 4 * rd * P))
    for rd in range(2):
        k('ds_read_b64_tr_b16 %s, v11 offset:%d' % (V(28 + 2 * rd, 2), 4 * rd * P))
    k('s_lshl_b32 s22, s20, 3')
    k('s_lshl_b32 s23, s16, 1')
    k('s_add_u32 s22, s22, s23')
    k('s_mul_i32 s22, s22, 163840')
    k('s_add_u32 s22, s22, %d' % WQKV)
    k('s_mul_i32 s23, s18, 3072')
    k('s_add_u32 s24, s22, s23')
    k('s_lshl_b32 s23, s18, 10')
    k('s_add_u32 s25, s22, s23')
    k('s_add_u32 s25, s25, 122880')
    k('s_sub_u32 s23, s19, 1')
    k('s_lshl_b32 s23, s23, 10')
    k('s_add_u32 s23, s24, s23')
    k('s_cmp_eq_u32 s19, 0')
    k('s_cselect_b32 s25, s25, s23')
    k('buffer_store_dwordx4 v[20:23], v6, s[4:7], s25 offen')
    k('s_add_u32 s25, s25, 163840')
    k('buffer_store_dwordx4 v[24:27], v6, s[4:7], s25 offen')
    k('s_add_u32 s23, s19, 2')
    k('s_cmp_ge_u32 s23, 3')
    k('s_cselect_b32 s26, 3, 0')
    k('s_sub_u32 s23, s23, s26')
    k('s_lshl_b32 s23, s23, 7')
    k('s_add_u32 s24, s24, s23')
    k('v_bfe_u32 v12, v0, 3, 1')
    k('v_mul_u32_u24 v12, 163840, v12')
    k('v_and_b32 v13, 7, v0')
    k('v_lshl_add_u32 v12, v13, 4, v12')
    k('v_lshl_add_u32 v12, v8, 9, v12')
    k('buffer_store_dwordx4 v[28:31], v12, s[4:7], s24 offen offset:2048')


def allreduce16(k, r, t):
    for m in ('quad_perm:[1,0,3,2]', 'quad_perm:[2,3,0,1]', 'row_half_mirror', 'row_mirror'):
        k('v_add_f32_dpp %s, %s, %s %s row_mask:0xf bank_mask:0xf' % (t, r, r, m))
        r, t = t, r


def job_ln(k):
    srd(k, 8, 'x')
    k('v_and_b32 v7, 15, v0')
    k('v_lshrrev_b32 v8, 4, v0')
    k('v_mul_u32_u24 v9, 1280, v8')
    k('v_lshl_add_u32 v9, v7, 4, v9')
    k('s_mul_i32 s18, s17, %d' % (16 * 1280))
    for it in range(5):
        k('buffer_load_dwordx4 %s, v9, s[8:11], s18 offen offset:%d' % (V(64 + 4 * it, 4), 256 * it))
    mod_final_to_lds(k, 0, 1, 160, None, 0, 32)
    k('s_barrier')
    X = 84
    for d in range(20):
        unpack(k, V(X + 2 * d), V(X + 2 * d + 1), V(64 + d))
    k('v_pk_add_f32 v[10:11], %s, %s' % (V(X, 2), V(X + 2, 2)))
    for d in range(2, 20):
        k('v_pk_add_f32 v[10:11], v[10:11], %s' % V(X + 2 * d, 2))
    k('v_add_f32 v10, v10, v11')
    allreduce16(k, 'v10', 'v11')
    k('v_mul_f32 v10, %s, v10' % hex(f2u(1.0 / 640)))
    for d in range(20):
        k('v_pk_add_f32 %s, %s, v[10:11] op_sel_hi:[1,0] neg_lo:[0,1] neg_hi:[0,1]' % (V(X + 2 * d, 2), V(X + 2 * d, 2)))
    k('v_pk_mul_f32 v[12:13], %s, %s' % (V(X, 2), V(X, 2)))
    for d in range(1, 20):
        k('v_pk_fma_f32 v[12:13], %s, %s, v[12:13]' % (V(X + 2 * d, 2), V(X + 2 * d, 2)))
    k('v_add_f32 v12, v12, v13')
    allreduce16(k, 'v12', 'v13')
    k('v_mov_b32 v13, %s' % hex(f2u(1e-5)))
    k('v_fmac_f32 v13, %s, v12' % hex(f2u(1.0 / 640)))
    k('v_rsq_f32 v12, v13')
    k('v_lshlrev_b32 v14, 5, v7')
    k('s_lshr_b32 s19, s17, 1')
    k('s_mul_i32 s19, s19, 40960')
    k('s_and_b32 s20, s17, 1')
    k('s_lshl_b32 s20, s20, 8')
    k('s_add_u32 s19, s19, s20')
    k('s_add_u32 s19, s19, %d' % H1)
    k('v_lshlrev_b32 v15, 9, v7')
    k('v_lshl_add_u32 v15, v8, 4, v15')
    for it in range(5):
        for h in range(2):
            k('ds_read_b128 %s, v14 offset:%d' % (V(32 + 4 * h, 4), 512 * it + 16 * h))
            k('ds_read_b128 %s, v14 offset:%d' % (V(40 + 4 * h, 4), 2560 + 512 * it + 16 * h))
        for d in range(4):
            x = V(X + 8 * it + 2 * d, 2)
            k('v_pk_mul_f32 %s, %s, v[12:13] op_sel_hi:[1,0]' % (x, x))
            k('v_pk_fma_f32 %s, %s, %s, %s' % (x, x, V(40 + 2 * d, 2), V(32 + 2 * d, 2)))
            k('v_cvt_pk_bf16_f32 %s, %s, %s' % (V(64 + 4 * it + d), V(X + 8 * it + 2 * d), V(X + 8 * it + 2 * d + 1)))
        k('buffer_store_dwordx4 %s, v15, s[4:7], s19 offen' % V(64 + 4 * it, 4))
        if it < 4:
            k('s_add_u32 s19, s19, 8192')


def job_wgu(k):
    P = 144
    CB = 160 * P
    k('s_and_b32 s18, s17, 1')
    k('s_lshl_b32 s19, s18, 3')
    k('s_add_u32 s19, s19, %d' % KA['wg'])
    k('s_load_dwordx2 s[8:9], s[0:1], s19')
    k('s_mov_b32 s10, %d' % SIZE['wg'])
    k('s_mov_b32 s11, 0x20000')
    k('s_lshr_b32 s19, s17, 1')
    sdiv(k, 's20', 's19', 24, 96)
    k('s_mul_i32 s21, s20, 24')
    k('s_sub_u32 s19, s19, s21')
    k('v_and_b32 v7, 7, v0')
    k('v_lshrrev_b32 v8, 3, v0')
    k('v_mul_u32_u24 v9, 3072, v8')
    k('v_lshl_add_u32 v9, v7, 4, v9')
    k('v_mul_u32_u24 v10, %d, v8' % P)
    k('v_lshl_add_u32 v10, v7, 4, v10')
    k('s_mul_i32 s21, s20, %d' % (160 * 3072))
    k('s_lshl_b32 s22, s19, 7')
    k('s_add_u32 s21, s21, s22')
    for it in range(5):
        k('buffer_load_dwordx4 %s, v9, s[8:11], s21 offen' % V(64 + 4 * it, 4))
        if it < 4:
            k('s_add_u32 s21, s21, %d' % (32 * 3072))
    k('s_mul_i32 s23, s20, 640')
    mod_final_to_lds(k, 3, 4, 40, 's23', CB, 32)
    for it in range(5):
        k('ds_write_b128 v10, %s offset:%d' % (V(64 + 4 * it, 4), 32 * P * it))
    k.drain()
    k('s_barrier')
    k('v_lshrrev_b32 v8, 1, v5')
    k('v_lshl_add_u32 v9, v8, 3, v4')
    k('v_mul_u32_u24 v9, %d, v9' % P)
    k('v_and_b32 v10, 1, v5')
    k('v_lshlrev_b32 v10, 5, v10')
    k('v_lshl_add_u32 v10, v3, 3, v10')
    k('s_lshr_b32 s21, s16, 1')
    k('s_and_b32 s22, s16, 1')
    k('s_mul_i32 s23, s21, %d' % (80 * P))
    k('s_lshl_b32 s24, s22, 6')
    k('s_add_u32 s23, s23, s24')
    k('v_add3_u32 v9, v9, v10, s23')
    k('s_mul_i32 s23, s21, 320')
    k('v_lshl_add_u32 v10, v8, 5, s23')
    k('s_lshl_b32 s23, s19, 1')
    k('s_add_u32 s23, s23, s22')
    sdiv(k, 's24', 's23', 3, 48)
    k('s_mul_i32 s25, s24, 3')
    k('s_sub_u32 s25, s23, s25')
    k('s_mul_i32 s26, s20, 10')
    k('s_mul_i32 s27, s21, 5')
    k('s_add_u32 s26, s26, s27')
    k('s_mul_i32 s24, s24, 245760')
    k('s_add_u32 s24, s24, %d' % WGU)
    k('s_lshl_b32 s27, s18, 10')
    k('s_add_u32 s24, s24, s27')
    k('s_lshl_b32 s27, s25, 11')
    k('s_cmp_eq_u32 s25, 2')
    k('s_cselect_b32 s27, 163840, s27')
    k('s_cselect_b32 s29, 1, 2')
    k('s_lshl_b32 s29, s29, 11')
    k('s_add_u32 s24, s24, s27')
    k('s_mul_i32 s27, s26, s29')
    k('s_add_u32 s24, s24, s27')
    k('v_mov_b32 v12, 0')
    k('v_mov_b32 v14, 0')
    k('v_mov_b32 v15, 0')
    k('v_mov_b32 v13, 0')
    for ks in range(5):
        W = 64 + 4 * ks
        for rd in range(2):
            k('ds_read_b64_tr_b16 %s, v9 offset:%d' % (V(W + 2 * rd, 2), (16 * ks + 4 * rd) * P))
        for h in range(2):
            k('ds_read_b128 %s, v10 offset:%d' % (V(32 + 4 * h, 4), CB + 64 * ks + 16 * h))
            k('ds_read_b128 %s, v10 offset:%d' % (V(40 + 4 * h, 4), CB + 640 + 64 * ks + 16 * h))
        for d in range(4):
            unpack(k, 'v16', 'v17', V(W + d))
            k('v_pk_fma_f32 v[14:15], v[16:17], %s, v[14:15]' % V(32 + 2 * d, 2))
            k('v_pk_mul_f32 v[16:17], v[16:17], %s' % V(40 + 2 * d, 2))
            k('v_cvt_pk_bf16_f32 %s, v16, v17' % V(W + d))
            unpack(k, 'v16', 'v17', V(W + d))
            k('v_pk_add_f32 v[12:13], v[12:13], v[16:17]')
        k('buffer_store_dwordx4 %s, v6, s[4:7], s24 offen' % V(W, 4))
        if ks < 4:
            k('s_add_u32 s24, s24, s29')
    k('v_add_f32 v12, v12, v13')
    k('v_add_f32 v14, v14, v15')
    k('v_permlane32_swap_b32 v12, v14')
    k('v_add_f32 v12, v12, v14')
    k('s_lshl_b32 s24, s20, 1')
    k('s_add_u32 s24, s24, s21')
    k('s_mul_i32 s24, s24, 48')
    k('s_add_u32 s24, s24, s23')
    k('s_lshl_b32 s24, s24, 1')
    k('s_add_u32 s24, s24, s18')
    k('s_lshl_b32 s24, s24, 8')
    k('s_add_u32 s24, s24, %d' % CSB)
    k('v_lshlrev_b32 v13, 2, v1')
    k('buffer_store_dword v12, v13, s[4:7], s24 offen')


def job_w16(k, which):
    P = 656
    nks = 12 if which == 'wd' else 5
    srd(k, 8, which)
    k('s_lshr_b32 s18, s17, 1')
    k('s_and_b32 s19, s17, 1')
    sdiv(k, 's20', 's18', nks, 48)
    k('s_mul_i32 s21, s20, %d' % nks)
    k('s_sub_u32 s21, s18, s21')
    k('s_mul_i32 s22, s19, 640')
    if which == 'wd':
        k('s_mul_i32 s23, s18, %d' % (32 * 1280))
        k('s_add_u32 s22, s22, s23')

        def rowexpr(k, row, t):
            k('v_mul_u32_u24 %s, 1280, %s' % (row, row))
    else:
        k('s_mul_i32 s23, s20, 160')
        k('s_mul_i32 s24, s21, 40')
        k('s_cmp_eq_u32 s21, 4')
        k('s_cselect_b32 s24, 16, s24')
        k('s_cselect_b64 s[26:27], -1, 0')
        k('s_add_u32 s23, s23, s24')
        k('s_mul_i32 s23, s23, 1280')
        k('s_add_u32 s22, s22, s23')

        def rowexpr(k, row, t):
            k('v_lshrrev_b32 v40, 4, %s' % row)
            k('v_and_b32 v41, 15, %s' % row)
            k('v_mad_u32_u24 v41, v40, 20, v41')
            k('v_lshlrev_b32 v40, 2, v40')
            k('v_bfe_u32 v42, %s, 2, 1' % row)
            k('v_lshl_add_u32 v40, v42, 1, v40')
            k('v_bfe_u32 v42, %s, 3, 1' % row)
            k('v_add_u32 v40, v40, v42')
            k('v_and_b32 v42, 3, %s' % row)
            k('v_mad_u32_u24 v40, v40, 20, v42')
            k('v_cndmask_b32 %s, v41, v40, s[26:27]' % row)
            k('v_mul_u32_u24 %s, 1280, %s' % (row, row))
    stage40(k, 32, P, 's[8:11]', rowexpr, 's22')
    k('v_lshrrev_b32 v8, 1, v5')
    k('v_lshl_add_u32 v8, v8, 4, v4')
    k('v_and_b32 v9, 1, v5')
    k('v_lshl_add_u32 v8, v9, 2, v8')
    k('v_mul_u32_u24 v8, %d, v8' % P)
    k('s_mul_i32 s23, s16, 160')
    k('v_add_u32 v8, s23, v8')
    k('v_lshl_add_u32 v9, v3, 4, v8')
    k('v_lshl_add_u32 v10, v3, 3, v8')
    for ct in range(5):
        for rd in range(2):
            if ct < 4:
                k('ds_read_b64_tr_b16 %s, v9 offset:%d' % (V(20 + 4 * ct + 2 * rd, 2), 8 * rd * P + 64 * (ct >> 1) + 8 * (ct & 1)))
            else:
                k('ds_read_b64_tr_b16 %s, v10 offset:%d' % (V(20 + 4 * ct + 2 * rd, 2), 8 * rd * P + 128))
    k('s_lshl_b32 s23, s19, 2')
    k('s_add_u32 s23, s23, s16')
    k('s_lshl_b32 s23, s23, 2')
    k('s_add_u32 s23, s23, s20')
    k('s_mul_i32 s23, s23, %d' % nks)
    k('s_add_u32 s23, s23, s21')
    k('s_mul_i32 s23, s23, 5120')
    k('s_add_u32 s23, s23, %d' % (WD if which == 'wd' else WO))
    for ct in range(4):
        k('buffer_store_dwordx4 %s, v6, s[4:7], s23 offen offset:%d' % (V(20 + 4 * ct, 4), 1024 * ct))
    k('s_add_u32 s23, s23, 4096')
    k('buffer_store_dwordx4 %s, v6, s[4:7], s23 offen' % V(36, 4))


def job_zero(k):
    k('v_lshlrev_b32 v8, 4, v0')
    k('s_lshl_b32 s18, s17, 12')
    k('s_add_u32 s18, s18, %d' % FLG)
    for d in range(4):
        k('v_mov_b32 %s, 0' % V(12 + d))
    k('buffer_store_dwordx4 v[12:15], v8, s[4:7], s18 offen')


PREP_JOBS = [('wqkv', 240, job_wqkv), ('ln', 128, job_ln), ('wgu', 192, job_wgu),
             ('wd', 96, lambda k: job_w16(k, 'wd')), ('wo', 40, lambda k: job_w16(k, 'wo')), ('zero', 8, job_zero)]
PREP_GRID = sum(n for _, n, _ in PREP_JOBS)


def gen_prep():
    k = K()
    header(k, 'prep_kernel')
    srd(k, 4, 'ws')
    lane_parts(k)
    k.drain(force=True)
    k('s_mov_b32 s17, s2')
    for name, n, _ in PREP_JOBS:
        k('s_cmp_lt_u32 s17, %d' % n)
        k('s_cbranch_scc1 L_job_%s' % name)
        k('s_sub_u32 s17, s17, %d' % n)
    k('s_endpgm')
    for name, n, fn in PREP_JOBS:
        k.label('L_job_%s' % name)
        fn(k)
        k('s_endpgm')
        k.vm, k.lg, k.sm, k.smem_out = [], [], set(), False
    return k.text(), descriptor('prep_kernel', 128, 48, 128)
```

```python
T, D, F, H, DH = 2048, 640, 1536, 32, 20

MODP = 0x0
FLG = 0x10000
FKV = FLG + 0x0000
FO = FLG + 0x2000
FX1 = FLG + 0x4000
FH = FLG + 0x6000
FLG_BYTES = 0x8000
STATS = 0x20000
CSB = 0x40000
PROF = 0x80000
H1 = 0x100000
WQKV = H1 + 2621440
KV = WQKV + 2621440
O = KV + 5242880
WO = O + 2621440
X1 = WO + 819200
WGU = X1 + 2621440
HH = WGU + 3932160
WD = HH + 6291456
WS_END = WD + 1966080
```

```python
import sys
from gen_prep import *
from gen_main import gen_main

def build(prof=False, stop=99):
    ref = open('cdna_kernels/%s.s.ref' % NAME).read().splitlines()
    head = [l for l in ref if l.startswith(';') and '@launch' not in l and 'Override launch' not in l and 'grid=ceil' not in l]
    t0, d0 = gen_mod()
    t1, d1 = gen_prep()
    t2, d2, k = gen_main(prof, stop)
    head += ['; @launch kernel=mod_kernel grid=(240,1,1) block=(256,1,1) lds=1024',
             '; @launch kernel=prep_kernel grid=(%d,1,1) block=(256,1,1) lds=24576' % PREP_GRID,
             '; @launch kernel=main_kernel grid=(256,1,1) block=(256,1,1) lds=163840']
    s = '\n'.join(head) + '\n.amdgcn_target "amdgcn-amd-amdhsa--gfx950"\n.text\n' + t0 + t1 + t2 + '.section .rodata,"a"\n' + d0 + d1 + d2
    sys.stderr.write('main: %d instr, %d nops, maxv %d maxa %d maxs %d\n' % (k.ninst, k.nops, k.maxv, k.maxa, k.maxs))
    return s

if __name__ == '__main__':
    out = sys.argv[1]
    prof = 'rt' if 'rt' in sys.argv[2:] else ('prof' in sys.argv[2:])
    stop = 99
    for a in sys.argv[2:]:
        if a.startswith('stop='): stop = int(a[5:])
    open(out, 'w').write(build(prof, stop))
```

```python
import re

REG_RE = re.compile(r'^(-|\|)?([vas])(?:(\d+)|\[(\d+):(\d+)\])\|?$')
TRANS = ('v_exp_f32', 'v_log_f32', 'v_rcp_f32', 'v_rsq_f32', 'v_sqrt_f32', 'v_sin_f32', 'v_cos_f32')


def regs_of(tok):
    tok = tok.strip()
    m = re.match(r'^(?:abs|neg)\((.*)\)$', tok)
    if m:
        tok = m.group(1)
    if tok == 'vcc':
        return {('s', 106), ('s', 107)}
    if tok == 'vcc_lo':
        return {('s', 106)}
    if tok == 'vcc_hi':
        return {('s', 107)}
    if tok == 'exec':
        return {('s', 126), ('s', 127)}
    if tok == 'exec_lo':
        return {('s', 126)}
    if tok == 'exec_hi':
        return {('s', 127)}
    if tok == 'm0':
        return {('s', 124)}
    m = REG_RE.match(tok)
    if not m:
        return set()
    f = m.group(2)
    if m.group(3) is not None:
        return {(f, int(m.group(3)))}
    return {(f, i) for i in range(int(m.group(4)), int(m.group(5)) + 1)}


def split_ops(rest):
    ops, depth, cur = [], 0, ''
    for ch in rest:
        if ch in '[(':
            depth += 1
        elif ch in '])':
            depth -= 1
        if ch == ',' and depth == 0:
            ops.append(cur.strip())
            cur = ''
        else:
            cur += ch
    last = cur.strip()
    mods = ''
    if last:
        parts = last.split(None, 1)
        ops.append(parts[0])
        if len(parts) > 1:
            mods = parts[1]
    return ops, mods


class Inst:
    __slots__ = ('text', 'mn', 'kind', 'rd', 'wr', 'states', 'passes', 'A', 'B', 'C', 'D', 'dpp', 'wide_store', 'lds_dma', 'sdata')

    def __init__(self, text):
        self.text = text
        parts = text.split(None, 1)
        mn = parts[0]
        self.mn = mn
        ops, mods = split_ops(parts[1]) if len(parts) > 1 else ([], '')
        R = [regs_of(o) for o in ops]
        self.rd, self.wr = set(), set()
        self.states = 1
        self.passes = 0
        self.A = self.B = self.C = self.D = set()
        self.dpp = False
        self.wide_store = False
        self.lds_dma = False
        self.sdata = set()
        allmods = ' ' + mods + ' '
        if mn.startswith('v_mfma'):
            self.kind = 'mfma'
            self.D, self.A, self.B, self.C = R[0], R[1], R[2], R[3]
            self.wr = set(R[0])
            self.rd = R[1] | R[2] | R[3]
            self.passes = 8 if '32x32' in mn else 4
        elif mn.startswith('v_'):
            self.kind = 'valu'
            base = re.sub(r'_(e32|e64|dpp|sdwa)$', '', mn)
            if base in TRANS:
                self.kind = 'trans'
            if base == 'v_nop':
                pass
            elif base.startswith('v_permlane') and 'swap' in base:
                self.wr = R[0] | R[1]
                self.rd = R[0] | R[1]
            elif base in ('v_add_co_u32', 'v_sub_co_u32', 'v_addc_co_u32', 'v_subb_co_u32'):
                self.wr = R[0] | R[1]
                for r in R[2:]:
                    self.rd |= r
            else:
                self.wr = set(R[0])
                for r in R[1:]:
                    self.rd |= r
                if base.startswith('v_fmac') or base.startswith('v_dot2c') or base.startswith('v_writelane'):
                    self.rd |= R[0]
            if mn.endswith('_dpp') or 'row_' in mods or 'quad_perm' in mods:
                self.dpp = True
                self.rd |= R[0]
        elif mn.startswith('ds_'):
            self.kind = 'ds'
            if mn.startswith('ds_read') or mn.startswith('ds_bpermute') or mn.startswith('ds_permute') or mn.startswith('ds_swizzle'):
                self.wr = set(R[0])
                for r in R[1:]:
                    self.rd |= r
            else:
                for r in R:
                    self.rd |= r
        elif mn.startswith('buffer_') or mn.startswith('global_'):
            self.kind = 'vmem'
            if mn in ('buffer_wbl2', 'buffer_inv'):
                pass
            elif ' lds ' in allmods or mn.startswith('global_load_lds'):
                self.lds_dma = True
                for r in R:
                    self.rd |= r
                self.rd |= {('s', 124)}
            elif '_load' in mn:
                self.wr = set(R[0])
                for r in R[1:]:
                    self.rd |= r
            elif mn.startswith('buffer_atomic') and ' sc0 ' in allmods:
                self.wr = set(R[0])
                for r in R:
                    self.rd |= r
            else:
                for r in R:
                    self.rd |= r
                if mn.endswith('x4') or mn.endswith('x3'):
                    self.wide_store = True
                    self.sdata = R[0] if mn.startswith('buffer_') else R[1]
        elif mn.startswith('s_load') or mn.startswith('s_buffer_load') or mn in ('s_memtime', 's_memrealtime'):
            self.kind = 'smem'
            self.wr = set(R[0])
            for r in R[1:]:
                self.rd |= r
        elif mn.startswith('s_'):
            self.kind = 'salu'
            if mn == 's_nop':
                self.states = int(ops[0], 0) + 1
            elif mn.startswith(('s_cmp', 's_cbranch', 's_branch', 's_waitcnt', 's_barrier', 's_endpgm', 's_sleep', 's_setprio', 's_bitcmp')):
                for r in R:
                    self.rd |= r
            else:
                if R:
                    self.wr = set(R[0])
                for r in R[1:]:
                    self.rd |= r
                if mn.startswith(('s_addk', 's_mulk', 's_bitset')):
                    self.rd |= R[0]
                if 'saveexec' in mn:
                    self.wr |= {('s', 126), ('s', 127)}
        else:
            raise ValueError('unknown instruction: ' + text)


def isv(rs):
    return {r for r in rs if r[0] != 's'}


def iss(rs):
    return {r for r in rs if r[0] == 's'}


def need_states(p, q):
    n = 0
    pv = p.kind in ('valu', 'trans')
    qv = q.kind in ('valu', 'trans')
    if pv:
        wv, ws = isv(p.wr), iss(p.wr)
        if q.kind == 'mfma' and wv & q.rd:
            n = max(n, 2)
        if qv and wv & q.rd:
            if q.mn.startswith('v_permlane') or q.dpp:
                n = max(n, 2)
            if q.mn.startswith(('v_readfirstlane', 'v_readlane')):
                n = max(n, 1)
            if p.kind == 'trans':
                n = max(n, 1)
            if 'sdwa' in p.mn:
                n = max(n, 1)
        if p.kind == 'trans' and q.kind in ('ds', 'vmem') and wv & q.rd:
            n = max(n, 1)
        if ws:
            if qv and ws & q.rd:
                n = max(n, 4 if q.mn.startswith(('v_readlane', 'v_writelane')) else 2)
            if q.kind == 'vmem' and ws & q.rd:
                n = max(n, 5)
            if q.kind in ('salu', 'smem') and ws & q.rd:
                n = max(n, 1)
    if p.kind == 'mfma':
        big = 12 if p.passes == 8 else 8
        if q.kind == 'mfma':
            if p.D & (q.A | q.B):
                n = max(n, big)
            if p.D & q.C and not (p.D == q.C and p.mn == q.mn):
                n = max(n, big - 2)
            if p.D & q.D and not (p.D == q.C and p.mn == q.mn):
                n = max(n, big - 2)
        elif qv or q.kind in ('ds', 'vmem'):
            if p.D & (q.rd | q.wr):
                n = max(n, big)
            if qv and p.C & q.wr:
                n = max(n, 7 if p.passes == 8 else 3)
    if p.kind == 'salu' and ('s', 124) in p.wr and q.lds_dma:
        n = max(n, 1)
    if p.wide_store and p.sdata & q.wr:
        n = max(n, 2)
    return n


class K:
    def __init__(self):
        self.out = []
        self.hist = []
        self.vm = []
        self.lg = []
        self.sm = set()
        self.smem_out = False
        self.nid = 0
        self.lg_batch = 1
        self.ninst = 0
        self.nops = 0
        self.maxv = -1
        self.maxa = -1
        self.maxs = -1

    def raw(self, text):
        self.out.append(text)

    def comment(self, text):
        self.out.append('    ; ' + text)

    def _emit(self, inst):
        need = 0
        dist = 0
        for p in reversed(self.hist):
            n = need_states(p, inst)
            if n - dist > need:
                need = n - dist
            dist += p.states
            if dist >= 20:
                break
        while need > 0:
            c = min(need, 16)
            nop = Inst('s_nop %d' % (c - 1))
            self.out.append('    ' + nop.text)
            self.hist.append(nop)
            self.nops += 1
            need -= c
        self.out.append('    ' + inst.text)
        self.hist.append(inst)
        if len(self.hist) > 64:
            self.hist = self.hist[-32:]
        self.ninst += 1
        for f, n in inst.rd | inst.wr:
            if f == 'v':
                self.maxv = max(self.maxv, n)
            elif f == 'a':
                self.maxa = max(self.maxa, n)
            elif n < 102:
                self.maxs = max(self.maxs, n)

    def _wait(self, vm=None, lg=None):
        parts = []
        if vm is not None and vm < len(self.vm):
            parts.append('vmcnt(%d)' % min(vm, 63))
            self.vm = self.vm[len(self.vm) - vm:] if vm > 0 else []
        if lg is not None and (lg < len(self.lg) or (lg == 0 and self.smem_out)):
            if self.smem_out:
                lg = 0
            parts.append('lgkmcnt(%d)' % min(lg, 15))
            self.lg = self.lg[len(self.lg) - lg:] if lg > 0 else []
            if lg == 0:
                self.sm = set()
                self.smem_out = False
        if parts:
            self._emit(Inst('s_waitcnt ' + ' '.join(parts)))

    def __call__(self, text, nodst=False):
        inst = Inst(text)
        if nodst:
            inst.wr = set()
        touched = inst.rd | inst.wr
        vm = lg = None
        for k, (_, d) in enumerate(self.vm):
            if d & touched:
                vm = len(self.vm) - 1 - k
        for k, (_, d) in enumerate(self.lg):
            if d & touched:
                lg = len(self.lg) - 1 - k
        if lg is not None and self.lg_batch > 1:
            lg = max(lg - (self.lg_batch - 1), 0)
        if self.sm & touched:
            lg = 0
        if vm is not None or lg is not None:
            self._wait(vm, lg)
        self._emit(inst)
        self.nid += 1
        if inst.kind == 'vmem':
            self.vm.append((self.nid, set(inst.wr)))
        elif inst.kind == 'ds':
            self.lg.append((self.nid, set(inst.wr)))
        elif inst.kind == 'smem':
            self.sm |= inst.wr
            self.smem_out = True
        return self.nid

    def wait_vm(self, tok):
        for k, (i, _) in enumerate(self.vm):
            if i == tok:
                self._wait(vm=len(self.vm) - 1 - k)
                return

    def wait_lg(self, tok):
        for k, (i, _) in enumerate(self.lg):
            if i == tok:
                self._wait(lg=len(self.lg) - 1 - k)
                return

    def drain(self, vm=True, lg=True, force=False):
        if force:
            parts = []
            if vm:
                parts.append('vmcnt(0)')
                self.vm = []
            if lg:
                parts.append('lgkmcnt(0)')
                self.lg = []
                self.sm = set()
                self.smem_out = False
            self._emit(Inst('s_waitcnt ' + ' '.join(parts)))
        else:
            self._wait(0 if vm else None, 0 if lg else None)

    def label(self, name, safe=False):
        self.out.append(name + ':')

    def pad(self, n):
        while n > 0:
            c = min(n, 16)
            self._emit(Inst('s_nop %d' % (c - 1)))
            n -= c

    def text(self):
        return '\n'.join(self.out) + '\n'


def vr(f, lo, n):
    return '%s%d' % (f, lo) if n == 1 else '%s[%d:%d]' % (f, lo, lo + n - 1)


def V(lo, n=1):
    return vr('v', lo, n)


def A(lo, n=1):
    return vr('a', lo, n)


def S(lo, n=1):
    return vr('s', lo, n)


def f2u(x):
    import struct
    return struct.unpack('<I', struct.pack('<f', x))[0]
```

```python
from asmgen import *
from layout import *
from gen_prep import srd, header, descriptor, unpack, rbf, LOG2E

WS, XS, OUTS = 's[4:7]', 's[8:11]', 's[12:15]'
sW, sI, sJ, sTH, sCB, sTB, sTE = 's16', 's17', 's18', 's19', 's20', 's21', 's22'
sFLAG, sTMO = 's64', 's65'
vL16, vLANE, vOFA = 'v255', 'v254', 'v253'
KVP = 5136
RING, RING0 = 152, 64
AUG = 152 * 1024
SCR = 158 * 1024
M32 = 'v_mfma_f32_32x32x16_bf16'
M16 = 'v_mfma_f32_16x16x32_bf16'


class G:
    prof = False
    stop = 99
    nstamp = 0
    wd_early = 36
    c_first = 12


def stamp(k):
    if G.prof:
        k.drain(vm=False)
        k('%s s[78:79]' % ('s_memrealtime' if G.prof == 'rt' else 's_memtime'))
        k.drain(vm=False)
        k('s_mov_b32 %s, s78' % S(80 + G.nstamp))
        G.nstamp += 1


def set_flag(k, base, sidx):
    k('s_lshl_b32 s24, %s, 2' % sidx)
    k('s_add_u32 s24, s24, %d' % base)
    k('v_mov_b32 v252, %s' % sFLAG)
    k.drain(lg=False, force=True)
    k('s_mov_b64 exec, 1')
    k('buffer_store_dword v252, off, %s, s24 sc1' % WS)
    k('s_mov_b64 exec, -1')


def poll(k, vaddr, soff, name):
    k('s_mov_b32 %s, 0x20000' % sTMO)
    k.label('L_poll_%s' % name)
    k('buffer_load_dword v252, %s, %s, %s offen sc1' % (vaddr, WS, soff))
    k.drain(lg=False, force=True)
    k('v_cmp_ne_u32 vcc, %s, v252' % sFLAG)
    k('s_cbranch_vccz L_pdone_%s' % name)
    k('s_sub_u32 %s, %s, 1' % (sTMO, sTMO))
    k('s_cbranch_scc0 L_poll_%s' % name)
    k.label('L_pdone_%s' % name)


class Fill:
    def __init__(self, k):
        self.k, self.q = k, []

    def add(self, x):
        self.q.append(x)

    def run(self, n):
        while n > 0 and self.q:
            x = self.q.pop(0)
            if callable(x):
                x()
            elif isinstance(x, list):
                for y in x:
                    self.last = self.k(y)
            else:
                self.last = self.k(x)
            n -= 1

    def add0(self, fn):
        prev = self.q.pop()

        def both():
            for y in (prev if isinstance(prev, list) else [prev]):
                self.last = self.k(y)
            fn()
        self.q.append(both)

    def flush(self):
        self.run(1 << 30)


def pf_lines(k, soff, n):
    k('v_lshlrev_b32 v249, 7, %s' % vLANE)
    if n < 64:
        k('v_min_u32 v249, %d, v249' % ((n - 1) * 128))
    k('buffer_load_dword v248, v249, %s, %s offen sc1' % (WS, soff), nodst=True)
    if n > 64:
        k('v_add_u32 v249, 8192, v249')
        if n < 128:
            k('v_min_u32 v249, %d, v249' % ((n - 1) * 128))
        k('buffer_load_dword v248, v249, %s, %s offen sc1' % (WS, soff), nodst=True)


def pf_share(k, sbase, sidx, n):
    k('s_mul_i32 s24, %s, %d' % (sidx, n * 128))
    k('s_add_u32 s24, s24, %s' % sbase)
    pf_lines(k, 's24', n)


def pf_wtile(k, sbase, n):
    k('s_and_b32 s25, %s, 15' % sTB)
    pf_share(k, sbase, 's25', n)


def dma_group(k, sm0, sglob):
    k('s_mov_b32 m0, %s' % sm0)
    t = None
    for b in range(4):
        t = k('buffer_load_dwordx4 %s, %s, %s offen offset:%d lds' % (vL16, WS, sglob, 1024 * b))
    return t


def setup(k):
    k('s_cmp_ge_u32 s2, 256')
    k('s_cbranch_scc1 L_main_end')
    srd(k, 4, 'ws')
    srd(k, 8, 'x')
    srd(k, 12, 'out')
    k('v_lshrrev_b32 v1, 6, v0')
    k('v_and_b32 %s, 63, v0' % vLANE)
    k('v_readfirstlane_b32 %s, v1' % sW)
    k('v_lshlrev_b32 %s, 4, %s' % (vL16, vLANE))
    k('s_bfe_u32 s24, s2, 0x20001')
    k('s_lshl_b32 s24, s24, 2')
    k('s_lshr_b32 s25, s2, 6')
    k('s_add_u32 %s, s24, s25' % sI)
    k('s_and_b32 %s, s2, 1' % sTH)
    k('s_bfe_u32 %s, s2, 0x30003' % sCB)
    k('s_lshl_b32 s24, %s, 3' % sTH)
    k('s_add_u32 %s, s24, %s' % (sJ, sCB))
    k('s_lshl_b32 s24, %s, 2' % sI)
    k('s_add_u32 %s, s24, %s' % (sTB, sW))
    k('s_lshl_b32 s25, %s, 1' % sTH)
    k('s_add_u32 %s, s24, s25' % sTE)
    k('s_mov_b32 %s, 1' % sFLAG)
    k('v_lshrrev_b32 v1, 4, %s' % vLANE)
    k('v_and_b32 v2, 15, %s' % vLANE)
    k('v_lshlrev_b32 v2, 4, v2')
    k('v_lshl_add_u32 %s, v1, 9, v2' % vOFA)
    k.drain(force=True)


QF = 224


def phase_c(k):
    k.comment('---- phase C: QKV')
    aK, aV, aT, aQ, WB = 0, 16, 32, 48, 64
    k('s_mul_i32 s69, %s, 163840' % sJ)
    k('s_add_u32 s69, s69, %d' % WQKV)
    k('s_mul_i32 s68, %s, 40960' % sTB)
    k('s_add_u32 s68, s68, %d' % H1)
    k('s_mul_i32 s66, %s, 3072' % sW)
    k('s_add_u32 s67, s69, s66')
    k('v_add_u32 v100, 61440, %s' % vL16)
    k('v_add_u32 v101, 122880, %s' % vL16)
    vq = Fill(k)
    tok = {}

    def mark(n):
        return lambda: tok.__setitem__(n, vq.last)

    for n in range(10):
        for b in range(3):
            pre = ['s_mov_b32 m0, s66'] if b == 0 else []
            post = ['s_add_u32 s66, s66, 12288', 's_add_u32 s67, s67, 12288'] if b == 1 and False else []
            vq.add(pre + ['buffer_load_dwordx4 %s, %s, s67 offen offset:%d lds' % (vL16, WS, 1024 * b)])
        vq.add0(mark(n))
        for b in range(4):
            pre = ['s_add_u32 s66, s66, 12288', 's_add_u32 s67, s67, 12288'] if b == 0 else []
            pre += ['s_add_u32 s68, s68, 4096'] if b == 0 and n > 0 else []
            vq.add(pre + ['buffer_load_dwordx4 %s, %s, %s, s68 offen offset:%d' % (A(16 * n + 4 * b, 4), vL16, WS, 1024 * b)])
    for b in range(10):
        pre = []
        if b == 0:
            pre = ['s_mul_i32 s66, %s, 10240' % sW, 's_add_u32 s66, s66, 122880', 's_add_u32 s67, s69, s66', 's_mov_b32 m0, s66']
        elif b & 3 == 0:
            pre = ['s_add_u32 s66, s66, 4096', 's_add_u32 s67, s67, 4096', 's_mov_b32 m0, s66']
        vq.add(pre + ['buffer_load_dwordx4 %s, %s, s67 offen offset:%d lds' % (vL16, WS, 1024 * (b & 3))])
    vq.add0(mark(10))

    def need(n):
        while n not in tok:
            vq.run(1)
        k.wait_vm(tok[n])
        k('s_barrier')

    def rd1(ks, t):
        if t == 0 and ks & 3 == 0:
            need(ks >> 2)
        base, off = (vL16, ks * 3072) if ks < 20 else ('v100', (ks - 20) * 3072)
        k('ds_read_b128 %s, %s offset:%d' % (V(WB + 12 * (ks % 3) + 4 * t, 4), base, off + 1024 * t))

    def rd2(ks):
        if ks == 0:
            need(10)
        k('ds_read_b128 %s, v101 offset:%d' % (V(104 + 4 * (ks % 6), 4), 1024 * ks))

    vq.run(G.c_first)
    for ks in range(2):
        for t in range(3):
            rd1(ks, t)
    for ks in range(40):
        for t in range(3):
            acc = V(16 * t, 16)
            k('%s %s, %s, %s, %s' % (M32, acc, V(WB + 12 * (ks % 3) + 4 * t, 4), A(4 * ks, 4), acc if ks else '0'))
            if t < 2 and not (t == 1 and ks & 3 == 3):
                vq.run(1)
            if ks + 2 < 40:
                rd1(ks + 2, t)
            elif ks == 38 or t < 2:
                rd2((ks - 38) * 3 + t)
    stamp(k)
    PK = 128
    f = Fill(k)
    f.add('s_lshl_b32 s24, %s, 4' % sTB)
    f.add('s_add_u32 s27, s24, %s' % sJ)
    f.add('s_mul_i32 s25, s27, 5120')
    f.add('s_add_u32 s25, s25, %d' % KV)
    f.add('s_add_u32 s26, s25, 4096')
    f.add('v_and_b32 v102, 31, %s' % vLANE)
    f.add('v_lshlrev_b32 v102, 5, v102')
    f.add('v_lshrrev_b32 v103, 5, %s' % vLANE)
    f.add('v_lshl_add_u32 v102, v103, 4, v102')
    for b in range(5):
        for d in range(4):
            f.add('v_cvt_pk_bf16_f32 %s, %s, %s' % (V(PK + 4 * b + d), V(8 * b + 2 * d), V(8 * b + 2 * d + 1)))
        va = 'v102' if b in (2, 3) else vL16
        if b < 4:
            f.add('buffer_store_dwordx4 %s, %s, %s, s25 offen offset:%d sc1' % (V(PK + 4 * b, 4), va, WS, 1024 * b))
        else:
            f.add('buffer_store_dwordx4 %s, %s, %s, s26 offen sc1' % (V(PK + 4 * b, 4), va, WS))
    f.add('s_add_u32 s24, %s, 8' % sW)
    f.add('s_mul_i32 s24, s24, %d' % KVP)
    f.add('v_add_u32 v148, s24, %s' % vL16)
    f.add('v_add_u32 v149, s24, v102')
    f.add('s_barrier')
    for b in range(5):
        f.add('ds_write_b128 %s, %s offset:%d' % ('v149' if b in (2, 3) else 'v148', V(PK + 4 * b, 4), 1024 * b))
    f.add('v_min_u32 v150, 11, %s' % vLANE)
    f.add('v_mul_u32_u24 v150, %d, v150' % KVP)
    f.add('v_mov_b32 v152, 0x3f803f80')
    f.add('v_mov_b32 v153, 0x3f803f80')
    f.add('ds_write_b64 v150, v[152:153] offset:5120')
    c = (DH ** -0.5) * LOG2E
    f.add('s_mov_b32 s28, %s' % hex(f2u(c)))
    f.add('s_mov_b32 s29, s28')
    f.add('v_pk_mul_f32 v[40:41], v[40:41], s[28:29]')
    f.add('v_pk_mul_f32 v[42:43], v[42:43], s[28:29]')
    f.add('v_cvt_pk_bf16_f32 v40, v40, v41')
    f.add('v_cvt_pk_bf16_f32 v41, v42, v43')
    f.add('v_cmp_gt_u32 vcc, 32, %s' % vLANE)
    for d in range(2):
        f.add('v_cndmask_b32 %s, 0, %s, vcc' % (V(QF + 4 + d), V(40 + d)))
        f.add('v_cndmask_b32 %s, %s, 0, vcc' % (V(QF + 12 + d), V(40 + d)))
        f.add('v_mov_b32 %s, 0' % V(QF + 6 + d))
        f.add('v_mov_b32 %s, 0' % V(QF + 14 + d))
    acc = V(aQ, 16)
    for ks in range(40):
        k('%s %s, %s, %s, %s' % (M32, acc, V(104 + 4 * (ks % 6), 4), A(4 * ks, 4), acc if ks else '0'))
        if ks + 5 < 40:
            rd2(ks + 5)
        f.run(4)
    f.flush()
    set_flag(k, FKV, 's27')
    for d in range(8):
        k('v_pk_mul_f32 %s, %s, s[28:29]' % (V(aQ + 2 * d, 2), V(aQ + 2 * d, 2)))
        k('v_cvt_pk_bf16_f32 %s, %s, %s' % (V(QF + (d & 3) + 8 * (d >> 2)), V(aQ + 2 * d), V(aQ + 2 * d + 1)))
    stamp(k)


def ring_ops(g0, g1):
    ops = []
    for g in range(g0, g1, 4):
        pre = ['s_add_u32 s70, %s, %d' % (sW, g)]
        if g + 3 >= g1:
            pre += ['s_min_u32 s70, s70, %d' % (g1 - 1)]
        pre += ['s_lshl_b32 s70, s70, 12', 's_add_u32 s71, s70, s23']
        lo, hi = g + RING0 // 4, min(g + 3, g1 - 1) + RING0 // 4
        R4 = RING // 4
        if lo // R4 == hi // R4:
            d = (RING0 // 4 - (lo // R4) * R4) * 4096
            pre += ['s_add_u32 m0, s70, %d' % d if d >= 0 else 's_sub_u32 m0, s70, %d' % -d]
        else:
            assert lo // R4 == 0
            pre += ['s_add_u32 s70, s70, %d' % (RING0 * 1024), 's_cmp_ge_u32 s70, %d' % (RING * 1024),
                    's_cselect_b32 s72, %d, 0' % (RING * 1024), 's_sub_u32 m0, s70, s72']
        for b in range(4):
            ops.append((pre if b == 0 else []) + ['buffer_load_dwordx4 %s, %s, s71 offen offset:%d lds' % (vL16, WS, 1024 * b)])
    return ops


def w16_base(k, sdst, base, nks):
    k('s_lshl_b32 %s, %s, 2' % (sdst, sCB))
    k('s_add_u32 %s, %s, %s' % (sdst, sdst, sW))
    k('s_mul_i32 %s, %s, %d' % (sdst, sdst, nks * 5120))
    k('s_add_u32 %s, %s, %d' % (sdst, sdst, base))


def w16_ops(sreg, n0, n1, areg):
    ops = []
    for n in range(n0, n1):
        pre = ['s_add_u32 %s, %s, 4096' % (sreg, sreg)] if n & 3 == 0 and n > 0 else []
        ops.append(pre + ['buffer_load_dwordx4 %s, %s, %s, %s offen offset:%d' % (areg(n), vL16, WS, sreg, 1024 * (n & 3))])
    return ops


def run_ops(k, ops):
    t = None
    for op in ops:
        for y in op:
            t = k(y)
    return t


def wd_reg(n):
    if n < 20:
        return A(160 + 4 * n, 4)
    if n < 36:
        return V(180 + 4 * (n - 20), 4)
    return A(4 * (n - 36), 4)


def wo_reg(n):
    return A(4 * n, 4)


def phase_d(k):
    k.comment('---- phase D: attention')
    w16_base(k, 's73', WO, 5)
    run_ops(k, w16_ops('s73', 0, 25, wo_reg))
    k('s_lshl_b32 s24, %s, 2' % sI)
    k('s_lshl_b32 s25, %s, 1' % sW)
    k('s_add_u32 s24, s24, s25')
    k('v_mov_b32 v200, 0x7fffffff')
    k('s_cmp_lt_u32 s24, 8')
    k('s_cbranch_scc1 L_kv_nopoll')
    k('s_sub_u32 s24, s24, 8')
    k('s_lshl_b32 s24, s24, 4')
    k('s_add_u32 s24, s24, %s' % sJ)
    k('s_lshl_b32 s25, s24, 2')
    k('s_add_u32 s25, s25, %d' % FKV)
    k('v_and_b32 v200, 1, %s' % vLANE)
    k('v_lshlrev_b32 v200, 6, v200')
    poll(k, 'v200', 's25', 'kv')
    k('v_mov_b32 v200, %s' % vL16)
    k.label('L_kv_nopoll')
    k('s_mul_i32 s25, s24, 5120')
    k('s_add_u32 s25, s25, %d' % KV)
    for sl in range(2):
        for b in range(5):
            if b == 4:
                k('s_add_u32 s25, s25, 4096')
            k('buffer_load_dwordx4 %s, v200, %s, s25 offen offset:%d sc1' % (A(160 + 20 * sl + 4 * b, 4), WS, 1024 * (b & 3)))
        if sl == 0:
            k('s_add_u32 s25, s25, %d' % (16 * 5120 - 4096))
    stamp(k)
    for r in range(16):
        kl = 8 * (r >> 2) + (r & 3)
        k('s_mov_b32 %s, 0x%x' % (S(32 + 2 * r), (0xffffffff << kl) & 0xffffffff))
        k('s_mov_b32 %s, 0x%x' % (S(33 + 2 * r), (0xffffffff << (kl + 4)) & 0xffffffff))
    PM = 208
    k('v_mov_b32 v201, 0xffff')
    k('v_mov_b32 v202, 0xffff0000')
    for p in range(8):
        k('v_cndmask_b32 %s, 0, v201, %s' % (V(PM + p), S(32 + 4 * p, 2)))
        k('v_cndmask_b32 v203, 0, v202, %s' % S(34 + 4 * p, 2))
        k('v_or_b32 %s, %s, v203' % (V(PM + p), V(PM + p)))
    vK, vST, vB0, VA = 'v216', 'v217', 'v218', 220
    k('s_mul_i32 s24, %s, %d' % (sW, KVP))
    k('v_add_u32 %s, s24, %s' % (vK, vL16))
    k('v_and_b32 v201, 3, %s' % vLANE)
    k('v_bfe_u32 v202, %s, 2, 2' % vLANE)
    k('v_lshrrev_b32 v203, 5, %s' % vLANE)
    k('v_lshl_add_u32 v202, v203, 2, v202')
    k('v_cmp_eq_u32 vcc, 0, v201')
    k('v_cndmask_b32 %s, 0, 16, vcc' % vST)
    k('v_mov_b32 v204, 5120')
    k('v_mov_b32 v205, 4104')
    k('v_cndmask_b32 %s, v204, v205, vcc' % vB0)
    k('v_and_b32 v203, 16, %s' % vLANE)
    k('v_cmp_eq_u32 vcc, 0, v203')
    k('v_cndmask_b32 %s, %s, 32, vcc' % (vST, vST))
    k('v_lshlrev_b32 v201, 3, v201')
    k('v_add_u32 v201, 2048, v201')
    k('v_cndmask_b32 %s, %s, v201, vcc' % (vB0, vB0))
    k('v_mad_u32_u24 %s, %s, v202, %s' % (vB0, vST, vB0))
    k('v_add_u32 %s, s24, %s' % (vB0, vB0))
    k('s_sub_i32 s27, 8, %s' % sTB)
    k('s_max_i32 s27, s27, 0')
    k('s_lshl_b32 s24, %s, 1' % sW)
    k('s_mul_i32 s24, s24, %d' % KVP)
    k('v_add_u32 v200, s24, %s' % vL16)
    for sl in range(2):
        for b in range(5):
            k('ds_write_b128 v200, %s offset:%d' % (A(160 + 20 * sl + 4 * b, 4), KVP * sl + 1024 * b))
    k.drain(vm=False)
    k('s_barrier')
    k('s_mul_i32 s23, %s, 245760' % sJ)
    k('s_add_u32 s23, s23, %d' % WGU)
    stamp(k)
    k('s_mul_i32 s28, %s, 40960' % sTB)
    k('s_add_u32 s28, s28, %d' % O)
    k('s_lshl_b32 s24, %s, 9' % sJ)
    k('s_add_u32 s29, s28, s24')
    k('s_add_u32 s29, s29, 32768')
    k('s_lshl_b32 s24, %s, 11' % sJ)
    k('s_add_u32 s28, s28, s24')
    KB, VB, PB, OA, MX, OT = 144, 168, 184, 144 + 0, 204, 240
    order = [8, 0, 1, 2, 3, 4, 5, 6, 7]
    bg = ring_ops(0, (RING - RING0) // 4)
    for X in range(2):
        Q1, Q2 = V(QF + 8 * X, 4), V(QF + 8 * X + 4, 4)
        for n, (kk, rd) in enumerate(((0, 0), (0, 1), (1, 0), (1, 1))):
            k('v_mad_u32_u24 %s, %s, %d, %s' % (V(VA + n), vST, 16 * kk + 8 * rd + 32 * X, vB0))

        def rdk(n):
            u = order[n]
            k('ds_read_b128 %s, %s offset:%d' % (V(KB + 8 * (n % 3), 4), vK, u * KVP + 1024 * X))
            k('ds_read_b128 %s, %s offset:%d' % (V(KB + 8 * (n % 3) + 4, 4), vK, u * KVP + 4096))

        f = Fill(k)

        def post(u):
            def fix():
                lab = 'L_fix_%d_%d' % (X, u)
                for r in range(1):
                    k('v_mov_b32 v206, %s' % V(16 * u))
                k('s_cmp_gt_u32 s27, %d' % u)
                k('s_cbranch_scc0 %s' % lab)
                for r in range(16):
                    k('v_mov_b32 %s, 0xf149f2ca' % V(16 * u + r))
                k.label(lab)
            f.add(fix)
            if u == 0:
                for r in range(16):
                    f.add('v_cndmask_b32 %s, %s, %s, %s' % (V(r), V(r), V(128 + r), S(32 + 2 * r, 2)))
            for p in range(8):
                m = V(MX + (p & 1))
                if u == 0 and p < 2:
                    f.add('v_max_f32 %s, %s, %s' % (m, V(2 * p), V(2 * p + 1)))
                else:
                    f.add('v_max3_f32 %s, %s, %s, %s' % (m, m, V(16 * u + 2 * p), V(16 * u + 2 * p + 1)))

        rdk(0)
        rdk(1)
        for n in range(9):
            u = order[n]
            sreg = V(16 * u, 16)
            k('%s %s, %s, %s, 0' % (M32, sreg, V(KB + 8 * (n % 3), 4), Q1))
            f.run(5)
            k('%s %s, %s, %s, %s' % (M32, sreg, V(KB + 8 * (n % 3) + 4, 4), Q2, sreg))
            if n + 2 < 9:
                rdk(n + 2)
            if n >= 2:
                post(order[n - 1])
            f.run(4)
        post(order[8])

        pv = [(1, 0), (1, 1), (2, 0), (2, 1), (3, 0), (3, 1), (4, 0), (4, 1), (5, 0), (5, 1), (6, 0), (6, 1), (7, 0), (7, 1),
              (8, 0), (8, 1), (0, 0), (0, 1)]

        def rdv(n):
            u, kk = pv[n]
            for rd in range(2):
                k('ds_read_b64_tr_b16 %s, %s offset:%d' % (V(VB + 4 * (n % 4) + 2 * rd, 2), V(VA + 2 * kk + rd), u * KVP))

        rdv(0)
        rdv(1)
        f.flush()
        k('v_max_f32 v204, v204, v205')
        k('v_mov_b32 v205, v204')
        k('v_permlane32_swap_b32 v204, v205')
        k('v_max_f32 v204, v204, v205')
        oacc = V(OA, 16)
        pend = []
        nv = [0]

        def issue():
            if pend:
                n, preg = pend.pop(0)
                k('%s %s, %s, %s, %s' % (M32, oacc, V(VB + 4 * (n % 4), 4), preg, oacc if n else '0'))
                if n + 2 < 18:
                    rdv(n + 2)

        for ti, u in enumerate([1, 2, 3, 4, 5, 6, 7, 0]):
            P = PB + 8 * (ti & 1)
            if u == 0:
                P = 128
            for h in range(2):
                for p in range(4 * h, 4 * h + 4):
                    s2 = V(16 * u + 2 * p, 2)
                    k('v_pk_add_f32 %s, %s, v[204:205] op_sel_hi:[1,0] neg_lo:[0,1] neg_hi:[0,1]' % (s2, s2))
                issue()
                if bg:
                    run_ops(k, [bg.pop(0)])
                for r in range(8 * h, 8 * h + 8):
                    k('v_exp_f32 %s, %s' % (V(16 * u + r), V(16 * u + r)))
                for p in range(4 * h, 4 * h + 4):
                    k('v_cvt_pk_bf16_f32 %s, %s, %s' % (V(P + p), V(16 * u + 2 * p), V(16 * u + 2 * p + 1)))
                if u != 0:
                    pend.append((2 * ti + h, V(P + 4 * h, 4)))
        for p in range(8):
            k('v_and_b32 %s, %s, %s' % (V(136 + p), V(128 + p), V(PM + p)))
            if p == 3:
                issue()
        pend += [(14, V(136, 4)), (15, V(140, 4))]
        issue()
        for p in range(8):
            k('v_xor_b32 %s, %s, %s' % (V(128 + p), V(128 + p), V(136 + p)))
            if p == 3:
                issue()
        pend += [(16, V(128, 4)), (17, V(132, 4))]
        while pend:
            issue()
        k('v_rcp_f32 v204, %s' % V(OA + 12))
        for p in range(6):
            k('v_pk_mul_f32 %s, %s, v[204:205] op_sel_hi:[1,0]' % (V(OA + 2 * p, 2), V(OA + 2 * p, 2)))
        for p in range(4):
            k('v_cvt_pk_bf16_f32 %s, %s, %s' % (V(244 + p), V(OA + 2 * p), V(OA + 2 * p + 1)))
        k('buffer_store_dwordx4 v[244:247], %s, %s, s28 offen offset:%d sc1' % (vL16, WS, 1024 * X))
        for p in range(2):
            k('v_cvt_pk_bf16_f32 %s, %s, %s' % (V(OT + 2 * X + p), V(OA + 8 + 2 * p), V(OA + 9 + 2 * p)))
    assert not bg
    k('s_mov_b32 exec_hi, 0')
    k('buffer_store_dwordx4 %s, %s, %s, s29 offen sc1' % (V(OT, 4), vL16, WS))
    k('s_mov_b64 exec, -1')
    stamp(k)
    k('s_lshl_b32 s27, %s, 4' % sTB)
    k('s_add_u32 s27, s27, %s' % sJ)
    set_flag(k, FO, 's27')
    stamp(k)


def colconst_issue(k, which, tmp):
    k('s_mul_i32 s24, %s, 320' % sCB)
    k('s_add_u32 s24, s24, %d' % (MODP + which * 2560))
    k('v_min_u32 %s, 304, %s' % (V(tmp + 16), vL16))
    for p in range(4):
        k('buffer_load_dwordx4 %s, %s, %s, s24 offen' % (V(tmp + 4 * p, 4), V(tmp + 16), WS))
        if p < 3:
            k('s_add_u32 s24, s24, %d' % (3840 * 4))


def colconst_finish(k, tmp, dst):
    for h in range(2):
        x = [V(tmp + 4 * p + 2 * h, 2) for p in range(4)]
        k('v_pk_add_f32 %s, %s, %s' % (x[0], x[0], x[1]))
        k('v_pk_add_f32 %s, %s, %s' % (x[2], x[2], x[3]))
        k('v_pk_add_f32 %s, %s, %s' % (x[0], x[0], x[2]))
    for d in range(4):
        rbf(k, V(tmp + d))
    k('s_mul_i32 s24, %s, 320' % sW)
    k('s_add_u32 s24, s24, %d' % SCR)
    k('v_add_u32 %s, s24, %s' % (V(tmp + 16), V(tmp + 16)))
    k('ds_write_b128 %s, %s' % (V(tmp + 16), V(tmp, 4)))
    k('v_lshrrev_b32 %s, 4, %s' % (V(tmp + 4), vLANE))
    k('v_lshl_add_u32 %s, %s, 5, s24' % (V(tmp + 5), V(tmp + 4)))
    k('v_lshl_add_u32 %s, %s, 4, s24' % (V(tmp + 6), V(tmp + 4)))
    k.drain(vm=False)
    for ct in range(4):
        k('ds_read_b128 %s, %s offset:%d' % (V(dst + 4 * ct, 4), V(tmp + 5), 128 * (ct >> 1) + 16 * (ct & 1)))
    k('ds_read_b128 %s, %s offset:256' % (V(dst + 16, 4), V(tmp + 6)))


def row_offsets(k, va, vb):
    k('v_and_b32 %s, 15, %s' % (va, vLANE))
    k('v_mul_u32_u24 %s, 1280, %s' % (va, va))
    k('v_lshrrev_b32 %s, 4, %s' % (vb, vLANE))
    k('v_lshl_add_u32 %s, %s, 3, %s' % (vb, vb, va))
    k('v_and_b32 v251, 48, %s' % vLANE)
    k('v_add_u32 %s, v251, %s' % (va, va))
    k('s_lshl_b32 s26, %s, 1' % sTE)
    k('s_add_u32 s26, s26, %s' % sW)
    k('s_mul_i32 s26, s26, %d' % (16 * 1280))
    k('s_mul_i32 s24, %s, 160' % sCB)
    k('s_add_u32 s26, s26, s24')


def poll8(k, base, name):
    k('s_lshl_b32 s25, %s, 2' % sTE)
    k('s_add_u32 s25, s25, %s' % sW)
    k('s_lshl_b32 s25, s25, 4')
    k('s_add_u32 s25, s25, %d' % base)
    k('v_and_b32 v250, 3, %s' % vLANE)
    k('v_lshlrev_b32 v250, 2, v250')
    k('v_bfe_u32 v251, %s, 2, 1' % vLANE)
    k('v_lshl_add_u32 v250, v251, 6, v250')
    poll(k, 'v250', 's25', name)


def ksplit_gemm(k, nks, wreg, actreg, act_ops, first, nbuf):
    vq = Fill(k)
    issued = [0]

    def push(s):
        ops = act_ops(s)
        ops[0] = ['s_add_u32 s74, %s, %d' % (sW, s + 1), 's_and_b32 s74, s74, 3'] + ops[0]
        for op in ops:
            vq.add(op)

    for s in range(4):
        push(s)
    vq.run(first)
    nissued = first
    f = Fill(k)
    for s in range(4):
        acc = 20 * (s & 1)
        n = 0
        for ks in range(nks):
            while nissued <= s * nks + ks:
                vq.run(1)
                nissued += 1
            for ct in range(5):
                a = V(acc + 4 * ct, 4)
                k('%s %s, %s, %s, %s' % (M16, a, wreg(5 * ks + ct), actreg(s, ks), a if ks else '0'))
                n += 1
                if ct == 0 and vq.q:
                    vq.run(1)
                    nissued += 1
                elif n > 4:
                    f.run(2 if nks == 5 else 1)
        f.flush()
        if s < 3:
            f.add('s_add_u32 s27, %s, %d' % (sW, s + 1))
            f.add('s_and_b32 s27, s27, 3')
            f.add('s_mul_i32 s27, s27, 15360')
            f.add('v_add_u32 v60, s27, %s' % vL16)
            for ct in range(5):
                f.add('ds_write_b128 v60, %s offset:%d' % (V(acc + 4 * ct, 4), 5120 * s + 1024 * ct))
        if s == 2:
            f.add('s_mul_i32 s27, %s, 15360' % sW)
            f.add('v_add_u32 v61, s27, %s' % vL16)
            f.add(lambda: k.drain(vm=False))
            f.add('s_barrier')
            R = [40, 160, 0]
            for q in range(3):
                for ct in range(5):
                    f.add('ds_read_b128 %s, v61 offset:%d' % (V(R[q] + 4 * ct, 4), 5120 * q + 1024 * ct))
            for q in (1, 2):
                for p in range(10):
                    f.add('v_pk_add_f32 %s, %s, %s' % (V(40 + 2 * p, 2), V(40 + 2 * p, 2), V(R[q] + 2 * p, 2)))
    for p in range(10):
        k('v_pk_add_f32 %s, %s, %s' % (V(20 + 2 * p, 2), V(20 + 2 * p, 2), V(40 + 2 * p, 2)))


def xreduce(k, r, t):
    k('v_mov_b32 %s, %s' % (t, r))
    k('v_permlane16_swap_b32 %s, %s' % (r, t))
    k('v_add_f32 %s, %s, %s' % (r, r, t))
    k('v_mov_b32 %s, %s' % (t, r))
    k('v_permlane32_swap_b32 %s, %s' % (r, t))
    k('v_add_f32 %s, %s, %s' % (r, r, t))


def phase_e(k):
    k.comment('---- phase E: O projection')
    XR, GA = 180, 192
    colconst_issue(k, 2, 212)
    row_offsets(k, 'v230', 'v231')
    k('buffer_load_dwordx4 %s, v230, %s, s26 offen' % (V(XR, 4), XS))
    k('buffer_load_dwordx4 %s, v230, %s, s26 offen offset:64' % (V(XR + 4, 4), XS))
    k('buffer_load_dwordx2 %s, v231, %s, s26 offen offset:128' % (V(XR + 8, 2), XS))
    aug_issue(k)
    w16_base(k, 's73', WD, 12)
    run_ops(k, w16_ops('s73', 0, 20, wd_reg))
    colconst_finish(k, 212, GA)
    aug_finish(k)
    k('s_mul_i32 s75, %s, 40960' % sTE)
    k('s_add_u32 s75, s75, %d' % O)
    k('s_lshl_b32 s24, %s, 11' % sW)
    k('s_add_u32 s76, s75, s24')
    k('s_add_u32 s76, s76, 32768')
    k('s_lshl_b32 s24, %s, 13' % sW)
    k('s_add_u32 s75, s75, s24')
    k('s_barrier')
    poll8(k, FO, 'o')
    stamp(k)

    def ereg(s, ks):
        return A(100 + 4 * ((5 * s + ks) % 15), 4)

    def act_ops(s):
        pre = ['s_lshr_b32 s24, s74, 1', 's_mul_i32 s24, s24, 40960', 's_and_b32 s25, s74, 1', 's_lshl_b32 s25, s25, 8',
               's_add_u32 s24, s24, s25', 's_add_u32 s77, s24, s76', 's_add_u32 s74, s24, s75']
        ops = []
        for ks in range(4):
            if ks == 2:
                pre = ['s_add_u32 s74, s74, 4096']
            ops.append(pre + ['buffer_load_dwordx4 %s, %s, %s, s74 offen offset:%d sc1' % (ereg(s, ks), vOFA, WS, 2048 * (ks & 1))])
            pre = []
        ops.append(['buffer_load_dwordx4 %s, %s, %s, s77 offen sc1' % (ereg(s, 4), vOFA, WS)])
        return ops

    ksplit_gemm(k, 5, wo_reg, ereg, act_ops, 10, 4)
    stamp(k)
    for d in range(10):
        unpack(k, 'v0', 'v1', V(XR + d))
        k('v_pk_fma_f32 %s, %s, %s, v[0:1]' % (V(20 + 2 * d, 2), V(20 + 2 * d, 2), V(GA + 2 * d, 2)))
        k('v_cvt_pk_bf16_f32 %s, %s, %s' % (V(XR + d), V(20 + 2 * d), V(21 + 2 * d)))
    k('s_lshr_b32 s24, %s, 1' % sW)
    k('s_add_u32 s24, s24, %s' % sTE)
    k('s_mul_i32 s24, s24, 40960')
    k('s_mul_i32 s25, %s, 5120' % sCB)
    k('s_add_u32 s24, s24, s25')
    k('s_and_b32 s25, %s, 1' % sW)
    k('s_lshl_b32 s25, s25, 8')
    k('s_add_u32 s24, s24, s25')
    k('s_add_u32 s24, s24, %d' % X1)
    k('s_add_u32 s25, s24, 4096')
    k('buffer_store_dwordx4 %s, %s, %s, s24 offen sc1' % (V(XR, 4), vOFA, WS))
    k('buffer_store_dwordx4 %s, %s, %s, s24 offen offset:2048 sc1' % (V(XR + 4, 4), vOFA, WS))
    k('v_and_b32 v2, 15, %s' % vLANE)
    k('v_lshlrev_b32 v2, 4, v2')
    k('v_lshrrev_b32 v3, 5, %s' % vLANE)
    k('v_lshl_add_u32 v2, v3, 9, v2')
    k('v_bfe_u32 v3, %s, 4, 1' % vLANE)
    k('v_lshl_add_u32 v2, v3, 3, v2')
    k('buffer_store_dwordx2 %s, v2, %s, s25 offen sc1' % (V(XR + 8, 2), WS))
    k('v_pk_add_f32 v[4:5], v[20:21], v[22:23]')
    for d in range(2, 10):
        k('v_pk_add_f32 v[4:5], v[4:5], %s' % V(20 + 2 * d, 2))
    k('v_add_f32 v4, v4, v5')
    xreduce(k, 'v4', 'v5')
    k('v_mul_f32 v6, %s, v4' % hex(f2u(1.0 / 80)))
    for d in range(10):
        x = V(20 + 2 * d, 2)
        k('v_pk_add_f32 %s, %s, v[6:7] op_sel_hi:[1,0] neg_lo:[0,1] neg_hi:[0,1]' % (x, x))
        if d == 0:
            k('v_pk_mul_f32 v[8:9], %s, %s' % (x, x))
        else:
            k('v_pk_fma_f32 v[8:9], %s, %s, v[8:9]' % (x, x))
    k('v_add_f32 v5, v8, v9')
    xreduce(k, 'v5', 'v6')
    k('s_lshl_b32 s27, %s, 1' % sTE)
    k('s_add_u32 s27, s27, %s' % sW)
    k('s_lshl_b32 s27, s27, 3')
    k('s_add_u32 s27, s27, %s' % sCB)
    k('s_lshl_b32 s24, s27, 7')
    k('s_add_u32 s24, s24, %d' % STATS)
    k('v_lshlrev_b32 v2, 3, %s' % vLANE)
    k('s_mov_b64 exec, 0xffff')
    k('buffer_store_dwordx2 v[4:5], v2, %s, s24 offen sc1' % WS)
    k('s_mov_b64 exec, -1')
    for d in range(10):
        k('v_accvgpr_write_b32 %s, %s' % (A(240 + d), V(XR + d)))
    set_flag(k, FX1, 's27')
    stamp(k)


def split2(k, hi, lo, x):
    k('v_cvt_pk_bf16_f32 %s, %s, %s' % (hi, x, x))
    k('v_and_b32 %s, 0xffff0000, %s' % (lo, hi))
    k('v_sub_f32 %s, %s, %s' % (x, x, lo))
    k('v_cvt_pk_bf16_f32 %s, %s, %s' % (lo, x, x))


AT = 64


def aug_issue(k):
    k('s_min_u32 s24, %s, 2' % sW)
    k('s_mul_i32 s25, %s, 3' % sJ)
    k('s_add_u32 s25, s25, s24')
    k('s_lshl_b32 s25, s25, 9')
    k('s_add_u32 s25, s25, %d' % CSB)
    k('v_and_b32 v84, 31, %s' % vLANE)
    k('v_lshrrev_b32 v85, 5, %s' % vLANE)
    k('v_lshlrev_b32 v86, 2, v84')
    k('v_lshl_add_u32 v86, v85, 8, v86')
    for p in range(8):
        k('buffer_load_dword %s, v86, %s, s25 offen' % (V(AT + 2 * p), WS))
        k('buffer_load_dword %s, v86, %s, s25 offen offset:128' % (V(AT + 1 + 2 * p), WS))
        if p < 7:
            k('s_add_u32 s25, s25, %d' % (48 * 512))


def aug_finish(k):
    for st in (4, 2, 1):
        for p in range(st):
            k('v_pk_add_f32 %s, %s, %s' % (V(AT + 2 * p, 2), V(AT + 2 * p, 2), V(AT + 2 * (p + st), 2)))
    split2(k, 'v66', 'v67', 'v64')
    split2(k, 'v68', 'v69', 'v65')
    k('s_mov_b32 s26, 0xffff')
    k('v_bfi_b32 v72, s26, v66, v67')
    k('v_bfi_b32 v73, s26, v66, v68')
    k('v_bfi_b32 v74, s26, v69, v68')
    for d in range(5):
        k('v_mov_b32 %s, 0' % V(75 + d))
    k('s_min_u32 s24, %s, 2' % sW)
    k('s_lshl_b32 s24, s24, 11')
    k('s_add_u32 s24, s24, %d' % AUG)
    k('v_lshlrev_b32 v86, 4, v84')
    k('v_lshl_add_u32 v86, v85, 10, v86')
    k('v_add_u32 v86, s24, v86')
    k('ds_write_b128 v86, v[72:75]')
    k('ds_write_b128 v86, v[76:79] offset:512')


def phase_f(k):
    k.comment('---- phase F: gate/up')
    WB, BA, CK = 96, 144, 148
    k('s_barrier')
    run_ops(k, ring_ops((RING - RING0) // 4, RING // 4))
    run_ops(k, w16_ops('s73', 20, G.wd_early, wd_reg))
    k('v_lshrrev_b32 v161, 5, %s' % vLANE)
    k('v_add_u32 v154, 65536, %s' % vL16)
    k('v_add_u32 v155, 131072, %s' % vL16)
    k('s_lshl_b32 s25, %s, 6' % sTB)
    k('s_add_u32 s25, s25, %d' % FX1)
    k('v_and_b32 v250, 15, %s' % vLANE)
    k('v_lshlrev_b32 v250, 2, v250')
    poll(k, 'v250', 's25', 'x1')
    stamp(k)
    k('s_mul_i32 s68, %s, 40960' % sTB)
    k('s_add_u32 s68, s68, %d' % X1)
    vq, va = Fill(k), Fill(k)
    for ks in range(40):
        pre = ['s_add_u32 s68, s68, 4096'] if ks & 3 == 0 and ks else []
        va.add(pre + ['buffer_load_dwordx4 %s, %s, %s, s68 offen offset:%d sc1' % (A(4 * ks, 4), vL16, WS, 1024 * (ks & 3))])
    va.run(10)
    k('s_barrier')
    k('s_lshl_b32 s69, %s, 11' % sTB)
    k('s_add_u32 s69, s69, %d' % STATS)
    k('v_and_b32 v160, 15, %s' % vLANE)
    k('v_lshlrev_b32 v160, 3, v160')
    k('v_bfe_u32 v162, %s, 4, 1' % vLANE)
    k('v_lshl_add_u32 v160, v162, 10, v160')
    k('v_lshl_add_u32 v160, v161, 9, v160')
    for c in range(4):
        vq.add('buffer_load_dwordx2 %s, v160, %s, s69 offen offset:%d sc1' % (V(164 + 2 * c, 2), WS, 128 * c))

    def stats():
        k('v_add_f32 v172, v164, v166')
        k('v_add_f32 v173, v168, v170')
        k('v_add_f32 v172, v172, v173')
        k('v_mov_b32 v173, v172')
        k('v_permlane32_swap_b32 v172, v173')
        k('v_add_f32 v172, v172, v173')
        k('v_mul_f32 v172, %s, v172' % hex(f2u(-1.0 / 640)))
        k('v_add_f32 v173, v165, v167')
        k('v_add_f32 v174, v169, v171')
        k('v_add_f32 v173, v173, v174')
        k('v_mov_b32 v175, 0')
        for c in range(4):
            k('v_fma_f32 v174, %s, v176, v172' % V(164 + 2 * c))
            k('v_fmac_f32 v175, v174, v174')
        k('v_fmac_f32 v173, 0x42a00000, v175')
        k('v_mov_b32 v174, v173')
        k('v_permlane32_swap_b32 v173, v174')
        k('v_add_f32 v173, v173, v174')
        k('v_mov_b32 %s, %s' % (V(CK + 4), hex(f2u(1e-5))))
        k('v_fmac_f32 %s, %s, v173' % (V(CK + 4), hex(f2u(1.0 / 640))))
        k('v_rsq_f32 v174, %s' % V(CK + 4))
        k('v_mul_f32 v173, %s, v174' % V(CK + 4))
        cc = -2.0 * 0.7978845608028654 * LOG2E
        k('v_mul_f32 %s, %s, v174' % (V(CK), hex(f2u(cc))))
        k('v_mul_f32 v175, v174, v174')
        k('v_mul_f32 v175, %s, v175' % hex(f2u(0.044715)))
        k('v_mul_f32 %s, %s, v175' % (V(CK + 2), V(CK)))
        split2(k, 'v164', 'v165', 'v172')
        split2(k, 'v166', 'v167', 'v173')
        k('s_mov_b32 s26, 0xffff')
        k('v_mov_b32 %s, v164' % V(BA))
        k('v_bfi_b32 %s, s26, v165, v166' % V(BA + 1))
        k('v_bfi_b32 %s, s26, v166, v167' % V(BA + 2))
        k('v_mov_b32 %s, 0' % V(BA + 3))

    k('v_mov_b32 v176, %s' % hex(f2u(1.0 / 80)))

    def ldsaddr(byte):
        base = [vL16, 'v154', 'v155'][byte >> 16]
        return base, byte & 0xffff

    steps = []
    for ks in range(41):
        for t in range(4):
            byte = ((RING0 + 4 * ks + t) % RING) * 1024 if ks < 40 else AUG + 1024 * t
            steps.append((t, byte, A(4 * ks, 4) if ks < 40 else V(BA, 4), ks == 0, 4 * ks + t if ks < 40 else None))
    n1 = len(steps)
    for ks in range(41):
        for t in range(2):
            byte = ((RING0 + 160 + 2 * ks + t) % RING) * 1024 if ks < 40 else AUG + 1024 * (4 + t)
            steps.append((4 + t, byte, A(4 * ks, 4) if ks < 40 else V(BA, 4), ks == 0, 160 + 2 * ks + t if ks < 40 else None))
    AH, NB = 8, 12
    refill = {32: (38, 46), 64: (46, 54), 96: (54, 60)}
    toks = []
    vis = [RING]

    def rd(n):
        blk = steps[n][4]
        if blk is not None and blk >= vis[0]:
            while not toks:
                vq.run(1)
            t, g1 = toks.pop(0)
            k.wait_vm(t)
            k('s_barrier')
            vis[0] = 4 * g1
        base, off = ldsaddr(steps[n][1])
        k('ds_read_b128 %s, %s offset:%d' % (V(WB + 4 * (n % NB), 4), base, off))

    f = Fill(k)
    k('s_mul_i32 s28, %s, 98304' % sTB)
    k('s_mul_i32 s24, %s, 6144' % sJ)
    k('s_add_u32 s28, s28, s24')
    k('s_add_u32 s28, s28, %d' % HH)
    k('s_add_u32 s29, s28, 4096')

    def gelu(p, add):
        g, u, T0 = 32 * p, 32 * p + 16, 160
        for e in range(8):
            a, b, t = V(g + 2 * e, 2), V(u + 2 * e, 2), V(T0 + 2 * (e & 3), 2)
            t0, t1 = V(T0 + 2 * (e & 3)), V(T0 + 2 * (e & 3) + 1)
            add('v_pk_mul_f32 %s, %s, %s' % (t, a, a))
            add('v_pk_fma_f32 %s, %s, %s, %s op_sel_hi:[1,0,0]' % (t, t, V(CK + 2, 2), V(CK, 2)))
            add('v_pk_mul_f32 %s, %s, %s' % (t, t, a))
            add('v_exp_f32 %s, %s' % (t0, t0))
            add('v_exp_f32 %s, %s' % (t1, t1))
            add('v_pk_mul_f32 %s, %s, %s' % (b, a, b))
            add('v_pk_fma_f32 %s, %s, %s, %s op_sel_hi:[1,0,0]' % (t, t, V(CK + 4, 2), V(CK + 4, 2)))
            add('v_rcp_f32 %s, %s' % (t0, t0))
            add('v_rcp_f32 %s, %s' % (t1, t1))
            add('s_nop 0')
            add('v_pk_mul_f32 %s, %s, %s' % (b, b, t))
            add('v_cvt_pk_bf16_f32 %s, %s, %s' % (V(g + e), V(u + 2 * e), V(u + 2 * e + 1)))
            if e & 3 == 3:
                blk = 2 * p + (e >> 2)
                add('buffer_store_dwordx4 %s, %s, %s, %s offen offset:%d sc1' %
                    (V(g + (e & 4), 4), vL16, WS, 's28' if blk < 4 else 's29', 1024 * (blk & 3)))

    for n in range(AH):
        rd(n)
    wd_ops = w16_ops('s73', G.wd_early, 60, wd_reg)
    nwd = G.wd_early
    for n, (t, byte, B, first, blk) in enumerate(steps):
        if n in refill:
            k('s_barrier')
            g0, g1 = refill[n]
            for op in ring_ops(g0, g1):
                vq.add(op)
            vq.add0(lambda g1=g1: toks.append((vq.last, g1)))
        if n == 136:
            stats()
        if n == n1:
            stamp(k)
        acc = V(16 * t, 16)
        k('%s %s, %s, %s, %s' % (M32, acc, V(WB + 4 * (n % NB), 4), B, '0' if first else acc))
        if n + AH < len(steps):
            rd(n + AH)
        if n & 3 == 1:
            va.run(1)
        if n < n1 and n & 3 == 3 or (not va.q and n & 3 == 1):
            vq.run(1)
        if n % 3 == 2 and not vq.q and wd_ops and (nwd < 36 or (n >= n1 and nwd - 36 < (n - n1) // 2)):
            run_ops(k, [wd_ops.pop(0)])
            nwd += 1
        if n == n1 + 2:
            gelu(0, f.add)
            gelu(1, f.add)
        f.run(3)
    run_ops(k, wd_ops)
    f.flush()
    stamp(k)
    gelu(2, k)
    stamp(k)
    k('s_lshl_b32 s27, %s, 4' % sTB)
    k('s_add_u32 s27, s27, %s' % sJ)
    set_flag(k, FH, 's27')
    stamp(k)


def phase_g(k):
    k.comment('---- phase G: down projection')
    GB = 64
    colconst_issue(k, 5, 84)
    colconst_finish(k, 84, GB)
    k('s_mul_i32 s75, %s, 98304' % sTE)
    k('s_mul_i32 s24, %s, 24576' % sW)
    k('s_add_u32 s75, s75, s24')
    k('s_add_u32 s75, s75, %d' % HH)
    k('s_barrier')
    poll8(k, FH, 'h')
    stamp(k)

    def areg(s, ks):
        return A(96 + 4 * ((12 * s + ks) % 16), 4)

    def act_ops(s):
        pre = ['s_lshr_b32 s24, s74, 1', 's_mul_i32 s24, s24, 98304', 's_and_b32 s74, s74, 1', 's_lshl_b32 s74, s74, 8',
               's_add_u32 s74, s74, s24', 's_add_u32 s74, s74, s75']
        ops = []
        for ks in range(12):
            ops.append(pre + ['buffer_load_dwordx4 %s, %s, %s, s74 offen offset:%d sc1' % (areg(s, ks), vOFA, WS, 2048 * (ks & 1))])
            pre = ['s_add_u32 s74, s74, 4096'] if ks & 1 else []
        return ops

    ksplit_gemm(k, 12, wd_reg, areg, act_ops, 10, 3)
    stamp(k)
    row_offsets(k, 'v60', 'v61')
    for d in range(10):
        k('v_accvgpr_read_b32 v2, %s' % A(240 + d))
        unpack(k, 'v0', 'v1', 'v2')
        k('v_pk_fma_f32 %s, %s, %s, v[0:1]' % (V(20 + 2 * d, 2), V(20 + 2 * d, 2), V(GB + 2 * d, 2)))
        k('v_cvt_pk_bf16_f32 %s, %s, %s' % (V(40 + d), V(20 + 2 * d), V(21 + 2 * d)))
    k('buffer_store_dwordx4 v[40:43], v60, %s, s26 offen' % OUTS)
    k('buffer_store_dwordx4 v[44:47], v60, %s, s26 offen offset:64' % OUTS)
    k('buffer_store_dwordx2 v[48:49], v61, %s, s26 offen offset:128' % OUTS)


def gen_main(prof=False, stop=99):
    G.prof, G.stop, G.nstamp = prof, stop, 0
    k = K()
    header(k, 'main_kernel')
    if prof:
        k('s_memrealtime s[100:101]')
    setup(k)
    stamp(k)
    for n, ph in enumerate((phase_c, phase_d, phase_e, phase_f, phase_g)):
        if n < stop:
            ph(k)
    if prof:
        k.drain(force=True)
        stamp(k)
        k('s_lshl_b32 s24, s2, 2')
        k('s_add_u32 s24, s24, %s' % sW)
        k('s_lshl_b32 s24, s24, 8')
        k('s_add_u32 s24, s24, %d' % PROF)
        k('s_mov_b64 exec, 1')
        k('s_memrealtime s[30:31]')
        k('v_mov_b32 v0, s100')
        k('v_mov_b32 v1, s101')
        k('buffer_store_dwordx2 v[0:1], off, %s, s24 offset:%d' % (WS, 8 * 30))
        k('v_mov_b32 v2, s30')
        k('v_mov_b32 v3, s31')
        k('buffer_store_dwordx2 v[2:3], off, %s, s24 offset:%d' % (WS, 8 * 31))
        for n in range(G.nstamp):
            k('v_mov_b32 v0, %s' % S(80 + n))
            k('v_mov_b32 v1, 0')
            k('buffer_store_dwordx2 v[0:1], off, %s, s24 offset:%d' % (WS, 8 * n))
    k.label('L_main_end')
    k('s_endpgm')
    assert G.nstamp <= 20, G.nstamp
    return k.text(), descriptor('main_kernel', 512, 102, 256), k
```

```python
import sys
from gen_prep import *
from gen_main import gen_main
import gen

def touch(name, keys):
    k = K()
    header(k, name)
    k('s_cmp_ge_u32 s2, 256')
    k('s_cbranch_scc1 L_%s_end' % name)
    KA['bx'] = 24; SIZE['bx'] = T*D*2
    k('s_lshl_b32 s3, s2, 12')
    k('v_lshl_add_u32 v1, v0, 4, s3')
    r = 4
    for i, key in enumerate(keys):
        srd(k, 4 + 4*i, key)
    d = 4
    for i, key in enumerate(keys):
        n = -(-SIZE[key] // (1 << 20))
        k('s_mov_b32 s60, 0')
        for q in range(n):
            k('buffer_load_dwordx4 %s, v1, %s, s60 offen' % (V(d, 4), S(4 + 4*i, 4)))
            d += 4
            k('s_add_u32 s60, s60, 0x100000')
    k.drain()
    k.label('L_%s_end' % name)
    k('s_endpgm')
    return k.text(), descriptor(name, 128, 64, 128)

base = gen.build()
def variant(fn, pre):
    s = base
    t1, d1 = touch('touch_kernel', ['x','wqkv','wo','bx','wg','wu','wd','wmod'])
    t2, d2 = touch('empty_kernel', [])
    lines = ''.join('; @launch kernel=%s grid=(256,1,1) block=(256,1,1) lds=0\n' % p for p in pre)
    s = s.replace('; @launch kernel=mod_kernel', lines + '; @launch kernel=mod_kernel')
    tt = (t1 if 'touch_kernel' in pre else '') + (t2 if 'empty_kernel' in pre else '')
    dd = (d1 if 'touch_kernel' in pre else '') + (d2 if 'empty_kernel' in pre else '')
    s = s.replace('.section .rodata,"a"\n', tt + '.section .rodata,"a"\n' + dd)
    open(fn, 'w').write(s)
variant('e0.s', [])
variant('e1.s', ['empty_kernel'])
variant('e2.s', ['touch_kernel'])
variant('e3.s', ['touch_kernel', 'touch_kernel'])
variant('e4.s', ['empty_kernel']*4)
```

```python
from asmgen import *
from layout import *
from gen_prep import KA, SIZE, sdiv, vdiv, unpack, rbf, LOG2E
import gen_main as M
from gen_main import WS, XS, sW, sI, sJ, sTH, sCB, sTB, sFLAG, vL16, vLANE, stamp, G

WM, CS_, WQ, BS, C2, DB = 's[32:35]', 's[36:39]', 's[40:43]', 's[44:47]', 's[48:51]', 's[52:55]'
BIG = 0x7fffffff
L_RED, L_ST, L_U3, L_B, L_C, L_K = 0, 1024, 2048, 128 * 1024, 99 * 1024, 120 * 1024
RB, RC, RCS = 160, 180, 200
PRE = 10
P40, PGU = 656, 144


def mk(k, sb, lo, size):
    k('s_mov_b32 %s, %s' % (S(sb), S(lo)))
    k('s_mov_b32 %s, %s' % (S(sb + 1), S(lo + 1)))
    k('s_mov_b32 %s, %d' % (S(sb + 2), size))
    k('s_mov_b32 %s, 0x20000' % S(sb + 3))


def flag_store(k, soff):
    k('v_mov_b32 v252, %s' % sFLAG)
    k('s_mov_b64 exec, 1')
    k('buffer_store_dword v252, off, %s, %s sc1' % (WS, soff))
    k('s_mov_b64 exec, -1')


def chunk40(k, it, rounds, row, cc):
    k('v_add_u32 v160, %d, v0' % (256 * it))
    vdiv(k, row, 'v160', 40, 256 * rounds)
    k('v_mul_u32_u24 %s, 40, %s' % (cc, row))
    k('v_sub_u32 %s, v160, %s' % (cc, cc))


def w16_unit(k, su, swo, sk, sks, sch):
    k('s_lshr_b32 s24, %s, 1' % su)
    k('s_and_b32 %s, %s, 1' % (sch, su))
    sdiv(k, 's25', 's24', 12, 48)
    sdiv(k, 's26', 's24', 5, 48)
    k('s_cmp_eq_u32 %s, 1' % swo)
    k('s_cselect_b32 %s, s26, s25' % sk)
    k('s_cselect_b32 s25, 5, 12')
    k('s_mul_i32 s25, %s, s25' % sk)
    k('s_sub_u32 %s, s24, s25' % sks)


def w16_dest(k, sd, swo, sk, sks, sch):
    k('s_lshl_b32 s24, %s, 2' % sch)
    k('s_add_u32 s24, s24, %s' % sW)
    k('s_lshl_b32 s24, s24, 2')
    k('s_add_u32 s24, s24, %s' % sk)
    k('s_cmp_eq_u32 %s, 1' % swo)
    k('s_cselect_b32 s25, 5, 12')
    k('s_mov_b32 s26, %d' % WD)
    k('s_cselect_b32 s26, %d, s26' % WO)
    k('s_mul_i32 s24, s24, s25')
    k('s_add_u32 s24, s24, %s' % sks)
    k('s_mul_i32 s24, s24, 5120')
    k('s_add_u32 %s, s24, s26' % sd)


def w16_tr(k, lds, dst):
    k('v_lshrrev_b32 v156, 1, v5')
    k('v_lshl_add_u32 v156, v156, 4, v4')
    k('v_and_b32 v157, 1, v5')
    k('v_lshl_add_u32 v156, v157, 2, v156')
    k('v_mul_u32_u24 v156, %d, v156' % P40)
    k('s_mul_i32 s24, %s, 160' % sW)
    k('s_add_u32 s24, s24, %d' % lds)
    k('v_add_u32 v156, s24, v156')
    k('v_lshl_add_u32 v157, v3, 4, v156')
    k('v_lshl_add_u32 v158, v3, 3, v156')
    for ct in range(5):
        for rd in range(2):
            if ct < 4:
                k('ds_read_b64_tr_b16 %s, v157 offset:%d' % (V(dst + 4 * ct + 2 * rd, 2), 8 * rd * P40 + 64 * (ct >> 1) + 8 * (ct & 1)))
            else:
                k('ds_read_b64_tr_b16 %s, v158 offset:%d' % (V(dst + 4 * ct + 2 * rd, 2), 8 * rd * P40 + 128))


def w16_store_ops(sd, src):
    ops = []
    for ct in range(5):
        pre = ['s_add_u32 %s, %s, 4096' % (sd, sd)] if ct == 4 else []
        ops.append(pre + ['buffer_store_dwordx4 %s, %s, %s, %s offen offset:%d sc1' % (V(src + 4 * ct, 4), vL16, WS, sd, 1024 * (ct & 3))])
    return ops


def allred_hi(k, r, t):
    k('v_add_f32_dpp %s, %s, %s row_ror:8 row_mask:0xf bank_mask:0xf' % (t, r, r))
    k('v_mov_b32 %s, %s' % (r, t))
    k('v_permlane16_swap_b32 %s, %s' % (r, t))
    k('v_add_f32 %s, %s, %s' % (r, r, t))
    k('v_mov_b32 %s, %s' % (t, r))
    k('v_permlane32_swap_b32 %s, %s' % (r, t))
    k('v_add_f32 %s, %s, %s' % (r, r, t))


def front(k):
    k.comment('---- front end')
    k('s_cmp_ge_u32 s2, 256')
    k('s_cbranch_scc1 L_main_end')
    k('s_load_dwordx16 s[80:95], s[0:1], 0')
    k('s_load_dwordx8 s[56:63], s[0:1], 64')
    k('s_memrealtime s[76:77]')
    M.setup_ids(k)
    k('v_and_b32 v3, 3, v0')
    k('v_bfe_u32 v4, v0, 2, 2')
    k('v_bfe_u32 v5, v0, 4, 2')
    sRQ, sCG, sU, sOOB = 's66', 's67', 's68', 's69'
    sdiv(k, sRQ, 's2', 60, 256)
    k('s_mul_i32 s24, %s, 60' % sRQ)
    k('s_sub_u32 %s, s2, s24' % sCG)
    k('s_cmp_lt_u32 s2, 240')
    k('s_cselect_b32 %s, 0, 0x40000000' % sOOB)
    k('s_lshl_b32 s24, %s, 4' % sI)
    k('s_add_u32 %s, s24, %s' % (sU, sJ))
    k('v_and_b32 v7, 7, v0')
    k('v_lshrrev_b32 v2, 3, v0')
    k('v_mul_u32_u24 v13, 7680, v2')
    k('v_lshl_add_u32 v13, v7, 4, v13')
    k('v_lshlrev_b32 v14, 1, v2')
    k('s_mul_i32 s27, %s, %d' % (sRQ, 160 * 7680))
    k('s_lshl_b32 s24, %s, 7' % sCG)
    k('s_add_u32 s27, s27, s24')
    k('s_add_u32 s27, s27, %s' % sOOB)
    k('s_mul_i32 s28, %s, 320' % sRQ)
    k('v_bfe_u32 v6, v0, 3, 3')
    k('v_mul_u32_u24 v15, 1280, v7')
    k('v_lshl_add_u32 v15, v6, 4, v15')
    k('v_cmp_gt_u32 s[30:31], 4, v6')
    k('v_mov_b32 v36, %d' % BIG)
    k('v_cndmask_b32 v37, v36, v15, s[30:31]')
    k('s_mul_i32 s29, %s, 10240' % sU)
    k('s_mul_i32 s24, %s, 320' % sW)
    k('s_add_u32 s29, s29, s24')
    sKS, sSEC, sJH = 's70', 's71', 's72'
    sdiv(k, sKS, 's2', 6, 256)
    k('s_mul_i32 s24, %s, 6' % sKS)
    k('s_sub_u32 s24, s2, s24')
    k('s_and_b32 %s, s24, 1' % sJH)
    k('s_lshr_b32 %s, s24, 1' % sSEC)
    k('s_mul_i32 s23, %s, %d' % (sKS, 16 * 3840))
    k('s_mul_i32 s24, s24, 640')
    k('s_add_u32 s23, s23, s24')
    k('s_add_u32 s23, s23, %s' % sOOB)
    for it in range(3):
        chunk40(k, it, 3, 'v161', 'v162')
        k('v_mul_u32_u24 %s, %d, v161' % (V(96 + it), P40))
        k('v_lshl_add_u32 %s, v162, 4, %s' % (V(96 + it), V(96 + it)))
        k('v_mul_u32_u24 v161, 3840, v161')
        k('v_lshl_add_u32 %s, v162, 4, v161' % V(164 + it))
    k('v_cmp_le_u32 vcc, 128, v0')
    k('v_cndmask_b32 v166, v166, v36, vcc')
    mk(k, 32, 56, SIZE['wmod'])
    mk(k, 36, 94, SIZE['c'])
    mk(k, 8, 80, SIZE['x'])
    mk(k, 40, 82, SIZE['wqkv'])
    for it in range(5):
        k('buffer_load_ushort %s, v14, %s, s28 offen offset:%d' % (V(8 + it), CS_, 64 * it))
    for it in range(5):
        k('buffer_load_dwordx4 %s, v13, %s, s27 offen nt' % (V(16 + 4 * it, 4), WM))
        if it < 4:
            k('s_add_u32 s27, s27, %d' % (32 * 7680))
    mk(k, 4, 62, SIZE['ws'])
    mk(k, 52, 60, SIZE['dbg'])
    k('s_or_b32 s76, s76, 1')
    k('s_or_b32 s24, s2, %s' % sW)
    k('s_cmp_eq_u32 s24, 0')
    k('s_cselect_b32 s24, 0, 0x1000')
    k('v_mov_b32 v38, s76')
    k('s_mov_b64 exec, 1')
    k('buffer_store_dword v38, off, %s, s24 sc1' % DB)
    k('s_mov_b64 exec, -1')
    for it in range(3):
        k('buffer_load_dwordx4 %s, %s, %s, s23 offen nt' % (V(84 + 4 * it, 4), V(164 + it), WQ))
    k('buffer_load_dwordx4 v[48:51], v15, %s, s29 offen nt' % XS)
    k('buffer_load_dwordx4 v[52:55], v15, %s, s29 offen offset:128 nt' % XS)
    k('buffer_load_dwordx4 v[56:59], v37, %s, s29 offen offset:256 nt' % XS)
    mk(k, 12, 58, SIZE['out'])
    if G.tlb:
        k('v_lshlrev_b32 v248, %d, %s' % (G.tlb, vLANE))
        k('s_lshl_b32 s24, %s, %d' % (sW, G.tlb + 6))
        k('buffer_load_dword v248, v248, %s, s24 offen nt' % WS, nodst=True)
    sBK, sBKS, sBCH, sBO = 's73', 's74', 's75', 's94'
    sCWO, sCK, sCKS, sCCH, sCO = 's96', 's97', 's98', 's99', 's95'
    k('s_cmp_lt_u32 s2, 192')
    k('s_cbranch_scc0 L_bdec_wd')
    k('s_and_b32 %s, s2, 1' % sBCH)
    k('s_lshr_b32 s24, s2, 1')
    sdiv(k, sBK, 's24', 24, 96)
    k('s_mul_i32 s25, %s, 24' % sBK)
    k('s_sub_u32 %s, s24, s25' % sBKS)
    k('s_cmp_eq_u32 %s, 0' % sBCH)
    k('s_cselect_b32 s44, s88, s90')
    k('s_cselect_b32 s45, s89, s91')
    k('s_mul_i32 %s, %s, %d' % (sBO, sBK, 160 * 3072))
    k('s_lshl_b32 s24, %s, 7' % sBKS)
    k('s_add_u32 %s, %s, s24' % (sBO, sBO))
    for it in range(5):
        k('v_add_u32 v160, %d, v2' % (32 * it))
        k('v_mul_u32_u24 v161, 3072, v160')
        k('v_lshl_add_u32 %s, v7, 4, v161' % V(168 + it))
        k('v_mul_u32_u24 v161, %d, v160' % PGU)
        k('v_lshl_add_u32 v161, v7, 4, v161')
        k('v_add_u32 %s, %d, v161' % (V(120 + it), L_B))
    k('s_branch L_bdec_done')
    k.label('L_bdec_wd')
    k('s_sub_u32 s23, s2, 192')
    k('s_mov_b32 s29, 0')
    w16_unit(k, 's23', 's29', sBK, sBKS, sBCH)
    k('s_mov_b32 s44, s92')
    k('s_mov_b32 s45, s93')
    k('s_lshr_b32 s24, s23, 1')
    k('s_mul_i32 %s, s24, %d' % (sBO, 32 * 1280))
    k('s_mul_i32 s24, %s, 640' % sBCH)
    k('s_add_u32 %s, %s, s24' % (sBO, sBO))
    for it in range(5):
        chunk40(k, it, 5, 'v161', 'v162')
        k('v_mul_u32_u24 v163, %d, v161' % P40)
        k('v_lshl_add_u32 v163, v162, 4, v163')
        k('v_add_u32 %s, %d, v163' % (V(120 + it), L_B))
        k('v_mul_u32_u24 v161, 1280, v161')
        k('v_lshl_add_u32 %s, v162, 4, v161' % V(168 + it))
    k.label('L_bdec_done')
    k('s_mov_b32 s46, %d' % SIZE['wd'])
    k('s_mov_b32 s47, 0x20000')
    k('s_max_u32 s23, s2, 184')
    k('s_cmp_ge_u32 s23, 216')
    k('s_cselect_b32 %s, 1, 0' % sCWO)
    k('s_cselect_b32 s48, s84, s92')
    k('s_cselect_b32 s49, s85, s93')
    k('s_mov_b32 s24, %d' % SIZE['wd'])
    k('s_cselect_b32 s50, %d, s24' % SIZE['wo'])
    k('s_movk_i32 s24, 120')
    k('s_cselect_b32 s24, 216, s24')
    k('s_mov_b32 s51, 0x20000')
    k('s_sub_u32 s23, s23, s24')
    w16_unit(k, 's23', sCWO, sCK, sCKS, sCCH)
    k('s_lshr_b32 s24, s23, 1')
    k('s_lshl_b32 s24, s24, 5')
    k('s_mul_i32 s25, %s, 40' % sCKS)
    k('s_cmp_eq_u32 %s, 4' % sCKS)
    k('s_cselect_b32 s25, 16, s25')
    k('s_cselect_b64 s[78:79], -1, 0')
    k('s_mul_i32 s26, %s, 160' % sCK)
    k('s_add_u32 s25, s25, s26')
    k('s_cmp_eq_u32 %s, 1' % sCWO)
    k('s_cselect_b32 s24, s25, s24')
    k('s_cselect_b64 vcc, -1, 0')
    k('s_mul_i32 %s, s24, 1280' % sCO)
    k('s_mul_i32 s24, %s, 640' % sCCH)
    k('s_add_u32 %s, %s, s24' % (sCO, sCO))
    k('s_cmp_lt_u32 s2, 184')
    k('s_cselect_b32 s77, 0x40000000, 0')
    k('s_add_u32 %s, %s, s77' % (sCO, sCO))
    for it in range(5):
        chunk40(k, it, 5, 'v161', 'v162')
        k('v_mul_u32_u24 v163, %d, v161' % P40)
        k('v_lshl_add_u32 v163, v162, 4, v163')
        k('v_add_u32 %s, %d, v163' % (V(148 + it), L_C))
        k('v_lshrrev_b32 v40, 4, v161')
        k('v_and_b32 v41, 15, v161')
        k('v_mad_u32_u24 v41, v40, 20, v41')
        k('v_lshlrev_b32 v40, 2, v40')
        k('v_bfe_u32 v42, v161, 2, 1')
        k('v_lshl_add_u32 v40, v42, 1, v40')
        k('v_bfe_u32 v42, v161, 3, 1')
        k('v_add_u32 v40, v40, v42')
        k('v_and_b32 v42, 3, v161')
        k('v_mad_u32_u24 v40, v40, 20, v42')
        k('v_cndmask_b32 v41, v41, v40, s[78:79]')
        k('v_cndmask_b32 v161, v161, v41, vcc')
        k('v_mul_u32_u24 v161, 1280, v161')
        k('v_lshl_add_u32 %s, v162, 4, v161' % V(173 + it))
    k('v_lshrrev_b32 v14, 1, v5')
    k('v_lshl_add_u32 v160, v14, 3, v4')
    k('v_mul_u32_u24 v160, %d, v160' % P40)
    k('s_mul_i32 s24, %s, 160' % sW)
    k('s_add_u32 s24, s24, %d' % L_U3)
    k('v_add_u32 v160, s24, v160')
    k('v_and_b32 v161, 1, v5')
    k('v_mul_u32_u24 v161, 40, v161')
    k('v_lshlrev_b32 v162, 1, v3')
    k('v_and_b32 v162, 2, v162')
    k('v_lshrrev_b32 v163, 1, v3')
    k('v_or_b32 v162, v162, v163')
    k('s_cmp_eq_u32 %s, 2' % sSEC)
    k('s_cselect_b64 vcc, -1, 0')
    k('v_cndmask_b32 v162, v3, v162, vcc')
    k('v_lshl_add_u32 v161, v162, 3, v161')
    k('v_add_u32 v153, v160, v161')
    k('v_mul_u32_u24 v162, 40, v3')
    k('v_add3_u32 v154, v160, v162, 32')
    k('v_bfe_u32 v155, v0, 3, 1')
    k('v_mul_u32_u24 v155, 163840, v155')
    k('v_lshl_add_u32 v155, v7, 4, v155')
    k('v_lshl_add_u32 v155, v14, 9, v155')
    stamp(k)
    k('s_lshl_b32 s23, %s, 3' % sJH)
    k('s_lshl_b32 s24, %s, 1' % sW)
    k('s_add_u32 s23, s23, s24')
    k('s_mul_i32 s23, s23, 163840')
    k('s_add_u32 s23, s23, %d' % WQKV)
    k('s_add_u32 s23, s23, %s' % sOOB)
    k('s_lshl_b32 s24, %s, 11' % sKS)
    k('s_add_u32 s24, s23, s24')
    k('s_lshl_b32 s25, %s, 10' % sKS)
    k('s_add_u32 s25, s23, s25')
    k('s_add_u32 s25, s25, 81920')
    k('s_add_u32 s26, s25, 40960')
    k('s_cmp_eq_u32 %s, 1' % sSEC)
    k('s_cselect_b32 s25, s24, s25')
    k('s_cmp_eq_u32 %s, 0' % sSEC)
    k('s_cselect_b32 s78, s26, s25')
    k('s_cselect_b32 s26, 3, %s' % sSEC)
    k('s_sub_u32 s26, s26, 1')
    k('s_lshl_b32 s26, s26, 7')
    k('s_add_u32 s79, s24, s26')
    k('s_mov_b64 s[70:71], s[78:79]')
    k('s_load_dword %s, s[60:61], 0' % sFLAG)
    for it in range(5):
        c = V(8 + it)
        k('v_lshlrev_b32 %s, 16, %s' % (c, c))
        k('v_mul_f32 v13, %s, %s' % (hex(f2u(-LOG2E)), c))
        k('v_exp_f32 v13, v13')
        k('v_add_f32 v13, 1.0, v13')
        k('v_rcp_f32 v13, v13')
        k('v_mul_f32 %s, %s, v13' % (c, c))
        rbf(k, c)
    for it in range(5):
        for d in range(4):
            unpack(k, 'v36', 'v37', V(16 + 4 * it + d))
            a = V(40 + 2 * d, 2)
            cc = V(8 + (it & ~1), 2)
            sel = 'op_sel:[0,1,0] op_sel_hi:[1,1,1]' if it & 1 else 'op_sel_hi:[1,0,1]'
            if it == 0:
                k('v_pk_mul_f32 %s, v[36:37], %s op_sel_hi:[1,0]' % (a, cc))
            else:
                k('v_pk_fma_f32 %s, v[36:37], %s, %s %s' % (a, cc, a, sel))
    for n in range(4):
        k('v_permlane32_swap_b32 %s, %s' % (V(40 + n), V(44 + n)))
    for n in range(2):
        k('v_pk_add_f32 %s, %s, %s' % (V(40 + 2 * n, 2), V(40 + 2 * n, 2), V(44 + 2 * n, 2)))
    for n in range(2):
        k('v_permlane16_swap_b32 %s, %s' % (V(40 + n), V(42 + n)))
    k('v_pk_add_f32 v[40:41], v[40:41], v[42:43]')
    for n in range(2):
        k('v_add_f32_dpp %s, %s, %s row_ror:8 row_mask:0xf bank_mask:0xf' % (V(42 + n), V(40 + n), V(40 + n)))
    k('s_lshl_b32 s24, %s, 8' % sW)
    k('v_lshl_add_u32 v13, v7, 5, s24')
    k('v_lshl_add_u32 v13, v5, 3, v13')
    k('ds_write_b64 v13, v[42:43] offset:%d' % L_RED)
    k('v_min_u32 v13, 240, %s' % vL16)
    k('s_mul_i32 s24, %s, %d' % (sRQ, 3840 * 4))
    k('s_lshl_b32 s25, %s, 8' % sCG)
    k('s_add_u32 s24, s24, s25')
    k('s_add_u32 s24, s24, %s' % sOOB)
    k('s_cmp_eq_u32 %s, 0' % sW)
    k('s_cselect_b32 s76, 0, 0x20000000')
    k('s_add_u32 s24, s24, s76')
    k.drain(vm=False)
    k('s_barrier')
    for n in range(4):
        k('ds_read_b128 %s, v13 offset:%d' % (V(16 + 4 * n, 4), L_RED + 256 * n))
    k.label('L_tag')
    k('s_cmp_lg_u32 %s, 0' % sFLAG)
    k('s_cbranch_scc1 L_tag_ok')
    k.raw('    buffer_load_dword v39, off, %s, 0 sc1' % DB)
    k.raw('    s_waitcnt vmcnt(0)')
    k('v_readfirstlane_b32 %s, v39' % sFLAG)
    k('s_add_u32 s65, s65, 1')
    k('s_cmp_lt_u32 s65, 0x40000')
    k('s_cbranch_scc1 L_tag')
    k.label('L_tag_ok')
    for h in range(2):
        k('v_pk_add_f32 %s, %s, %s' % (V(16 + 2 * h, 2), V(16 + 2 * h, 2), V(20 + 2 * h, 2)))
        k('v_pk_add_f32 %s, %s, %s' % (V(24 + 2 * h, 2), V(24 + 2 * h, 2), V(28 + 2 * h, 2)))
        k('v_pk_add_f32 %s, %s, %s' % (V(16 + 2 * h, 2), V(16 + 2 * h, 2), V(24 + 2 * h, 2)))
    for d in range(3):
        k('s_mov_b32 s25, 0x%08x' % (0x07060500 + 3 - d))
        k('v_perm_b32 %s, %s, v19, s25' % (V(16 + d), V(16 + d)))
    k('v_mov_b32 v19, %s' % sFLAG)
    k('s_mov_b64 exec, 0xffff')
    k('buffer_store_dwordx4 v[16:19], v13, %s, s24 offen offset:%d sc1' % (WS, MODP))
    k('s_mov_b64 exec, -1')
    for it in range(5):
        k('buffer_load_dwordx4 %s, %s, %s, %s offen nt' % (V(100 + 4 * it, 4), V(168 + it), BS, sBO))
    for it in range(5):
        k('buffer_load_dwordx4 %s, %s, %s, %s offen nt' % (V(128 + 4 * it, 4), V(173 + it), C2, sCO))
    stamp(k)
    for it in range(3):
        k('ds_write_b128 %s, %s offset:%d' % (V(96 + it), V(84 + 4 * it, 4), L_U3))
    X = 60
    for d in range(12):
        unpack(k, V(X + 2 * d), V(X + 2 * d + 1), V(48 + d))
        x = V(X + 2 * d, 2)
        if d == 0:
            k('v_pk_mul_f32 v[10:11], %s, %s' % (x, x))
        else:
            k('v_pk_add_f32 v[8:9], %s, %s' % (x, V(X, 2) if d == 1 else 'v[8:9]'))
            k('v_pk_fma_f32 v[10:11], %s, %s, v[10:11]' % (x, x))
    k('v_add_f32 v8, v8, v9')
    k('v_add_f32 v9, v10, v11')
    allred_hi(k, 'v8', 'v10')
    allred_hi(k, 'v9', 'v10')
    k('s_lshl_b32 s24, %s, 3' % sW)
    k('v_lshl_add_u32 v12, v7, 5, s24')
    k('ds_write_b64 v12, v[8:9] offset:%d' % L_ST)
    k('v_lshlrev_b32 v12, 5, v7')
    stamp(k)
    k.drain(vm=False)
    k('s_barrier')
    for jl in range(2):
        for rd in range(2):
            k('ds_read_b64_tr_b16 %s, v153 offset:%d' % (V(84 + 4 * jl + 2 * rd, 2), 80 * jl + 4 * rd * P40))
    for rd in range(2):
        k('ds_read_b64_tr_b16 %s, v154 offset:%d' % (V(92 + 2 * rd, 2), 4 * rd * P40))
    k('ds_read_b128 v[20:23], v12 offset:%d' % L_ST)
    k('ds_read_b128 v[24:27], v12 offset:%d' % (L_ST + 16))
    k('buffer_store_dwordx4 v[84:87], %s, %s, s70 offen sc1' % (vL16, WS))
    k('s_add_u32 s70, s70, 163840')
    k('buffer_store_dwordx4 v[88:91], %s, %s, s70 offen sc1' % (vL16, WS))
    tw = k('buffer_store_dwordx4 v[92:95], v155, %s, s71 offen offset:1024 sc1' % WS)
    stamp(k)
    k('s_mul_i32 s24, %s, 640' % sW)
    k('s_lshr_b32 s25, %s, 1' % sW)
    k('s_mul_i32 s25, s25, 320')
    k('s_mul_i32 s26, %s, 640' % sBK)
    k('s_add_u32 s25, s25, s26')
    k('s_add_u32 s25, s25, %d' % (3 * 2560 - 640))
    k('v_mov_b32 v34, s24')
    k('v_mov_b32 v35, s25')
    k('v_cmp_gt_u32 vcc, 40, %s' % vLANE)
    k('v_cndmask_b32 v34, v35, v34, vcc')
    k('v_min_u32 v35, %d, %s' % (59 * 16, vL16))
    k('v_add_u32 v34, v34, v35')
    k('v_pk_add_f32 v[20:21], v[20:21], v[22:23]')
    k('v_pk_add_f32 v[24:25], v[24:25], v[26:27]')
    k('v_pk_add_f32 v[20:21], v[20:21], v[24:25]')
    k('v_mul_f32 v28, %s, v20' % hex(f2u(-1.0 / 640)))
    k('v_mov_b32 v30, %s' % hex(f2u(1e-5)))
    k('v_mul_f32 v29, %s, v21' % hex(f2u(1.0 / 640)))
    k('v_fma_f32 v29, -v28, v28, v29')
    k('v_max_f32 v29, 0, v29')
    k('v_add_f32 v30, v30, v29')
    k('v_rsq_f32 v30, v30')
    k('v_mul_f32 v32, v28, v30')
    for d in range(12):
        x = V(X + 2 * d, 2)
        k('v_pk_fma_f32 %s, %s, v[30:31], v[32:33] op_sel_hi:[1,0,0]' % (x, x))
    k('s_lshl_b32 s24, %s, 11' % sW)
    k('s_add_u32 s24, s24, %d' % L_K)
    k('v_add_u32 v33, s24, %s' % vL16)
    k('v_lshl_add_u32 v31, v6, 5, s24')
    k('v_lshl_add_u32 v35, v14, 5, s24')
    k('s_lshr_b32 s27, %s, 2' % sU)
    k('s_mul_i32 s27, s27, 40960')
    k('s_mul_i32 s26, %s, 10240' % sW)
    k('s_add_u32 s27, s27, s26')
    k('s_and_b32 s26, %s, 3' % sU)
    k('s_lshl_b32 s26, s26, 7')
    k('s_add_u32 s27, s27, s26')
    k('s_add_u32 s27, s27, %d' % H1)
    k('v_lshlrev_b32 v15, 9, v6')
    k('v_lshl_add_u32 v15, v7, 4, v15')
    k('v_mov_b32 v36, %d' % BIG)
    k('v_cndmask_b32 v37, v36, v15, s[30:31]')
    k('s_mul_i32 s28, %s, 6' % sW)
    k('s_add_u32 s28, s28, %s' % sTH)
    k('s_lshl_b32 s28, s28, %d' % FS)
    k('s_add_u32 s28, s28, %d' % FW)
    k('v_min_u32 v36, 29, %s' % vLANE)
    vdiv(k, 'v38', 'v36', 3, 30)
    k('v_mul_u32_u24 v38, 9, v38')
    k('v_add_lshl_u32 v36, v36, v38, %d' % (FS + 1))
    stamp(k)
    PT = 204

    def fetch():
        k('s_mov_b32 s25, %d' % MODP)
        for p in range(4):
            for st in range(2):
                k('buffer_load_dwordx4 %s, v34, %s, s25 offen offset:%d sc1' % (V(PT + 16 * st + 4 * p, 4), WS, 2560 * st))
            if p < 3:
                k('s_add_u32 s25, s25, %d' % (3840 * 4))

    fetch()
    for it in range(5):
        k('ds_write_b128 %s, %s' % (V(120 + it), V(100 + 4 * it, 4)))
    for it in range(5):
        k('ds_write_b128 %s, %s' % (V(148 + it), V(128 + 4 * it, 4)))
    k.drain(vm=False)
    k('s_lshl_b32 s24, s2, %d' % FS)
    k('s_add_u32 s24, s24, %d' % FW)
    k('s_add_u32 s24, s24, s76')
    k.wait_vm(tw)
    stamp(k)
    k('s_barrier')
    flag_store(k, 's24')
    w16_tr(k, L_C, RC)
    k('s_cmp_lt_u32 s2, 192')
    k('s_cbranch_scc0 L_btr_wd')
    k('v_lshl_add_u32 v156, v14, 3, v4')
    k('v_mul_u32_u24 v156, %d, v156' % PGU)
    k('v_and_b32 v157, 1, v5')
    k('v_lshlrev_b32 v157, 5, v157')
    k('v_lshl_add_u32 v157, v3, 3, v157')
    k('s_lshr_b32 s24, %s, 1' % sW)
    k('s_mul_i32 s24, s24, %d' % (80 * PGU))
    k('s_and_b32 s25, %s, 1' % sW)
    k('s_lshl_b32 s26, s25, 6')
    k('s_add_u32 s24, s24, s26')
    k('s_add_u32 s24, s24, %d' % L_B)
    k('v_add3_u32 v156, v156, v157, s24')
    for ks in range(5):
        for rd in range(2):
            k('ds_read_b64_tr_b16 %s, v156 offset:%d' % (V(RB + 4 * ks + 2 * rd, 2), (16 * ks + 4 * rd) * PGU), nodst=True)
    k('s_branch L_btr_done')
    k.label('L_btr_wd')
    w16_tr(k, L_B, RB)
    k.label('L_btr_done')
    k('s_mov_b32 %s, 0x8000' % M.sTMO)
    k('v_mov_b32 v38, %s' % V(PT + 31))
    k.label('L_modp')
    for g in range(8):
        k('v_xor_b32 %s, %s, %s' % (V(PT + 4 * g + 3), sFLAG, V(PT + 4 * g + 3)))
    k('v_or3_b32 v38, %s, %s, %s' % (V(PT + 3), V(PT + 7), V(PT + 11)))
    k('v_or3_b32 v38, v38, %s, %s' % (V(PT + 15), V(PT + 19)))
    k('v_or3_b32 v38, v38, %s, %s' % (V(PT + 23), V(PT + 27)))
    k('v_or_b32 v38, v38, %s' % V(PT + 31))
    k('v_cmp_ne_u32 vcc, 0, v38')
    k('s_cbranch_vccz L_modp_ok')
    fetch()
    k.drain(lg=False, force=True)
    k('s_sub_u32 %s, %s, 1' % (M.sTMO, M.sTMO))
    k('s_cbranch_scc0 L_modp')
    k.label('L_modp_ok')
    stamp(k)
    for st in range(2):
        M.granule_sum(k, PT + 16 * st, 'v38', st)
        k('ds_write_b128 v33, %s offset:%d' % (V(PT + 16 * st, 4), 1024 * st))
    k.drain(vm=False, force=True)
    CT = 8
    for it in range(3):
        for st in range(2):
            for h in range(2):
                k('ds_read_b128 %s, v31 offset:%d' % (V(PT + 16 * (it & 1) + 8 * st + 4 * h, 4), 1024 * st + 256 * it + 16 * h))
        if it == 0:
            continue
        for i2 in ((0, 1) if it == 1 else (2,)):
            for d in range(4):
                x = V(X + 8 * i2 + 2 * d, 2)
                k('v_pk_fma_f32 %s, %s, %s, %s' % (x, x, V(PT + 16 * (i2 & 1) + 8 + 2 * d, 2), V(PT + 16 * (i2 & 1) + 2 * d, 2)))
                k('v_cvt_pk_bf16_f32 %s, %s, %s' % (V(48 + 4 * i2 + d), V(X + 8 * i2 + 2 * d), V(X + 8 * i2 + 2 * d + 1)))
            th = k('buffer_store_dwordx4 %s, %s, %s, s27 offen sc1' % (V(48 + 4 * i2, 4), 'v15' if i2 < 2 else 'v37', WS))
            if i2 < 2:
                k('s_add_u32 s27, s27, 4096')
    stamp(k)
    k('s_mul_i32 s69, %s, 163840' % sJ)
    k('s_add_u32 s69, s69, %d' % WQKV)
    k('s_lshl_b32 s66, %s, 11' % sW)
    k('s_add_u32 s67, s69, s66')
    w16_dest(k, 's96', sCWO, sCK, sCKS, sCCH)
    k('s_add_u32 s96, s96, s77')
    k('s_lshl_b32 s24, %s, 2' % sU)
    k('s_add_u32 s24, s24, %s' % sW)
    k('s_lshl_b32 s24, s24, %d' % FS)
    k('s_add_u32 s24, s24, %d' % FL)
    k('buffer_load_dword v244, v36, %s, s28 offen sc1' % WS)
    k.wait_vm(th)
    flag_store(k, 's24')
    stamp(k)
    M.check_or_poll(k, 'v244', 'v36', 's28', 'wq')
    wst = M.wq_stage_ops()
    for ops in wst[:5]:
        M.run_ops(k, ops)
    stamp(k)
    k('s_cmp_lt_u32 s2, 192')
    k('s_cbranch_scc0 L_b_wd')
    k('s_lshr_b32 s27, %s, 1' % sW)
    k('s_and_b32 s25, %s, 1' % sW)
    k('s_lshl_b32 s28, %s, 1' % sBKS)
    k('s_add_u32 s28, s28, s25')
    sdiv(k, 's24', 's28', 3, 48)
    k('s_mul_i32 s25, s24, 3')
    k('s_sub_u32 s25, s28, s25')
    k('s_lshl_b32 s26, %s, 1' % sBK)
    k('s_add_u32 s27, s27, s26')
    k('s_mul_i32 s26, s27, 5')
    k('s_mul_i32 s24, s24, 245760')
    k('s_add_u32 s24, s24, %d' % WGU)
    k('s_lshl_b32 s29, %s, 10' % sBCH)
    k('s_add_u32 s24, s24, s29')
    k('s_lshl_b32 s29, s25, 11')
    k('s_cmp_eq_u32 s25, 2')
    k('s_cselect_b32 s29, 163840, s29')
    k('s_cselect_b32 s98, 1, 2')
    k('s_lshl_b32 s98, s98, 11')
    k('s_add_u32 s24, s24, s29')
    k('s_mul_i32 s26, s26, s98')
    k('s_add_u32 s97, s24, s26')
    k('s_mul_i32 s24, s27, 48')
    k('s_add_u32 s24, s24, s28')
    k('s_lshl_b32 s24, s24, 1')
    k('s_add_u32 s24, s24, %s' % sBCH)
    k('s_lshl_b32 s24, s24, 8')
    k('s_add_u32 s99, s24, %d' % CSB)
    for r in range(8, 12):
        k('v_mov_b32 %s, 0' % V(r))
    for ks in range(5):
        W = RB + 4 * ks
        for st in range(2):
            for h in range(2):
                k('ds_read_b128 %s, v35 offset:%d' % (V(PT + 16 * (ks & 1) + 8 * st + 4 * h, 4), 640 + 1024 * st + 64 * ks + 16 * h))
        for d in range(4):
            unpack(k, 'v16', 'v17', V(W + d))
            k('v_pk_fma_f32 v[10:11], v[16:17], %s, v[10:11]' % V(PT + 16 * (ks & 1) + 2 * d, 2))
            k('v_pk_mul_f32 v[16:17], v[16:17], %s' % V(PT + 16 * (ks & 1) + 8 + 2 * d, 2))
            k('v_cvt_pk_bf16_f32 %s, v16, v17' % V(W + d))
            unpack(k, 'v16', 'v17', V(W + d))
            k('v_pk_add_f32 v[8:9], v[8:9], v[16:17]')
    k('v_add_f32 v8, v8, v9')
    k('v_add_f32 v10, v10, v11')
    k('v_permlane32_swap_b32 v8, v10')
    k('v_add_f32 %s, v8, v10' % V(RCS))
    k('s_branch L_b_done')
    k.label('L_b_wd')
    k('s_mov_b32 s29, 0')
    w16_dest(k, 's97', 's29', sBK, sBKS, sBCH)
    k('s_movk_i32 s98, 1024')
    k('s_mov_b32 s99, 0x40000000')
    k('v_mov_b32 %s, 0' % V(RCS))
    k.label('L_b_done')
    for ops in wst[5:]:
        M.run_ops(k, ops)
    stamp(k)
    k('s_lshl_b32 s23, %s, %d' % (sTB, FS + 4))
    k('s_add_u32 s23, s23, %d' % FL)
    k('v_and_b32 v36, 15, %s' % vLANE)
    k('v_lshlrev_b32 v36, %d, v36' % FS)
    M.poll(k, 'v36', 's23', 'h1')
    k.drain(force=True)
    M.c_acts(k)
```

```python
from asmgen import *
from layout import *
from gen_prep import srd, header, descriptor, unpack, rbf, LOG2E, NAME
KNAME = NAME + '_kernel'

WS, XS, OUTS = 's[4:7]', 's[8:11]', 's[12:15]'
sW, sI, sJ, sTH, sCB, sTB, sTE = 's16', 's17', 's18', 's19', 's20', 's21', 's22'
sFLAG, sTMO = 's64', 's65'
vL16, vLANE, vOFA = 'v255', 'v254', 'v253'
KVP = 5136
RING, RING0 = 152, 64
AUG = 152 * 1024
SCR = 158 * 1024
M32 = 'v_mfma_f32_32x32x16_bf16'
M16 = 'v_mfma_f32_16x16x32_bf16'


class G:
    prof = False
    stop = 99
    nstamp = 0
    fine = True
    c_srate = 8
    tlb = 0
    codepf = 42
    wd_d = 0
    wd_e = 12
    wd_early = 20
    c_first = 10
    k_flag_at = 34
    k_probe_at = 26
    v_flag_at = 32
    c_wrate = 8
    mod_after = 0
    bg_probe = 1
    bg_rate = 2


def stamp(k):
    if G.prof:
        k.drain(vm=False)
        k('%s s[78:79]' % ('s_memrealtime' if G.prof == 'rt' else 's_memtime'))
        k.drain(vm=False)
        k('v_writelane_b32 v249, s78, %d' % G.nstamp)
        G.nstamp += 1


def set_flag(k, base, sidx):
    k('s_lshl_b32 s24, %s, %d' % (sidx, FS))
    k('s_add_u32 s24, s24, %d' % base)
    k('v_mov_b32 v252, %s' % sFLAG)
    k.drain(lg=False, force=True)
    k('s_mov_b64 exec, 1')
    k('buffer_store_dword v252, off, %s, s24 sc1' % WS)
    k('s_mov_b64 exec, -1')


def poll(k, vaddr, soff, name, width=1, first=None):
    op = {1: 'buffer_load_dword', 2: 'buffer_load_dwordx2', 4: 'buffer_load_dwordx4'}[width]

    def probe():
        k('%s %s, %s, %s, %s offen sc1' % (op, V(244, width), vaddr, WS, soff))
        k.drain(lg=False, force=True)

    def check():
        for d in range(width):
            k('v_xor_b32 %s, %s, %s' % (V(244 + d), sFLAG, V(244 + d)))
        if width == 2:
            k('v_or_b32 v244, v244, v245')
        if width == 4:
            k('v_or3_b32 v244, v244, v245, v246')
            k('v_or_b32 v244, v244, v247')
        k('v_cmp_ne_u32 vcc, 0, v244')
        k('s_cbranch_vccz L_pdone_%s' % name)

    k('s_mov_b32 %s, 0x20000' % sTMO)
    if first:
        probe()
        first()
        check()
    k.label('L_poll_%s' % name)
    probe()
    check()
    k('s_sub_u32 %s, %s, 1' % (sTMO, sTMO))
    k('s_cbranch_scc0 L_poll_%s' % name)
    k.label('L_pdone_%s' % name)


class Fill:
    def __init__(self, k):
        self.k, self.q = k, []

    def add(self, x, cost=1):
        self.q.append((x, cost) if cost != 1 else x)

    def run(self, n):
        while n > 0 and self.q:
            x = self.q.pop(0)
            if isinstance(x, tuple):
                n -= x[1] - 1
                x = x[0]
            if callable(x):
                x()
            elif isinstance(x, list):
                for y in x:
                    self.last = self.k(y)
            else:
                self.last = self.k(x)
            n -= 1

    def add0(self, fn):
        prev = self.q.pop()

        def both():
            for y in (prev if isinstance(prev, list) else [prev]):
                self.last = self.k(y)
            fn()
        self.q.append(both)

    def flush(self):
        self.run(1 << 30)


def pf_lines(k, soff, n):
    k('v_lshlrev_b32 v249, 7, %s' % vLANE)
    if n < 64:
        k('v_min_u32 v249, %d, v249' % ((n - 1) * 128))
    k('buffer_load_dword v248, v249, %s, %s offen sc1' % (WS, soff), nodst=True)
    if n > 64:
        k('v_add_u32 v249, 8192, v249')
        if n < 128:
            k('v_min_u32 v249, %d, v249' % ((n - 1) * 128))
        k('buffer_load_dword v248, v249, %s, %s offen sc1' % (WS, soff), nodst=True)


def pf_share(k, sbase, sidx, n):
    k('s_mul_i32 s24, %s, %d' % (sidx, n * 128))
    k('s_add_u32 s24, s24, %s' % sbase)
    pf_lines(k, 's24', n)


def pf_wtile(k, sbase, n):
    k('s_and_b32 s25, %s, 15' % sTB)
    pf_share(k, sbase, 's25', n)


def dma_group(k, sm0, sglob):
    k('s_mov_b32 m0, %s' % sm0)
    t = None
    for b in range(4):
        t = k('buffer_load_dwordx4 %s, %s, %s offen offset:%d lds' % (vL16, WS, sglob, 1024 * b))
    return t


def setup(k):
    k('s_cmp_ge_u32 s2, 256')
    k('s_cbranch_scc1 L_main_end')
    srd(k, 4, 'ws')
    srd(k, 8, 'x')
    srd(k, 12, 'out')
    setup_ids(k)
    k('s_mov_b32 %s, 1' % sFLAG)
    k.drain(force=True)


def setup_ids(k):
    k('v_lshrrev_b32 v1, 6, v0')
    k('v_and_b32 %s, 63, v0' % vLANE)
    k('v_readfirstlane_b32 %s, v1' % sW)
    k('v_lshlrev_b32 %s, 4, %s' % (vL16, vLANE))
    k('s_bfe_u32 s24, s2, 0x20001')
    k('s_lshl_b32 s24, s24, 2')
    k('s_lshr_b32 s25, s2, 6')
    k('s_add_u32 %s, s24, s25' % sI)
    k('s_and_b32 %s, s2, 1' % sTH)
    k('s_bfe_u32 %s, s2, 0x30003' % sCB)
    k('s_lshl_b32 s24, %s, 3' % sTH)
    k('s_add_u32 %s, s24, %s' % (sJ, sCB))
    k('s_lshl_b32 s24, %s, 2' % sI)
    k('s_add_u32 %s, s24, %s' % (sTB, sW))
    k('s_lshl_b32 s25, %s, 1' % sTH)
    k('s_add_u32 %s, s24, s25' % sTE)
    k('s_mov_b32 %s, 0' % sTMO)
    k('v_lshrrev_b32 v1, 4, %s' % vLANE)
    k('v_and_b32 v2, 15, %s' % vLANE)
    k('v_lshlrev_b32 v2, 4, v2')
    k('v_lshl_add_u32 %s, v1, 9, v2' % vOFA)


def wq_stage_ops():
    st = []
    for n in range(10):
        ops = []
        for b in range(2):
            pre = []
            if b == 0:
                pre = (['s_add_u32 s66, s66, 8192', 's_add_u32 s67, s67, 8192'] if n else []) + ['s_mov_b32 m0, s66']
            ops.append(pre + ['buffer_load_dwordx4 %s, %s, s67 offen offset:%d sc1 lds' % (vL16, WS, 1024 * b)])
        st.append(ops)
    return st


def granule_sum(k, r, t, plus1):
    k('s_mov_b32 s24, 0x04000c0c')
    k('s_mov_b32 s26, 0x0706000c')
    for p in range(4):
        k('v_perm_b32 %s, %s, %s, s24' % (V(r + 4 * p + 3), V(r + 4 * p), V(r + 4 * p + 1)))
        k('v_perm_b32 %s, %s, %s, s26' % (V(r + 4 * p + 3), V(r + 4 * p + 3), V(r + 4 * p + 2)))
    for h in range(2):
        x = [V(r + 4 * p + 2 * h, 2) for p in range(4)]
        k('v_pk_add_f32 %s, %s, %s' % (x[0], x[0], x[1]))
        k('v_pk_add_f32 %s, %s, %s' % (x[2], x[2], x[3]))
        k('v_pk_add_f32 %s, %s, %s' % (x[0], x[0], x[2]))
        a, b = V(r + 2 * h), V(r + 2 * h + 1)
        k('v_cvt_pk_bf16_f32 %s, %s, %s' % (t, a, b))
        unpack(k, a, b, t)
        if plus1:
            k('v_pk_add_f32 %s, %s, 1.0 op_sel_hi:[1,0]' % (x[0], x[0]))
            k('v_cvt_pk_bf16_f32 %s, %s, %s' % (t, a, b))
            unpack(k, a, b, t)


def flag_ops(soff):
    return ['v_mov_b32 v252, %s' % sFLAG, 's_mov_b64 exec, 1', 'buffer_store_dword v252, off, %s, %s sc1' % (WS, soff), 's_mov_b64 exec, -1']


QF = 224


sNV, sOM, sOT, sKVO, sKF, sVF, sNF, sNG, sNL = 's80', 's81', 's82', 's83', 's84', 's85', 's86', 's87', 's88'
PM = 208
vK, vST, vB0, vBG, VA = 'v216', 'v217', 'v218', 'v219', 220
vNA, vNP, vVO = 'v156', 'v157', 'v158'


def d_setup(k):
    w16_base(k, 's73', WO, 5)
    w16_base(k, 's74', WD, 12)
    k('s_mul_i32 s23, %s, 245760' % sJ)
    k('s_add_u32 s23, s23, %d' % WGU)
    k('s_lshl_b32 s24, %s, 4' % sTB)
    k('s_add_u32 s24, s24, %s' % sJ)
    k('s_mul_i32 %s, s24, 5120' % sKVO)
    k('s_add_u32 %s, %s, %d' % (sKVO, sKVO, KV))
    k('s_lshl_b32 s24, s24, %d' % FS)
    k('s_add_u32 %s, s24, %d' % (sKF, FKV))
    k('s_add_u32 %s, s24, %d' % (sVF, FV))
    k('v_and_b32 %s, 31, %s' % (vVO, vLANE))
    k('v_lshlrev_b32 %s, 5, %s' % (vVO, vVO))
    k('v_lshrrev_b32 v201, 5, %s' % vLANE)
    k('v_lshl_add_u32 %s, v201, 4, %s' % (vVO, vVO))
    k('s_add_u32 s24, %s, 8' % sW)
    k('s_mul_i32 s24, s24, %d' % KVP)
    k('v_add_u32 v154, s24, %s' % vL16)
    k('v_add_u32 v155, s24, %s' % vVO)
    k('v_min_u32 v150, 11, %s' % vLANE)
    k('v_mul_u32_u24 v150, %d, v150' % KVP)
    k('v_mov_b32 v152, 0x3f803f80')
    k('v_mov_b32 v153, 0x3f803f80')
    k('s_mov_b32 s90, %s' % hex(f2u((DH ** -0.5) * LOG2E)))
    k('s_mov_b32 s91, s90')
    k('s_lshl_b32 s24, %s, 2' % sI)
    k('s_lshl_b32 s25, %s, 1' % sW)
    k('s_add_u32 s24, s24, s25')
    k('s_mul_i32 %s, s25, %d' % (sNL, KVP))
    k('s_max_u32 s25, s24, 8')
    k('s_sub_u32 s25, s25, 8')
    k('s_lshl_b32 s25, s25, 4')
    k('s_add_u32 s25, s25, %s' % sJ)
    k('s_mul_i32 %s, s25, 5120' % sNG)
    k('s_add_u32 %s, %s, %d' % (sNG, sNG, KV))
    k('s_lshl_b32 s25, s25, %d' % FS)
    k('s_add_u32 s25, s25, %d' % FKV)
    k(['s_cmp_ge_u32 s24, 8', 's_cselect_b32 %s, s25, %s' % (sNF, sKF), 's_cselect_b64 s[30:31], -1, 0'])
    k('v_mov_b32 v201, 0x7fffffff')
    k('v_cndmask_b32 %s, v201, %s, s[30:31]' % (vNA, vL16))
    k('v_and_b32 v201, 1, %s' % vLANE)
    k('v_lshlrev_b32 v201, %d, v201' % (FS + 4))
    k('v_cndmask_b32 %s, 0, v201, s[30:31]' % vNP)
    k('v_and_b32 v201, 3, %s' % vLANE)
    k('v_bfe_u32 v202, %s, 2, 1' % vLANE)
    k('v_bfe_u32 v203, %s, 3, 1' % vLANE)
    k('s_mul_i32 s24, %s, 3' % sJ)
    k('s_and_b32 s24, s24, 0xfffe')
    k('v_mad_u32_u24 v219, v201, 48, s24')
    k('v_lshl_add_u32 v219, v202, 1, v219')
    k('v_add_u32 v219, v219, v203')
    k('s_mul_i32 s24, %s, 5' % sCB)
    k('s_lshr_b32 s24, s24, 2')
    k('s_add_u32 s24, s24, 20')
    k('v_mad_u32_u24 v204, v201, 60, s24')
    k('v_mad_u32_u24 v204, v203, 30, v204')
    k('v_cmp_gt_u32 vcc, 16, %s' % vLANE)
    k('v_add_u32 v204, v204, v202')
    k('s_lshr_b32 s25, %s, 2' % sCB)
    k('v_cndmask_b32 v219, v204, v219, vcc')
    k('s_mul_i32 s24, %s, 24' % sW)
    k('s_add_u32 s24, s24, s25')
    k('s_add_u32 s24, s24, 128')
    k('v_lshl_add_u32 v204, %s, 1, s24' % vLANE)
    k('v_cmp_le_u32 vcc, 256, v204')
    k('v_subrev_u32 v205, 72, v204')
    k('s_mul_i32 s24, %s, 10' % sW)
    k('v_cndmask_b32 v204, v204, v205, vcc')
    k('v_cmp_gt_u32 vcc, 32, %s' % vLANE)
    k('s_add_u32 s24, s24, s25')
    k('s_add_u32 s24, s24, 128')
    k('v_cndmask_b32 v219, v204, v219, vcc')
    k('v_cmp_gt_u32 vcc, 44, %s' % vLANE)
    k('v_min_u32 v204, 48, %s' % vLANE)
    k('v_lshl_add_u32 v204, v204, 1, s24')
    k('v_cndmask_b32 v219, v204, v219, vcc')
    k('v_lshlrev_b32 v219, %d, v219' % FS)
    k('s_mov_b32 s89, %d' % FBG)
    k('s_lshl_b32 s24, s2, %d' % FS)
    k(['s_cmp_eq_u32 %s, 0' % sW, 's_cselect_b32 s25, 0, 0x40000000'])
    k('s_add_u32 s24, s24, s25')
    k('s_add_u32 s92, s24, %d' % FBG)
    for r in range(16):
        kl = 8 * (r >> 2) + (r & 3)
        k('s_mov_b32 %s, 0x%x' % (S(32 + 2 * r), (0xffffffff << kl) & 0xffffffff))
        k('s_mov_b32 %s, 0x%x' % (S(33 + 2 * r), (0xffffffff << (kl + 4)) & 0xffffffff))
    k('v_mov_b32 v201, 0xffff')
    k('v_mov_b32 v202, 0xffff0000')
    for p in range(8):
        k('v_cndmask_b32 %s, 0, v201, %s' % (V(PM + p), S(32 + 4 * p, 2)))
        k('v_cndmask_b32 v203, 0, v202, %s' % S(34 + 4 * p, 2))
        k('v_or_b32 %s, %s, v203' % (V(PM + p), V(PM + p)))
    k('s_mul_i32 s24, %s, %d' % (sW, KVP))
    k('v_add_u32 %s, s24, %s' % (vK, vL16))
    k('v_and_b32 v201, 3, %s' % vLANE)
    k('v_cmp_eq_u32 vcc, 0, v201')
    k('v_bfe_u32 v202, %s, 2, 2' % vLANE)
    k('v_lshrrev_b32 v203, 5, %s' % vLANE)
    k('v_lshl_add_u32 v202, v203, 2, v202')
    k('v_cndmask_b32 %s, 0, 16, vcc' % vST)
    k('v_mov_b32 v204, 5120')
    k('v_mov_b32 v205, 2056')
    k('v_cndmask_b32 %s, v204, v205, vcc' % vB0)
    k('v_and_b32 v203, 16, %s' % vLANE)
    k('v_cmp_eq_u32 vcc, 0, v203')
    k('v_lshlrev_b32 v201, 3, v201')
    k('v_add_u32 v201, 3072, v201')
    k('v_cndmask_b32 %s, %s, 32, vcc' % (vST, vST))
    k('v_cndmask_b32 %s, %s, v201, vcc' % (vB0, vB0))
    k('v_mad_u32_u24 %s, %s, v202, %s' % (vB0, vST, vB0))
    k('v_add_u32 %s, s24, %s' % (vB0, vB0))
    k('s_sub_i32 %s, 8, %s' % (sNV, sTB))
    k('s_max_i32 %s, %s, 0' % (sNV, sNV))
    k('v_cmp_gt_u32 vcc, 32, %s' % vLANE)
    k('v_mov_b32 v201, 0x3f803f80')
    k('v_mov_b32 v202, 0x3f80')
    k('v_cndmask_b32 v201, 0, v201, vcc')
    k('v_cndmask_b32 v202, 0, v202, vcc')
    k('v_accvgpr_write_b32 a252, v201')
    k('v_accvgpr_write_b32 a253, v202')
    k('v_accvgpr_write_b32 a254, 0')
    k('v_accvgpr_write_b32 a255, 0')
    k('v_mov_b32 v202, 0')
    k('v_mov_b32 v203, 0')
    for d in range(2):
        k('v_mov_b32 %s, 0' % V(QF + 6 + d))
        k('v_mov_b32 %s, 0' % V(QF + 14 + d))
    k('s_mul_i32 %s, %s, 40960' % (sOM, sTB))
    k('s_add_u32 %s, %s, %d' % (sOM, sOM, O))
    k('s_lshl_b32 s24, %s, 9' % sJ)
    k('s_add_u32 %s, %s, s24' % (sOT, sOM))
    k('s_add_u32 %s, %s, 32768' % (sOT, sOT))
    k('s_lshl_b32 s24, %s, 11' % sJ)
    k('s_add_u32 %s, %s, s24' % (sOM, sOM))


def c_acts(k):
    k('s_mul_i32 s68, %s, 40960' % sTB)
    k('s_add_u32 s68, s68, %d' % H1)
    G.va = Fill(k)
    for ks in range(40):
        pre = ['s_add_u32 s68, s68, 4096'] if ks & 3 == 0 and ks else []
        G.va.add(pre + ['buffer_load_dwordx4 %s, %s, %s, s68 offen offset:%d sc1' % (A(4 * ks, 4), vL16, WS, 1024 * (ks & 3))])
    G.va.run(G.c_first)


def phase_c(k):
    from gen_front import RB, RC, RCS, w16_store_ops
    aK, aT, aV, aQ, WB, NB, AH = 0, 16, 32, 48, 64, 8, 6
    va, vq = G.va, Fill(k)
    k('s_barrier')
    k('v_add_u32 v100, 65536, %s' % vL16)
    k('v_add_u32 v101, 131072, %s' % vL16)
    tok = {}
    for name, base in (('v', 81920), ('q', 122880)):
        for b in range(10):
            pre = []
            if b == 0:
                pre = ['s_mul_i32 s66, %s, 10240' % sW, 's_add_u32 s66, s66, %d' % base, 's_add_u32 s67, s69, s66', 's_mov_b32 m0, s66']
            elif b & 3 == 0:
                pre = ['s_add_u32 s66, s66, 4096', 's_add_u32 s67, s67, 4096', 's_mov_b32 m0, s66']
            vq.add(pre + ['buffer_load_dwordx4 %s, %s, s67 offen offset:%d sc1 lds' % (vL16, WS, 1024 * (b & 3))])
        vq.add0(lambda name=name: tok.__setitem__(name, vq.last))
    vs = Fill(k)
    for ks in range(5):
        vs.add((['s_add_u32 s97, s97, s98'] if ks else []) + ['buffer_store_dwordx4 %s, %s, %s, s97 offen sc1' % (V(RB + 4 * ks, 4), vL16, WS)])
    vs.add(['v_lshlrev_b32 v151, 2, %s' % vLANE, 'buffer_store_dword %s, v151, %s, s99 offen sc1' % (V(RCS), WS)])
    for op in w16_store_ops('s96', RC):
        vs.add(op)
    steps = [(16 * t, ks) for ks in range(40) for t in range(2)] + [(aV, ks) for ks in range(40)] + [(aQ, ks) for ks in range(40)]

    def rd(n):
        if n in (80, 120):
            name = 'v' if n == 80 else 'q'
            while name not in tok:
                vq.run(1)
            k.wait_vm(tok[name])
            if n == 120:
                assert not vs.q
                k.wait_vm(vs.last)
            k('s_barrier')
            if n == 120:
                run_ops(k, [flag_ops('s92')])
        byte = 1024 * n
        k('ds_read_b128 %s, %s offset:%d' % (V(WB + 4 * (n % NB), 4), [vL16, 'v100', 'v101'][byte >> 16], byte & 0xffff))

    PK = 128
    f = Fill(k)
    d_setup(f.add)

    def publish(blocks, name):
        for b, src in blocks:
            for d in range(4):
                f.add('v_cvt_pk_bf16_f32 %s, %s, %s' % (V(PK + 4 * b + d), V(src + 2 * d), V(src + 2 * d + 1)))
            pre = ['s_add_u32 %s, %s, 4096' % (sKVO, sKVO)] if b == 4 else []
            f.add(pre + ['buffer_store_dwordx4 %s, %s, %s, %s offen offset:%d sc1' % (V(PK + 4 * b, 4), vVO if b > 2 else vL16, WS, sKVO, 1024 * (b & 3))])
        f.add0(lambda: tok.__setitem__(name, f.last))
        if name == 'k':
            f.add('s_barrier')
        for b, src in blocks:
            f.add('ds_write_b128 %s, %s offset:%d' % ('v155' if b > 2 else 'v154', V(PK + 4 * b, 4), 1024 * b))

    for n in range(AH):
        rd(n)
    k.lg_batch = 2
    for n, (acc, ks) in enumerate(steps):
        if n in (80, 120):
            stamp(k)
        a = V(acc, 16)
        k('%s %s, %s, %s, %s' % (M32, a, V(WB + 4 * (n % NB), 4), A(4 * ks, 4), a if ks else '0'))
        if n + AH < len(steps):
            rd(n + AH)
        if n < 80:
            if n & 1 == 0:
                (va if va.q else vq).run(1)
            elif n % G.c_wrate == 1 and 'v' not in tok:
                vq.run(1)
        elif n % 3 == 0:
            vq.run(1)
        if n % G.c_srate == 5:
            vs.run(1)
        if n == 82:
            f.flush()
            publish([(0, aK), (1, aK + 8), (2, aT)], 'k')
            f.add('ds_write_b64 v150, v[152:153] offset:5120')
            for d in range(4):
                f.add('v_mul_f32 %s, s90, %s' % (V(aT + 8 + d), V(aT + 8 + d)))
            f.add('v_cmp_gt_u32 vcc, 32, %s' % vLANE)
            f.add('v_cvt_pk_bf16_f32 v24, v24, v25')
            f.add('v_cvt_pk_bf16_f32 v25, v26, v27')
            for d in range(2):
                f.add('v_cndmask_b32 %s, 0, %s, vcc' % (V(QF + 4 + d), V(24 + d)))
                f.add('v_cndmask_b32 %s, %s, 0, vcc' % (V(QF + 12 + d), V(24 + d)))
        if n == 122:
            publish([(3, aV), (4, aV + 8)], 'vv')
        if n == 80 + G.k_flag_at:
            k.wait_vm(tok['k'])
            run_ops(k, [flag_ops(sKF)])
        if n == 120 + G.k_probe_at:
            k('buffer_load_dword v244, %s, %s, %s offen sc1' % (vNP, WS, sNF))
        if n == 120 + G.v_flag_at:
            k.wait_vm(tok['vv'])
            run_ops(k, [flag_ops(sVF)])
        f.run(3 if n < 80 else 4)
    assert not f.q and not vq.q
    k.lg_batch = 1
    stamp(k)


def ring_ops(g0, g1):
    ops = []
    for g in range(g0, g1, 4):
        pre = ['s_add_u32 s70, %s, %d' % (sW, g)]
        if g + 3 >= g1:
            pre += ['s_min_u32 s70, s70, %d' % (g1 - 1)]
        pre += ['s_lshl_b32 s70, s70, 12', 's_add_u32 s71, s70, s23']
        lo, hi = g + RING0 // 4, min(g + 3, g1 - 1) + RING0 // 4
        R4 = RING // 4
        if lo // R4 == hi // R4:
            d = (RING0 // 4 - (lo // R4) * R4) * 4096
            pre += ['s_add_u32 m0, s70, %d' % d if d >= 0 else 's_sub_u32 m0, s70, %d' % -d]
        else:
            assert lo // R4 == 0
            pre += ['s_add_u32 s70, s70, %d' % (RING0 * 1024), 's_cmp_ge_u32 s70, %d' % (RING * 1024),
                    's_cselect_b32 s72, %d, 0' % (RING * 1024), 's_sub_u32 m0, s70, s72']
        for b in range(4):
            ops.append((pre if b == 0 else []) + ['buffer_load_dwordx4 %s, %s, s71 offen offset:%d sc1 lds' % (vL16, WS, 1024 * b)])
    return ops


def w16_base(k, sdst, base, nks):
    k('s_lshl_b32 %s, %s, 2' % (sdst, sCB))
    k('s_add_u32 %s, %s, %s' % (sdst, sdst, sW))
    k('s_mul_i32 %s, %s, %d' % (sdst, sdst, nks * 5120))
    k('s_add_u32 %s, %s, %d' % (sdst, sdst, base))


def w16_ops(sreg, n0, n1, areg):
    ops = []
    for n in range(n0, n1):
        pre = ['s_add_u32 %s, %s, 4096' % (sreg, sreg)] if n & 3 == 0 and n > 0 else []
        ops.append(pre + ['buffer_load_dwordx4 %s, %s, %s, %s offen offset:%d sc1' % (areg(n), vL16, WS, sreg, 1024 * (n & 3))])
    return ops


def run_ops(k, ops):
    t = None
    for op in ops:
        for y in op:
            t = k(y)
    return t


def wd_reg(n):
    if n < 20:
        return A(160 + 4 * n, 4)
    if n < 36:
        return V(180 + 4 * (n - 20), 4)
    return A(4 * (n - 36), 4)


def wo_reg(n):
    return A(4 * n, 4)


def kv_dma(k, blocks):
    k('s_mov_b32 s24, %s' % sNG)
    k('s_mov_b32 s25, %s' % sNL)
    t = None
    for sl in range(2):
        if sl:
            k('s_add_u32 s24, s24, %d' % (16 * 5120))
            k('s_add_u32 s25, s25, %d' % KVP)
        k('s_mov_b32 m0, s25')
        for b in blocks:
            t = k('buffer_load_dwordx4 %s, %s, s24 offen offset:%d sc1 lds' % (vNA, WS, 1024 * b))
    return t


def check_or_poll(k, vreg, vaddr, soff, name):
    k('v_cmp_ne_u32 vcc, %s, %s' % (sFLAG, vreg))
    k('s_cbranch_vccz L_pdone_%s' % name)
    save = list(k.vm)
    poll(k, vaddr, soff, name)
    k.vm = save


def phase_d(k):
    k.comment('---- phase D: attention')
    aQ = 48
    check_or_poll(k, 'v244', vNP, sNF, 'k')
    stamp(k)
    kv_dma(k, (0, 1, 2))
    k('s_add_u32 %s, %s, %d' % (sNF, sNF, FV - FKV))
    k('s_add_u32 %s, %s, 3072' % (sNG, sNG))
    k('s_add_u32 %s, %s, 3072' % (sNL, sNL))
    for d in range(8):
        k('v_pk_mul_f32 %s, %s, s[90:91]' % (V(aQ + 2 * d, 2), V(aQ + 2 * d, 2)))
        k('v_cvt_pk_bf16_f32 %s, %s, %s' % (V(QF + (d & 3) + 8 * (d >> 2)), V(aQ + 2 * d), V(aQ + 2 * d + 1)))
    k('buffer_load_dword v245, %s, %s, s89 offen sc1' % (vBG, WS))
    k('buffer_load_dword v244, %s, %s, %s offen sc1' % (vNP, WS, sNF))
    k.drain(force=True)
    k('s_barrier')
    check_or_poll(k, 'v244', vNP, sNF, 'v')
    tokv = kv_dma(k, (0, 1))
    check_or_poll(k, 'v245', vBG, 's89', 'bg')
    bg = w16_ops('s73', 0, 25, wo_reg) + ring_ops(0, (RING - RING0) // 4) + w16_ops('s74', 0, G.wd_d, wd_reg)
    stamp(k)
    KB, VB, PB, OA, NM, OT = 144, 168, 184, 144, 200, 240
    order = [8, 0, 1, 2, 3, 4, 5, 6, 7]
    bg_on = [True]
    for X in range(2):
        Q1, Q2 = V(QF + 8 * X, 4), V(QF + 8 * X + 4, 4)
        for n, (kk, rd) in enumerate(((0, 0), (0, 1), (1, 0), (1, 1))):
            k('v_mad_u32_u24 %s, %s, %d, %s' % (V(VA + n), vST, 16 * kk + 8 * rd + 32 * X, vB0))

        def rdk(n):
            u = order[n]
            k('ds_read_b128 %s, %s offset:%d' % (V(KB + 8 * (n % 3), 4), vK, u * KVP + 1024 * X))
            k('ds_read_b128 %s, %s offset:%d' % (V(KB + 8 * (n % 3) + 4, 4), vK, u * KVP + 2048))

        f = Fill(k)

        def maxes(u, add):
            for p in range(8):
                m = V(204 + (p & 1))
                if u == 0 and p < 2:
                    add('v_max_f32 %s, %s, %s' % (m, V(2 * p), V(2 * p + 1)))
                else:
                    add('v_max3_f32 %s, %s, %s, %s' % (m, m, V(16 * u + 2 * p), V(16 * u + 2 * p + 1)))

        def post(u):
            if u == 0:
                for r in range(16):
                    f.add('v_cndmask_b32 %s, %s, %s, %s' % (V(r), V(r), V(128 + r), S(32 + 2 * r, 2)))
            maxes(u, f.add)

        pv = [(u, kk) for u in (1, 2, 3, 4, 5, 6, 7, 8, 0) for kk in range(2)]

        def rdv(n):
            u, kk = pv[n]
            for rd in range(2):
                k('ds_read_b64_tr_b16 %s, %s offset:%d' % (V(VB + 4 * (n % 4) + 2 * rd, 2), V(VA + 2 * kk + rd), u * KVP))

        def qk(edge, bgl):
            k.lg_batch = 2
            for n in range(9):
                u = order[n]
                sreg = V(16 * u, 16)
                first = '%s %s, %s, %s, ' % (M32, sreg, V(KB + 8 * (n % 3), 4), Q1)
                if edge and u < 8:
                    k('s_cmp_gt_u32 %s, %d' % (sNV, u))
                    k('v_mov_b32 v206, %s' % V(KB + 8 * (n % 3)))
                    k('s_cbranch_scc1 L_neg_%d_%d' % (X, u))
                    k(first + '0')
                    k('s_branch L_pos_%d_%d' % (X, u))
                    k.label('L_neg_%d_%d' % (X, u))
                    k.raw('    ' + first + V(PB, 16))
                    k.label('L_pos_%d_%d' % (X, u))
                else:
                    k(first + '0')
                f.run(6)
                k('%s %s, %s, %s, %s' % (M32, sreg, V(KB + 8 * (n % 3) + 4, 4), Q2, sreg))
                if n + 2 < 9:
                    rdk(n + 2)
                if n % 2 == 1 and bgl:
                    run_ops(k, [bgl.pop(0)])
                if n >= 2:
                    post(order[n - 1])
                f.run(4)
            k.lg_batch = 1
            post(order[8])
            if X == 0:
                k.wait_vm(tokv)
                k('s_barrier')
            rdv(0)
            rdv(1)
            f.flush()

        rdk(0)
        rdk(1)
        k('s_cmp_lg_u32 %s, 0' % sNV)
        k('s_cbranch_scc1 L_qkedge_%d' % X)
        st0 = (list(k.vm), list(k.lg), list(k.hist))
        bge = list(bg)
        qk(False, bg)
        k('s_branch L_qkdone_%d' % X)
        k.label('L_qkedge_%d' % X)
        k.vm, k.lg, k.hist = st0
        for r in range(16):
            k('v_mov_b32 %s, 0xf149f2ca' % V(PB + r))
        qk(True, bge)
        k.label('L_qkdone_%d' % X)
        if G.fine:
            stamp(k)
        k('v_max_f32 v204, v204, v205')
        k('v_mov_b32 v205, v204')
        k('v_permlane32_swap_b32 v204, v205')
        k('v_max_f32 v204, v204, v205')
        k('v_cvt_pk_bf16_f32 v205, -v204, -v204')
        k('v_and_b32 v206, 0xffff0000, v205')
        k('v_add_f32 v204, v204, v206')
        k('v_cvt_pk_bf16_f32 v207, -v204, -v204')
        k('v_and_b32 v206, 0xffff0000, v207')
        k('v_add_f32 v204, v204, v206')
        k('v_alignbit_b32 %s, v207, v205, 16' % V(NM))
        k('v_cvt_pk_bf16_f32 %s, -v204, -v204' % V(NM + 1))
        oacc = V(OA, 16)
        pend = []
        tiles = [1, 2, 3, 4, 5, 6, 7, 0]

        def sub(u):
            k('%s %s, a[252:255], %s, %s' % (M32, V(16 * u, 16), V(NM, 4), V(16 * u, 16)))

        def issue():
            if pend:
                n, preg = pend.pop(0)
                k('%s %s, %s, %s, %s' % (M32, oacc, V(VB + 4 * (n % 4), 4), preg, oacc if n else '0'))
                if n + 2 < 18:
                    rdv(n + 2)

        def bgrun(n):
            while bg_on[0] and bg and n > 0:
                run_ops(k, [bg.pop(0)])
                n -= 1

        sub(tiles[0])
        sub(tiles[1])
        for ti, u in enumerate(tiles):
            P = PB + 8 * (ti & 1) if u else 128
            for h in range(2):
                for r in range(8 * h, 8 * h + 8):
                    k('v_exp_f32 %s, %s' % (V(16 * u + r), V(16 * u + r)))
                    if r & 7 == 1:
                        issue()
                    if r == 13 and ti + 2 < 8:
                        sub(tiles[ti + 2])
                bgrun(1 + (h if ti & 1 else 0))
                for p in range(4 * h, 4 * h + 4):
                    k('v_cvt_pk_bf16_f32 %s, %s, %s' % (V(P + p), V(16 * u + 2 * p), V(16 * u + 2 * p + 1)))
                if u:
                    pend.append((2 * ti + h, V(P + 4 * h, 4)))
                else:
                    for p in range(4 * h, 4 * h + 4):
                        k('v_and_b32 %s, %s, %s' % (V(136 + p), V(128 + p), V(PM + p)))
                    pend.append((14 + h, V(136 + 4 * h, 4)))
        for p in range(8):
            k('v_xor_b32 %s, %s, %s' % (V(128 + p), V(128 + p), V(136 + p)))
            if p == 0:
                issue()
        pend += [(16, V(128, 4)), (17, V(132, 4))]
        while pend:
            issue()
        if G.fine:
            stamp(k)
        k('v_rcp_f32 v204, %s' % V(OA + 12))
        for p in range(6):
            k('v_pk_mul_f32 %s, %s, v[204:205] op_sel_hi:[1,0]' % (V(OA + 2 * p, 2), V(OA + 2 * p, 2)))
        for p in range(4):
            k('v_cvt_pk_bf16_f32 %s, %s, %s' % (V(244 + p), V(OA + 2 * p), V(OA + 2 * p + 1)))
        k('buffer_store_dwordx4 v[244:247], %s, %s, %s offen offset:%d sc1' % (vL16, WS, sOM, 1024 * X))
        for p in range(2):
            k('v_cvt_pk_bf16_f32 %s, %s, %s' % (V(OT + 2 * X + p), V(OA + 8 + 2 * p), V(OA + 9 + 2 * p)))
        if G.fine and X == 0:
            stamp(k)
    k('s_mov_b32 exec_hi, 0')
    G.tok_o = k('buffer_store_dwordx4 %s, %s, %s, %s offen sc1' % (V(OT, 4), vL16, WS, sOT))
    k('s_mov_b64 exec, -1')
    G.bg_left = bg
    stamp(k)


def colconst_issue(k, which, tmp):
    k('s_mul_i32 s24, %s, 320' % sCB)
    k('s_add_u32 s24, s24, %d' % (MODP + which * 2560))
    k('v_min_u32 %s, 304, %s' % (V(tmp + 16), vL16))
    for p in range(4):
        k('buffer_load_dwordx4 %s, %s, %s, s24 offen sc1' % (V(tmp + 4 * p, 4), V(tmp + 16), WS))
        if p < 3:
            k('s_add_u32 s24, s24, %d' % (3840 * 4))


def colconst_finish(k, tmp, dst):
    granule_sum(k, tmp, V(tmp + 17), False)
    k('s_mul_i32 s24, %s, 320' % sW)
    k('s_add_u32 s24, s24, %d' % SCR)
    k('v_add_u32 %s, s24, %s' % (V(tmp + 16), V(tmp + 16)))
    k('ds_write_b128 %s, %s' % (V(tmp + 16), V(tmp, 4)))
    k('v_lshrrev_b32 %s, 4, %s' % (V(tmp + 4), vLANE))
    k('v_lshl_add_u32 %s, %s, 5, s24' % (V(tmp + 5), V(tmp + 4)))
    k('v_lshl_add_u32 %s, %s, 4, s24' % (V(tmp + 6), V(tmp + 4)))
    k.drain(vm=False)
    for ct in range(4):
        k('ds_read_b128 %s, %s offset:%d' % (V(dst + 4 * ct, 4), V(tmp + 5), 128 * (ct >> 1) + 16 * (ct & 1)))
    k('ds_read_b128 %s, %s offset:256' % (V(dst + 16, 4), V(tmp + 6)))


def row_offsets(k, va, vb):
    k('v_and_b32 %s, 15, %s' % (va, vLANE))
    k('v_mul_u32_u24 %s, 1280, %s' % (va, va))
    k('v_lshrrev_b32 %s, 4, %s' % (vb, vLANE))
    k('v_lshl_add_u32 %s, %s, 3, %s' % (vb, vb, va))
    k('v_and_b32 v251, 48, %s' % vLANE)
    k('v_add_u32 %s, v251, %s' % (va, va))
    k('s_lshl_b32 s26, %s, 1' % sTE)
    k('s_add_u32 s26, s26, %s' % sW)
    k('s_mul_i32 s26, s26, %d' % (16 * 1280))
    k('s_mul_i32 s24, %s, 160' % sCB)
    k('s_add_u32 s26, s26, s24')


def poll8(k, base, name):
    k('s_lshl_b32 s25, %s, 2' % sTE)
    k('s_add_u32 s25, s25, %s' % sW)
    k('s_lshl_b32 s25, s25, %d' % (FS + 2))
    k('s_add_u32 s25, s25, %d' % base)
    k('v_and_b32 v250, 3, %s' % vLANE)
    k('v_lshlrev_b32 v250, %d, v250' % FS)
    k('v_bfe_u32 v251, %s, 2, 1' % vLANE)
    k('v_lshl_add_u32 v250, v251, %d, v250' % (FS + 4))
    poll(k, 'v250', 's25', name)


def ksplit_gemm(k, nks, wreg, actreg, act_ops, first, nbuf):
    vq = Fill(k)
    issued = [0]

    def push(s):
        ops = act_ops(s)
        ops[0] = ['s_add_u32 s74, %s, %d' % (sW, s + 1), 's_and_b32 s74, s74, 3'] + ops[0]
        for op in ops:
            vq.add(op)

    for s in range(4):
        push(s)
    vq.run(first)
    nissued = first
    f = Fill(k)
    for s in range(4):
        acc = 20 * (s & 1)
        n = 0
        for ks in range(nks):
            while nissued <= s * nks + ks:
                vq.run(1)
                nissued += 1
            for ct in range(5):
                a = V(acc + 4 * ct, 4)
                k('%s %s, %s, %s, %s' % (M16, a, wreg(5 * ks + ct), actreg(s, ks), a if ks else '0'))
                n += 1
                if ct == 0 and vq.q:
                    vq.run(1)
                    nissued += 1
                elif n > 4:
                    f.run(2 if nks == 5 else 1)
        f.flush()
        if s < 3:
            f.add('s_add_u32 s27, %s, %d' % (sW, s + 1))
            f.add('s_and_b32 s27, s27, 3')
            f.add('s_mul_i32 s27, s27, 15360')
            f.add('v_add_u32 v60, s27, %s' % vL16)
            for ct in range(5):
                f.add('ds_write_b128 v60, %s offset:%d' % (V(acc + 4 * ct, 4), 5120 * s + 1024 * ct))
        if s == 2:
            f.add('s_mul_i32 s27, %s, 15360' % sW)
            f.add('v_add_u32 v61, s27, %s' % vL16)
            f.add(lambda: k.drain(vm=False))
            f.add('s_barrier')
            R = [40, 160, 0]
            for q in range(3):
                for ct in range(5):
                    f.add('ds_read_b128 %s, v61 offset:%d' % (V(R[q] + 4 * ct, 4), 5120 * q + 1024 * ct))
    for p in range(10):
        k('v_pk_add_f32 %s, %s, %s' % (V(40 + 2 * p, 2), V(40 + 2 * p, 2), V(160 + 2 * p, 2)))
    for p in range(10):
        k('v_pk_add_f32 %s, %s, %s' % (V(40 + 2 * p, 2), V(40 + 2 * p, 2), V(2 * p, 2)))
    for p in range(10):
        k('v_pk_add_f32 %s, %s, %s' % (V(20 + 2 * p, 2), V(20 + 2 * p, 2), V(40 + 2 * p, 2)))


def xreduce(k, r, t):
    k('v_mov_b32 %s, %s' % (t, r))
    k('v_permlane16_swap_b32 %s, %s' % (r, t))
    k('v_add_f32 %s, %s, %s' % (r, r, t))
    k('v_mov_b32 %s, %s' % (t, r))
    k('v_permlane32_swap_b32 %s, %s' % (r, t))
    k('v_add_f32 %s, %s, %s' % (r, r, t))


def phase_e(k):
    k.comment('---- phase E: O projection')
    XR, GA, XF = 88, 100, 120
    row_offsets(k, 'v158', 'v159')
    k('buffer_load_dwordx4 %s, v158, %s, s26 offen nt' % (V(XR, 4), XS))
    k('buffer_load_dwordx4 %s, v158, %s, s26 offen offset:64 nt' % (V(XR + 4, 4), XS))
    k('buffer_load_dwordx2 %s, v159, %s, s26 offen offset:128 nt' % (V(XR + 8, 2), XS))
    colconst_issue(k, 2, 140)
    k('s_lshl_b32 s24, %s, 4' % sTB)
    k('s_add_u32 s24, s24, %s' % sJ)
    k('s_lshl_b32 s24, s24, %d' % FS)
    k('s_add_u32 s24, s24, %d' % FO)
    k.wait_vm(G.tok_o)
    run_ops(k, [flag_ops('s24')])
    stamp(k)
    run_ops(k, G.bg_left)
    aug_issue(k)
    k('s_mov_b32 s73, s74')
    run_ops(k, w16_ops('s73', G.wd_d, G.wd_e, wd_reg))
    colconst_finish(k, 140, GA)
    for d in range(10):
        unpack(k, V(XF + 2 * d), V(XF + 2 * d + 1), V(XR + d))
    aug_finish(k)
    k('s_lshr_b32 s24, %s, 1' % sW)
    k('s_add_u32 s24, s24, %s' % sTE)
    k('s_mul_i32 s24, s24, 40960')
    k('s_mul_i32 s25, %s, 5120' % sCB)
    k('s_add_u32 s24, s24, s25')
    k('s_and_b32 s25, %s, 1' % sW)
    k('s_lshl_b32 s25, s25, 8')
    k('s_add_u32 s24, s24, s25')
    k('s_add_u32 s28, s24, %d' % X1)
    k('s_add_u32 s29, s28, 4096')
    k('v_and_b32 v62, 15, %s' % vLANE)
    k('v_lshlrev_b32 v62, 4, v62')
    k('v_lshrrev_b32 v63, 5, %s' % vLANE)
    k('v_lshl_add_u32 v62, v63, 9, v62')
    k('v_bfe_u32 v63, %s, 4, 1' % vLANE)
    k('v_lshl_add_u32 v62, v63, 3, v62')
    k('v_and_b32 v63, 15, %s' % vLANE)
    k('v_lshlrev_b32 v63, 3, v63')
    k('v_lshrrev_b32 v64, 5, %s' % vLANE)
    k('v_lshl_add_u32 v63, v64, 2, v63')
    k('s_lshl_b32 s66, %s, 1' % sTE)
    k('s_add_u32 s66, s66, %s' % sW)
    k('s_lshl_b32 s66, s66, 3')
    k('s_add_u32 s66, s66, %s' % sCB)
    k('s_lshl_b32 s67, s66, 7')
    k('s_add_u32 s67, s67, %d' % STATS)
    k('s_lshl_b32 s66, s66, %d' % FS)
    k('s_add_u32 s66, s66, %d' % FX1)
    k('s_mul_i32 s75, %s, 40960' % sTE)
    k('s_add_u32 s75, s75, %d' % O)
    k('s_lshl_b32 s24, %s, 11' % sW)
    k('s_add_u32 s76, s75, s24')
    k('s_add_u32 s76, s76, 32768')
    k('s_lshl_b32 s24, %s, 13' % sW)
    k('s_add_u32 s75, s75, s24')
    k('s_barrier')
    poll8(k, FO, 'o')
    stamp(k)

    def ereg(s, ks):
        return A(100 + 4 * ((5 * s + ks) % 15), 4)

    def act_ops(s):
        pre = ['s_lshr_b32 s24, s74, 1', 's_mul_i32 s24, s24, 40960', 's_and_b32 s25, s74, 1', 's_lshl_b32 s25, s25, 8',
               's_add_u32 s24, s24, s25', 's_add_u32 s77, s24, s76', 's_add_u32 s74, s24, s75']
        ops = []
        for ks in range(4):
            if ks == 2:
                pre = ['s_add_u32 s74, s74, 4096']
            ops.append(pre + ['buffer_load_dwordx4 %s, %s, %s, s74 offen offset:%d sc1' % (ereg(s, ks), vOFA, WS, 2048 * (ks & 1))])
            pre = []
        ops.append(['buffer_load_dwordx4 %s, %s, %s, s77 offen sc1' % (ereg(s, 4), vOFA, WS)])
        return ops

    ksplit_gemm(k, 5, wo_reg, ereg, act_ops, 10, 4)
    stamp(k)
    for d in range(10):
        x = V(20 + 2 * d, 2)
        k('v_pk_fma_f32 %s, %s, %s, %s' % (x, x, V(GA + 2 * d, 2), V(XF + 2 * d, 2)))
        k('v_cvt_pk_bf16_f32 %s, %s, %s' % (V(XR + d), V(20 + 2 * d), V(21 + 2 * d)))
        if d == 3:
            k('buffer_store_dwordx4 %s, %s, %s, s28 offen sc1' % (V(XR, 4), vOFA, WS))
        if d == 7:
            k('buffer_store_dwordx4 %s, %s, %s, s28 offen offset:2048 sc1' % (V(XR + 4, 4), vOFA, WS))
    k('buffer_store_dwordx2 %s, v62, %s, s29 offen sc1' % (V(XR + 8, 2), WS))
    for d in range(10):
        x = V(20 + 2 * d, 2)
        if d == 0:
            k('v_pk_mul_f32 v[6:7], %s, %s' % (x, x))
        else:
            k('v_pk_add_f32 v[4:5], %s, %s' % (x, 'v[20:21]' if d == 1 else 'v[4:5]'))
            k('v_pk_fma_f32 v[6:7], %s, %s, v[6:7]' % (x, x))
    k('v_add_f32 v4, v4, v5')
    k('v_add_f32 v6, v6, v7')
    k('v_permlane32_swap_b32 v4, v6')
    k('v_add_f32 v4, v4, v6')
    k('v_mov_b32 v5, v4')
    k('v_permlane16_swap_b32 v4, v5')
    k('v_add_f32 v4, v4, v5')
    G.tok_x = k('buffer_store_dword v4, v63, %s, s67 offen sc1' % WS)
    for d in range(10):
        k('v_accvgpr_write_b32 %s, %s' % (A(240 + d), V(XR + d)))
    stamp(k)


def split2(k, hi, lo, x):
    k('v_cvt_pk_bf16_f32 %s, %s, %s' % (hi, x, x))
    k('v_and_b32 %s, 0xffff0000, %s' % (lo, hi))
    k('v_sub_f32 %s, %s, %s' % (x, x, lo))
    k('v_cvt_pk_bf16_f32 %s, %s, %s' % (lo, x, x))


AT = 64


def aug_issue(k):
    k('s_min_u32 s24, %s, 2' % sW)
    k('s_mul_i32 s25, %s, 3' % sJ)
    k('s_add_u32 s25, s25, s24')
    k('s_lshl_b32 s25, s25, 9')
    k('s_add_u32 s25, s25, %d' % CSB)
    k('v_and_b32 v84, 31, %s' % vLANE)
    k('v_lshrrev_b32 v85, 5, %s' % vLANE)
    k('v_lshlrev_b32 v86, 2, v84')
    k('v_lshl_add_u32 v86, v85, 8, v86')
    for p in range(8):
        k('buffer_load_dword %s, v86, %s, s25 offen sc1' % (V(AT + 2 * p), WS))
        k('buffer_load_dword %s, v86, %s, s25 offen offset:128 sc1' % (V(AT + 1 + 2 * p), WS))
        if p < 7:
            k('s_add_u32 s25, s25, %d' % (48 * 512))


def aug_finish(k):
    for st in (4, 2, 1):
        for p in range(st):
            k('v_pk_add_f32 %s, %s, %s' % (V(AT + 2 * p, 2), V(AT + 2 * p, 2), V(AT + 2 * (p + st), 2)))
    split2(k, 'v66', 'v67', 'v64')
    split2(k, 'v68', 'v69', 'v65')
    k('s_mov_b32 s26, 0xffff')
    k('v_bfi_b32 v72, s26, v66, v67')
    k('v_bfi_b32 v73, s26, v66, v68')
    k('v_bfi_b32 v74, s26, v69, v68')
    for d in range(5):
        k('v_mov_b32 %s, 0' % V(75 + d))
    k('s_min_u32 s24, %s, 2' % sW)
    k('s_lshl_b32 s24, s24, 11')
    k('s_add_u32 s24, s24, %d' % AUG)
    k('v_lshlrev_b32 v86, 4, v84')
    k('v_lshl_add_u32 v86, v85, 10, v86')
    k('v_add_u32 v86, s24, v86')
    k('ds_write_b128 v86, v[72:75]')
    k('ds_write_b128 v86, v[76:79] offset:512')


def phase_f(k):
    k.comment('---- phase F: gate/up')
    WB, BA, CK = 96, 144, 148
    k('s_barrier')
    r2 = ring_ops((RING - RING0) // 4, RING // 4)
    run_ops(k, r2[:8])
    k.wait_vm(G.tok_x)
    run_ops(k, [flag_ops('s66')])
    stamp(k)
    run_ops(k, r2[8:])
    run_ops(k, w16_ops('s73', G.wd_e, G.wd_early, wd_reg))
    k('v_lshrrev_b32 v161, 5, %s' % vLANE)
    k('v_add_u32 v154, 65536, %s' % vL16)
    k('v_add_u32 v155, 131072, %s' % vL16)
    k('s_lshl_b32 s25, %s, %d' % (sTB, FS + 4))
    k('s_add_u32 s25, s25, %d' % FX1)
    k('v_and_b32 v250, 15, %s' % vLANE)
    k('v_lshlrev_b32 v250, %d, v250' % FS)
    poll(k, 'v250', 's25', 'x1')
    stamp(k)
    k('s_mul_i32 s68, %s, 40960' % sTB)
    k('s_add_u32 s68, s68, %d' % X1)
    vq, va = Fill(k), Fill(k)
    for ks in range(40):
        pre = ['s_add_u32 s68, s68, 4096'] if ks & 3 == 0 and ks else []
        va.add(pre + ['buffer_load_dwordx4 %s, %s, %s, s68 offen offset:%d sc1' % (A(4 * ks, 4), vL16, WS, 1024 * (ks & 3))])
    va.run(10)
    k('s_barrier')
    k('s_lshl_b32 s69, %s, 11' % sTB)
    k('s_add_u32 s69, s69, %d' % STATS)
    k('v_and_b32 v160, 15, %s' % vLANE)
    k('v_lshlrev_b32 v160, 3, v160')
    k('v_bfe_u32 v162, %s, 4, 1' % vLANE)
    k('v_lshl_add_u32 v160, v162, 10, v160')
    k('v_lshl_add_u32 v160, v161, 9, v160')
    for c in range(4):
        vq.add('buffer_load_dwordx2 %s, v160, %s, s69 offen offset:%d sc1' % (V(164 + 2 * c, 2), WS, 128 * c))

    def stats():
        for h in range(2):
            k('v_add_f32 %s, %s, %s' % (V(172 + h), V(164 + h), V(166 + h)))
            k('v_add_f32 v174, %s, %s' % (V(168 + h), V(170 + h)))
            k('v_add_f32 %s, %s, v174' % (V(172 + h), V(172 + h)))
            k('v_mov_b32 v174, %s' % V(172 + h))
            k('v_permlane32_swap_b32 %s, v174' % V(172 + h))
            k('v_add_f32 %s, %s, v174' % (V(172 + h), V(172 + h)))
        k('v_mul_f32 v172, %s, v172' % hex(f2u(-1.0 / 640)))
        k('v_mul_f32 v173, %s, v173' % hex(f2u(1.0 / 640)))
        k('v_fma_f32 v173, -v172, v172, v173')
        k('v_max_f32 v173, 0, v173')
        k('v_add_f32 %s, %s, v173' % (V(CK + 4), hex(f2u(1e-5))))
        k('v_rsq_f32 v174, %s' % V(CK + 4))
        k('v_mul_f32 v173, %s, v174' % V(CK + 4))
        cc = -2.0 * 0.7978845608028654 * LOG2E
        k('v_mul_f32 %s, %s, v174' % (V(CK), hex(f2u(cc))))
        k('v_mul_f32 v175, v174, v174')
        k('v_mul_f32 v175, %s, v175' % hex(f2u(0.044715)))
        k('v_mul_f32 %s, %s, v175' % (V(CK + 2), V(CK)))
        split2(k, 'v164', 'v165', 'v172')
        split2(k, 'v166', 'v167', 'v173')
        k('s_mov_b32 s26, 0xffff')
        k('v_mov_b32 %s, v164' % V(BA))
        k('v_bfi_b32 %s, s26, v165, v166' % V(BA + 1))
        k('v_bfi_b32 %s, s26, v166, v167' % V(BA + 2))
        k('v_mov_b32 %s, 0' % V(BA + 3))


    def ldsaddr(byte):
        base = [vL16, 'v154', 'v155'][byte >> 16]
        return base, byte & 0xffff

    steps = []
    for ks in range(41):
        for t in range(4):
            byte = ((RING0 + 4 * ks + t) % RING) * 1024 if ks < 40 else AUG + 1024 * t
            steps.append((t, byte, A(4 * ks, 4) if ks < 40 else V(BA, 4), ks == 0, 4 * ks + t if ks < 40 else None))
    n1 = len(steps)
    for ks in range(41):
        for t in range(2):
            byte = ((RING0 + 160 + 2 * ks + t) % RING) * 1024 if ks < 40 else AUG + 1024 * (4 + t)
            steps.append((4 + t, byte, A(4 * ks, 4) if ks < 40 else V(BA, 4), ks == 0, 160 + 2 * ks + t if ks < 40 else None))
    AH, NB = 8, 12
    refill = {32: (38, 46), 64: (46, 54), 96: (54, 60)}
    toks = []
    vis = [RING]

    def rd(n):
        blk = steps[n][4]
        if blk is not None and blk >= vis[0]:
            while not toks:
                vq.run(1)
            t, g1 = toks.pop(0)
            k.wait_vm(t)
            k('s_barrier')
            vis[0] = 4 * g1
        base, off = ldsaddr(steps[n][1])
        k('ds_read_b128 %s, %s offset:%d' % (V(WB + 4 * (n % NB), 4), base, off))

    f = Fill(k)
    k('s_mul_i32 s28, %s, 98304' % sTB)
    k('s_mul_i32 s24, %s, 6144' % sJ)
    k('s_add_u32 s28, s28, s24')
    k('s_add_u32 s28, s28, %d' % HH)
    k('s_add_u32 s29, s28, 4096')

    def gelu(p, add, packed):
        g, u, T0 = 32 * p, 32 * p + 16, 160
        for e in range(8):
            a, b, t = V(g + 2 * e, 2), V(u + 2 * e, 2), V(T0 + 2 * (e & 3), 2)
            aa, bb, tt = [V(g + 2 * e + h) for h in range(2)], [V(u + 2 * e + h) for h in range(2)], [V(T0 + 2 * (e & 3) + h) for h in range(2)]
            if packed:
                add('v_pk_mul_f32 %s, %s, %s' % (t, a, a))
                add('v_pk_fma_f32 %s, %s, %s, %s op_sel_hi:[1,0,0]' % (t, t, V(CK + 2, 2), V(CK, 2)))
                add('v_pk_mul_f32 %s, %s, %s' % (t, t, a))
                add('v_exp_f32 %s, %s' % (tt[0], tt[0]))
                add('v_exp_f32 %s, %s' % (tt[1], tt[1]))
                add('v_pk_mul_f32 %s, %s, %s' % (b, a, b))
                add('v_pk_fma_f32 %s, %s, %s, %s op_sel_hi:[1,0,0]' % (t, t, V(CK + 4, 2), V(CK + 4, 2)))
                add('v_rcp_f32 %s, %s' % (tt[0], tt[0]))
                add('v_rcp_f32 %s, %s' % (tt[1], tt[1]))
                add('v_pk_mul_f32 %s, %s, %s' % (b, b, t))
            else:
                for h in range(2):
                    add('v_mul_f32 %s, %s, %s' % (tt[h], aa[h], aa[h]))
                    add('v_fma_f32 %s, %s, %s, %s' % (tt[h], tt[h], V(CK + 2), V(CK)))
                    add('v_mul_f32 %s, %s, %s' % (tt[h], tt[h], aa[h]))
                    add('v_exp_f32 %s, %s' % (tt[h], tt[h]), 2)
                    add('v_mul_f32 %s, %s, %s' % (bb[h], aa[h], bb[h]))
                    add('v_fma_f32 %s, %s, %s, %s' % (tt[h], tt[h], V(CK + 4), V(CK + 4)))
                    add('v_rcp_f32 %s, %s' % (tt[h], tt[h]), 2)
                for h in range(2):
                    add('v_mul_f32 %s, %s, %s' % (bb[h], bb[h], tt[h]))
            add('v_cvt_pk_bf16_f32 %s, %s, %s' % (V(g + e), bb[0], bb[1]))
            if e & 3 == 3:
                blk = 2 * p + (e >> 2)
                G.tok_h = add('buffer_store_dwordx4 %s, %s, %s, %s offen offset:%d sc1' %
                              (V(g + (e & 4), 4), vL16, WS, 's28' if blk < 4 else 's29', 1024 * (blk & 3)))

    k.lg_batch = 2
    for n in range(AH):
        rd(n)
    wd_ops = w16_ops('s73', G.wd_early, 60, wd_reg)
    nwd = G.wd_early
    for n, (t, byte, B, first, blk) in enumerate(steps):
        if n in refill:
            k('s_barrier')
            g0, g1 = refill[n]
            for op in ring_ops(g0, g1):
                vq.add(op)
            vq.add0(lambda g1=g1: toks.append((vq.last, g1)))
        if n == 136:
            stats()
        if n == n1:
            stamp(k)
        acc = V(16 * t, 16)
        k('%s %s, %s, %s, %s' % (M32, acc, V(WB + 4 * (n % NB), 4), B, '0' if first else acc))
        if n + AH < len(steps):
            rd(n + AH)
        if n < n1 and n & 1:
            if n & 3 == 1 and va.q:
                va.run(1)
            elif vq.q:
                vq.run(1)
            elif nwd < 36:
                run_ops(k, [wd_ops.pop(0)])
                nwd += 1
        if n >= n1 and n % 3 == 2 and wd_ops and nwd - 36 < (n - n1) // 2:
            run_ops(k, [wd_ops.pop(0)])
            nwd += 1
        if n == n1 + 2:
            gelu(0, f.add, False)
            gelu(1, f.add, False)
        f.run(4 + (n & 1))
    run_ops(k, wd_ops)
    f.flush()
    k.lg_batch = 1
    stamp(k)
    gelu(2, k, True)
    stamp(k)


def phase_g(k):
    k.comment('---- phase G: down projection')
    GB = 64
    colconst_issue(k, 5, 100)
    k('s_lshl_b32 s24, %s, 4' % sTB)
    k('s_add_u32 s24, s24, %s' % sJ)
    k('s_lshl_b32 s24, s24, %d' % FS)
    k('s_add_u32 s24, s24, %d' % FH)
    k.wait_vm(G.tok_h)
    run_ops(k, [flag_ops('s24')])
    stamp(k)
    colconst_finish(k, 100, GB)
    row_offsets(k, 'v62', 'v63')
    k('s_mov_b32 s28, s26')
    for d in range(10):
        k('v_accvgpr_read_b32 v2, %s' % A(240 + d))
        unpack(k, V(120 + 2 * d), V(121 + 2 * d), 'v2')
    k('s_mul_i32 s75, %s, 98304' % sTE)
    k('s_mul_i32 s24, %s, 24576' % sW)
    k('s_add_u32 s75, s75, s24')
    k('s_add_u32 s75, s75, %d' % HH)
    k('s_barrier')
    poll8(k, FH, 'h')
    stamp(k)

    def areg(s, ks):
        return A(96 + 4 * ((12 * s + ks) % 16), 4)

    def act_ops(s):
        pre = ['s_lshr_b32 s24, s74, 1', 's_mul_i32 s24, s24, 98304', 's_and_b32 s74, s74, 1', 's_lshl_b32 s74, s74, 8',
               's_add_u32 s74, s74, s24', 's_add_u32 s74, s74, s75']
        ops = []
        for ks in range(12):
            ops.append(pre + ['buffer_load_dwordx4 %s, %s, %s, s74 offen offset:%d sc1' % (areg(s, ks), vOFA, WS, 2048 * (ks & 1))])
            pre = ['s_add_u32 s74, s74, 4096'] if ks & 1 else []
        return ops

    ksplit_gemm(k, 12, wd_reg, areg, act_ops, 10, 3)
    stamp(k)
    for d in range(10):
        k('v_pk_fma_f32 %s, %s, %s, %s' % (V(20 + 2 * d, 2), V(20 + 2 * d, 2), V(GB + 2 * d, 2), V(120 + 2 * d, 2)))
        k('v_cvt_pk_bf16_f32 %s, %s, %s' % (V(40 + d), V(20 + 2 * d), V(21 + 2 * d)))
        if d == 3:
            k('buffer_store_dwordx4 v[40:43], v62, %s, s28 offen' % OUTS)
        if d == 7:
            k('buffer_store_dwordx4 v[44:47], v62, %s, s28 offen offset:64' % OUTS)
    k('buffer_store_dwordx2 v[48:49], v63, %s, s28 offen offset:128' % OUTS)


def gen_main(prof=False, stop=99):
    G.prof, G.stop, G.nstamp = prof, stop, 0
    k = K()
    from gen_front import front
    header(k, KNAME)
    if prof:
        k('s_memrealtime s[100:101]')
        stamp(k)
    front(k)
    stamp(k)
    for n, ph in enumerate((phase_c, phase_d, phase_e, phase_f, phase_g)):
        if n < stop:
            ph(k)
    if prof:
        k.drain(force=True)
        stamp(k)
        k('s_lshl_b32 s24, s2, 2')
        k('s_add_u32 s24, s24, %s' % sW)
        k('s_lshl_b32 s24, s24, 8')
        k('s_add_u32 s24, s24, %d' % PROF)
        k('s_memrealtime s[30:31]')
        k('v_writelane_b32 v249, s100, 62')
        k('v_writelane_b32 v249, s30, 63')
        k('v_lshlrev_b32 v0, 2, %s' % vLANE)
        k('buffer_store_dword v249, v0, %s, s24 offen' % WS)
    k.label('L_main_end')
    k('s_endpgm')
    assert G.nstamp <= 60, G.nstamp
    import sys
    sys.stderr.write('stamps %d\n' % G.nstamp)
    return k.text(), descriptor(KNAME, 512, 102, 256), k
```

```python
from asmgen import *
from layout import *

LOG2E = 1.4426950408889634
NAME = 'adaLN_cond__sliding_block__glu_gated_geglu__prompt'
KA = dict(x=0, wqkv=8, wo=16, wg=32, wu=40, wd=48, c=56, wmod=64, out=72, dbg=80, ws=88)
SIZE = dict(x=T * D * 2, wqkv=D * 3 * D * 2, wo=D * D * 2, wg=D * F * 2, wu=D * F * 2, wd=F * D * 2, c=D * 2,
            wmod=D * 6 * D * 2, out=T * D * 2, dbg=256, ws=WS_END)


WSOFF = [0]


def magic(d, n):
    for sh in range(8, 24):
        m = -(-(1 << sh) // d)
        if all((x * m) >> sh == x // d for x in range(n)) and (n - 1) * m < (1 << 32):
            return m, sh
    raise ValueError


def sdiv(k, dst, src, d, n):
    m, sh = magic(d, n)
    k('s_mul_i32 %s, %s, %d' % (dst, src, m))
    k('s_lshr_b32 %s, %s, %d' % (dst, dst, sh))


def vdiv(k, dst, src, d, n):
    m, sh = magic(d, n)
    k('v_mul_u32_u24 %s, %d, %s' % (dst, m, src))
    k('v_lshrrev_b32 %s, %d, %s' % (dst, sh, dst))


def srd(k, sb, name):
    k('s_load_dwordx2 %s, s[0:1], %d' % (S(sb, 2), KA[name]))
    if name == 'ws' and WSOFF[0]:
        k('s_add_u32 %s, %s, %d' % (S(sb), S(sb), WSOFF[0]))
        k('s_addc_u32 %s, %s, 0' % (S(sb + 1), S(sb + 1)))
    k('s_mov_b32 %s, %d' % (S(sb + 2), SIZE[name]))
    k('s_mov_b32 %s, 0x20000' % S(sb + 3))


def unpack(k, dlo, dhi, src):
    k('v_lshlrev_b32 %s, 16, %s' % (dlo, src))
    k('v_and_b32 %s, 0xffff0000, %s' % (dhi, src))


def rbf(k, r):
    k('v_cvt_pk_bf16_f32 %s, %s, %s' % (r, r, r))
    k('v_lshlrev_b32 %s, 16, %s' % (r, r))


def header(k, name):
    k.raw('.globl %s' % name)
    k.raw('.p2align 8')
    k.raw('.type %s,@function' % name)
    k.raw('%s:' % name)


def descriptor(name, nv, ns, acc):
    return '''.p2align 6
.amdhsa_kernel %s
  .amdhsa_next_free_vgpr %d
  .amdhsa_next_free_sgpr %d
  .amdhsa_accum_offset %d
  .amdhsa_group_segment_fixed_size 0
  .amdhsa_kernarg_size 96
  .amdhsa_user_sgpr_count 2
  .amdhsa_user_sgpr_kernarg_segment_ptr 1
  .amdhsa_system_sgpr_workgroup_id_x 1
  .amdhsa_float_denorm_mode_32 3
.end_amdhsa_kernel
''' % (name, nv, ns, acc)


WS = 's[4:7]'


def gen_mod():
    k = K()
    header(k, 'mod_kernel')
    k('s_cmp_ge_u32 s2, 240')
    k('s_cbranch_scc1 L_mod_end')
    srd(k, 4, 'ws')
    srd(k, 8, 'c')
    srd(k, 12, 'wmod')
    sdiv(k, 's16', 's2', 60, 240)
    k('s_mul_i32 s17, s16, 60')
    k('s_sub_u32 s17, s2, s17')
    k('v_and_b32 v1, 7, v0')
    k('v_lshrrev_b32 v2, 3, v0')
    k('v_mul_u32_u24 v3, 7680, v2')
    k('v_lshl_add_u32 v3, v1, 4, v3')
    k('v_lshlrev_b32 v4, 1, v2')
    k('s_mul_i32 s18, s16, %d' % (160 * 7680))
    k('s_lshl_b32 s19, s17, 7')
    k('s_add_u32 s18, s18, s19')
    k('s_mul_i32 s19, s16, 320')
    for it in range(5):
        k('buffer_load_ushort %s, v4, s[8:11], s19 offen offset:%d' % (V(8 + it), 64 * it))
    for it in range(5):
        k('buffer_load_dwordx4 %s, v3, s[12:15], s18 offen nt' % V(16 + 4 * it, 4))
        if it < 4:
            k('s_add_u32 s18, s18, %d' % (32 * 7680))
    for it in range(5):
        c = V(8 + it)
        k('v_lshlrev_b32 %s, 16, %s' % (c, c))
        k('v_mul_f32 v13, %s, %s' % (hex(f2u(-LOG2E)), c))
        k('v_exp_f32 v13, v13')
        k('v_add_f32 v13, 1.0, v13')
        k('v_rcp_f32 v13, v13')
        k('v_mul_f32 %s, %s, v13' % (c, c))
        rbf(k, c)
    for it in range(5):
        for d in range(4):
            unpack(k, 'v14', 'v15', V(16 + 4 * it + d))
            if it == 0:
                k('v_mul_f32 %s, %s, v14' % (V(40 + 2 * d), V(8)))
                k('v_mul_f32 %s, %s, v15' % (V(41 + 2 * d), V(8)))
            else:
                k('v_fmac_f32 %s, %s, v14' % (V(40 + 2 * d), V(8 + it)))
                k('v_fmac_f32 %s, %s, v15' % (V(41 + 2 * d), V(8 + it)))
    for n in range(4):
        k('v_permlane32_swap_b32 %s, %s' % (V(40 + n), V(44 + n)))
    for n in range(4):
        k('v_add_f32 %s, %s, %s' % (V(40 + n), V(40 + n), V(44 + n)))
    for n in range(2):
        k('v_permlane16_swap_b32 %s, %s' % (V(40 + n), V(42 + n)))
    for n in range(2):
        k('v_add_f32 %s, %s, %s' % (V(40 + n), V(40 + n), V(42 + n)))
    for n in range(2):
        k('v_add_f32_dpp %s, %s, %s row_ror:8 row_mask:0xf bank_mask:0xf' % (V(42 + n), V(40 + n), V(40 + n)))
    k('v_lshrrev_b32 v5, 6, v0')
    k('v_lshlrev_b32 v5, 8, v5')
    k('v_lshl_add_u32 v5, v1, 5, v5')
    k('v_bfe_u32 v6, v0, 4, 2')
    k('v_lshl_add_u32 v5, v6, 3, v5')
    k('ds_write_b64 v5, v[42:43]')
    k.drain()
    k('s_barrier')
    k('v_cmp_gt_u32 vcc, 64, v0')
    k('s_and_saveexec_b64 s[20:21], vcc')
    k('s_cbranch_execz L_mod_end')
    k('v_lshlrev_b32 v5, 2, v0')
    for n in range(4):
        k('ds_read_b32 %s, v5 offset:%d' % (V(44 + n), 256 * n))
    k('v_add_f32 v44, v44, v45')
    k('v_add_f32 v46, v46, v47')
    k('v_add_f32 v44, v44, v46')
    k('s_mul_i32 s18, s16, %d' % (3840 * 4))
    k('s_lshl_b32 s19, s17, 8')
    k('s_add_u32 s18, s18, s19')
    k('buffer_store_dword v44, v5, s[4:7], s18 offen offset:%d' % MODP)
    k.label('L_mod_end')
    k('s_endpgm')
    return k.text(), descriptor('mod_kernel', 64, 32, 64)


def mod_final_to_lds(k, first, second, nq, soff, ldsbase, tmp):
    rounds = -(-2 * nq // 256)
    for r in range(rounds):
        t, a, b = V(tmp), V(tmp + 1), V(tmp + 2)
        k('v_add_u32 %s, %d, v0' % (t, 256 * r))
        k('v_cmp_le_u32 vcc, %d, %s' % (nq, t))
        k('v_mov_b32 %s, %d' % (a, first * 2560))
        k('v_mov_b32 %s, %d' % (b, second * 2560 - nq * 16))
        k('v_cndmask_b32 %s, %s, %s, vcc' % (a, a, b))
        k('v_lshl_add_u32 %s, %s, 4, %s' % (a, t, a))
        k('v_mov_b32 %s, 0' % b)
        k('v_cndmask_b32 %s, %s, 1.0, vcc' % (b, b))
        k('v_cmp_gt_u32 vcc, %d, %s' % (2 * nq, t))
        k('s_and_saveexec_b64 s[30:31], vcc')
        lab = 'L_mf_%d_%d' % (k.nid, r)
        k('s_cbranch_execz %s' % lab)
        k('s_mov_b32 s28, %s' % (soff if soff else '0'))
        for p in range(4):
            k('buffer_load_dwordx4 %s, %s, s[4:7], s28 offen' % (V(tmp + 4 + 4 * p, 4), a))
            if p < 3:
                k('s_add_u32 s28, s28, %d' % (3840 * 4))
        for d in range(4):
            x = [V(tmp + 4 + 4 * p + d) for p in range(4)]
            k('v_add_f32 %s, %s, %s' % (x[0], x[0], x[1]))
            k('v_add_f32 %s, %s, %s' % (x[2], x[2], x[3]))
            k('v_add_f32 %s, %s, %s' % (x[0], x[0], x[2]))
            rbf(k, x[0])
            k('v_add_f32 %s, %s, %s' % (x[0], x[0], b))
            rbf(k, x[0])
        k('v_lshlrev_b32 %s, 4, %s' % (t, t))
        k('ds_write_b128 %s, %s offset:%d' % (t, V(tmp + 4, 4), ldsbase))
        k.label(lab)
        k.drain(force=True)
        k('s_mov_b64 exec, s[30:31]')


def stage40(k, nrows, pitch, srdname, rowexpr, soff):
    n = nrows * 40
    rounds = -(-n // 256)
    for it in range(rounds):
        c, row, cc, l = V(8), V(9), V(10), V(12 + it)
        k('v_add_u32 %s, %d, v0' % (c, 256 * it))
        vdiv(k, row, c, 40, 256 * rounds)
        k('v_mul_u32_u24 %s, 40, %s' % (cc, row))
        k('v_sub_u32 %s, %s, %s' % (cc, c, cc))
        k('v_mul_u32_u24 %s, %d, %s' % (l, pitch, row))
        k('v_lshl_add_u32 %s, %s, 4, %s' % (l, cc, l))
        rowexpr(k, row, V(11))
        k('v_lshl_add_u32 %s, %s, 4, %s' % (row, cc, row))
        if 256 * (it + 1) > n:
            k('v_cmp_le_u32 vcc, %d, %s' % (n, c))
            k('v_mov_b32 %s, 0x7fffffff' % V(11))
            k('v_cndmask_b32 %s, %s, %s, vcc' % (row, row, V(11)))
        k('buffer_load_dwordx4 %s, %s, %s, %s offen nt' % (V(20 + 4 * it, 4), row, srdname, soff))
    for it in range(rounds):
        k('ds_write_b128 %s, %s' % (V(12 + it), V(20 + 4 * it, 4)))
    k.drain()
    k('s_barrier')


def lane_parts(k):
    k('v_and_b32 v1, 63, v0')
    k('v_lshrrev_b32 v2, 6, v0')
    k('v_readfirstlane_b32 s16, v2')
    k('v_and_b32 v3, 3, v0')
    k('v_bfe_u32 v4, v0, 2, 2')
    k('v_bfe_u32 v5, v0, 4, 2')
    k('v_lshlrev_b32 v6, 4, v1')


def job_wqkv(k):
    P = 656
    srd(k, 8, 'wqkv')
    sdiv(k, 's18', 's17', 6, 240)
    k('s_mul_i32 s19, s18, 6')
    k('s_sub_u32 s19, s17, s19')
    k('s_and_b32 s20, s19, 1')
    k('s_lshr_b32 s19, s19, 1')
    k('s_mul_i32 s21, s18, %d' % (16 * 3840))
    k('s_mul_i32 s22, s19, 1280')
    k('s_add_u32 s21, s21, s22')
    k('s_mul_i32 s22, s20, 640')
    k('s_add_u32 s21, s21, s22')
    stage40(k, 16, P, 's[8:11]', lambda k, row, t: k('v_mul_u32_u24 %s, 3840, %s' % (row, row)), 's21')
    k('v_lshrrev_b32 v8, 1, v5')
    k('v_lshl_add_u32 v9, v8, 3, v4')
    k('v_mul_u32_u24 v9, %d, v9' % P)
    k('s_mul_i32 s22, s16, 160')
    k('v_add_u32 v9, s22, v9')
    k('v_and_b32 v10, 1, v5')
    k('v_mul_u32_u24 v10, 40, v10')
    k('v_lshlrev_b32 v11, 1, v3')
    k('v_and_b32 v11, 2, v11')
    k('v_lshrrev_b32 v12, 1, v3')
    k('v_or_b32 v11, v11, v12')
    k('s_cmp_eq_u32 s19, 2')
    k('s_cselect_b64 vcc, -1, 0')
    k('v_cndmask_b32 v11, v3, v11, vcc')
    k('v_lshl_add_u32 v10, v11, 3, v10')
    k('v_add_u32 v10, v9, v10')
    k('v_mul_u32_u24 v11, 40, v3')
    k('v_add3_u32 v11, v9, v11, 32')
    for jl in range(2):
        for rd in range(2):
            k('ds_read_b64_tr_b16 %s, v10 offset:%d' % (V(20 + 4 * jl + 2 * rd, 2), 80 * jl + 4 * rd * P))
    for rd in range(2):
        k('ds_read_b64_tr_b16 %s, v11 offset:%d' % (V(28 + 2 * rd, 2), 4 * rd * P))
    k('s_lshl_b32 s22, s20, 3')
    k('s_lshl_b32 s23, s16, 1')
    k('s_add_u32 s22, s22, s23')
    k('s_mul_i32 s22, s22, 163840')
    k('s_add_u32 s22, s22, %d' % WQKV)
    k('s_mul_i32 s23, s18, 3072')
    k('s_add_u32 s24, s22, s23')
    k('s_lshl_b32 s23, s18, 10')
    k('s_add_u32 s25, s22, s23')
    k('s_add_u32 s25, s25, 122880')
    k('s_sub_u32 s23, s19, 1')
    k('s_lshl_b32 s23, s23, 10')
    k('s_add_u32 s23, s24, s23')
    k('s_cmp_eq_u32 s19, 0')
    k('s_cselect_b32 s25, s25, s23')
    k('buffer_store_dwordx4 v[20:23], v6, s[4:7], s25 offen')
    k('s_add_u32 s25, s25, 163840')
    k('buffer_store_dwordx4 v[24:27], v6, s[4:7], s25 offen')
    k('s_add_u32 s23, s19, 2')
    k('s_cmp_ge_u32 s23, 3')
    k('s_cselect_b32 s26, 3, 0')
    k('s_sub_u32 s23, s23, s26')
    k('s_lshl_b32 s23, s23, 7')
    k('s_add_u32 s24, s24, s23')
    k('v_bfe_u32 v12, v0, 3, 1')
    k('v_mul_u32_u24 v12, 163840, v12')
    k('v_and_b32 v13, 7, v0')
    k('v_lshl_add_u32 v12, v13, 4, v12')
    k('v_lshl_add_u32 v12, v8, 9, v12')
    k('buffer_store_dwordx4 v[28:31], v12, s[4:7], s24 offen offset:2048')


def allreduce16(k, r, t):
    for m in ('quad_perm:[1,0,3,2]', 'quad_perm:[2,3,0,1]', 'row_half_mirror', 'row_mirror'):
        k('v_add_f32_dpp %s, %s, %s %s row_mask:0xf bank_mask:0xf' % (t, r, r, m))
        r, t = t, r


def job_ln(k):
    srd(k, 8, 'x')
    k('v_and_b32 v7, 15, v0')
    k('v_lshrrev_b32 v8, 4, v0')
    k('v_mul_u32_u24 v9, 1280, v8')
    k('v_lshl_add_u32 v9, v7, 4, v9')
    k('s_mul_i32 s18, s17, %d' % (16 * 1280))
    for it in range(5):
        k('buffer_load_dwordx4 %s, v9, s[8:11], s18 offen offset:%d nt' % (V(64 + 4 * it, 4), 256 * it))
    mod_final_to_lds(k, 0, 1, 160, None, 0, 32)
    k('s_barrier')
    X = 84
    for d in range(20):
        unpack(k, V(X + 2 * d), V(X + 2 * d + 1), V(64 + d))
    k('v_pk_add_f32 v[10:11], %s, %s' % (V(X, 2), V(X + 2, 2)))
    for d in range(2, 20):
        k('v_pk_add_f32 v[10:11], v[10:11], %s' % V(X + 2 * d, 2))
    k('v_add_f32 v10, v10, v11')
    allreduce16(k, 'v10', 'v11')
    k('v_mul_f32 v10, %s, v10' % hex(f2u(1.0 / 640)))
    for d in range(20):
        k('v_pk_add_f32 %s, %s, v[10:11] op_sel_hi:[1,0] neg_lo:[0,1] neg_hi:[0,1]' % (V(X + 2 * d, 2), V(X + 2 * d, 2)))
    k('v_pk_mul_f32 v[12:13], %s, %s' % (V(X, 2), V(X, 2)))
    for d in range(1, 20):
        k('v_pk_fma_f32 v[12:13], %s, %s, v[12:13]' % (V(X + 2 * d, 2), V(X + 2 * d, 2)))
    k('v_add_f32 v12, v12, v13')
    allreduce16(k, 'v12', 'v13')
    k('v_mov_b32 v13, %s' % hex(f2u(1e-5)))
    k('v_fmac_f32 v13, %s, v12' % hex(f2u(1.0 / 640)))
    k('v_rsq_f32 v12, v13')
    k('v_lshlrev_b32 v14, 5, v7')
    k('s_lshr_b32 s19, s17, 1')
    k('s_mul_i32 s19, s19, 40960')
    k('s_and_b32 s20, s17, 1')
    k('s_lshl_b32 s20, s20, 8')
    k('s_add_u32 s19, s19, s20')
    k('s_add_u32 s19, s19, %d' % H1)
    k('v_lshlrev_b32 v15, 9, v7')
    k('v_lshl_add_u32 v15, v8, 4, v15')
    for it in range(5):
        for h in range(2):
            k('ds_read_b128 %s, v14 offset:%d' % (V(32 + 4 * h, 4), 512 * it + 16 * h))
            k('ds_read_b128 %s, v14 offset:%d' % (V(40 + 4 * h, 4), 2560 + 512 * it + 16 * h))
        for d in range(4):
            x = V(X + 8 * it + 2 * d, 2)
            k('v_pk_mul_f32 %s, %s, v[12:13] op_sel_hi:[1,0]' % (x, x))
            k('v_pk_fma_f32 %s, %s, %s, %s' % (x, x, V(40 + 2 * d, 2), V(32 + 2 * d, 2)))
            k('v_cvt_pk_bf16_f32 %s, %s, %s' % (V(64 + 4 * it + d), V(X + 8 * it + 2 * d), V(X + 8 * it + 2 * d + 1)))
        k('buffer_store_dwordx4 %s, v15, s[4:7], s19 offen' % V(64 + 4 * it, 4))
        if it < 4:
            k('s_add_u32 s19, s19, 8192')


def job_wgu(k):
    P = 144
    CB = 160 * P
    k('s_and_b32 s18, s17, 1')
    k('s_lshl_b32 s19, s18, 3')
    k('s_add_u32 s19, s19, %d' % KA['wg'])
    k('s_load_dwordx2 s[8:9], s[0:1], s19')
    k('s_mov_b32 s10, %d' % SIZE['wg'])
    k('s_mov_b32 s11, 0x20000')
    k('s_lshr_b32 s19, s17, 1')
    sdiv(k, 's20', 's19', 24, 96)
    k('s_mul_i32 s21, s20, 24')
    k('s_sub_u32 s19, s19, s21')
    k('v_and_b32 v7, 7, v0')
    k('v_lshrrev_b32 v8, 3, v0')
    k('v_mul_u32_u24 v9, 3072, v8')
    k('v_lshl_add_u32 v9, v7, 4, v9')
    k('v_mul_u32_u24 v10, %d, v8' % P)
    k('v_lshl_add_u32 v10, v7, 4, v10')
    k('s_mul_i32 s21, s20, %d' % (160 * 3072))
    k('s_lshl_b32 s22, s19, 7')
    k('s_add_u32 s21, s21, s22')
    for it in range(5):
        k('buffer_load_dwordx4 %s, v9, s[8:11], s21 offen nt' % V(64 + 4 * it, 4))
        if it < 4:
            k('s_add_u32 s21, s21, %d' % (32 * 3072))
    k('s_mul_i32 s23, s20, 640')
    mod_final_to_lds(k, 3, 4, 40, 's23', CB, 32)
    for it in range(5):
        k('ds_write_b128 v10, %s offset:%d' % (V(64 + 4 * it, 4), 32 * P * it))
    k.drain()
    k('s_barrier')
    k('v_lshrrev_b32 v8, 1, v5')
    k('v_lshl_add_u32 v9, v8, 3, v4')
    k('v_mul_u32_u24 v9, %d, v9' % P)
    k('v_and_b32 v10, 1, v5')
    k('v_lshlrev_b32 v10, 5, v10')
    k('v_lshl_add_u32 v10, v3, 3, v10')
    k('s_lshr_b32 s21, s16, 1')
    k('s_and_b32 s22, s16, 1')
    k('s_mul_i32 s23, s21, %d' % (80 * P))
    k('s_lshl_b32 s24, s22, 6')
    k('s_add_u32 s23, s23, s24')
    k('v_add3_u32 v9, v9, v10, s23')
    k('s_mul_i32 s23, s21, 320')
    k('v_lshl_add_u32 v10, v8, 5, s23')
    k('s_lshl_b32 s23, s19, 1')
    k('s_add_u32 s23, s23, s22')
    sdiv(k, 's24', 's23', 3, 48)
    k('s_mul_i32 s25, s24, 3')
    k('s_sub_u32 s25, s23, s25')
    k('s_mul_i32 s26, s20, 10')
    k('s_mul_i32 s27, s21, 5')
    k('s_add_u32 s26, s26, s27')
    k('s_mul_i32 s24, s24, 245760')
    k('s_add_u32 s24, s24, %d' % WGU)
    k('s_lshl_b32 s27, s18, 10')
    k('s_add_u32 s24, s24, s27')
    k('s_lshl_b32 s27, s25, 11')
    k('s_cmp_eq_u32 s25, 2')
    k('s_cselect_b32 s27, 163840, s27')
    k('s_cselect_b32 s29, 1, 2')
    k('s_lshl_b32 s29, s29, 11')
    k('s_add_u32 s24, s24, s27')
    k('s_mul_i32 s27, s26, s29')
    k('s_add_u32 s24, s24, s27')
    k('v_mov_b32 v12, 0')
    k('v_mov_b32 v14, 0')
    k('v_mov_b32 v15, 0')
    k('v_mov_b32 v13, 0')
    for ks in range(5):
        W = 64 + 4 * ks
        for rd in range(2):
            k('ds_read_b64_tr_b16 %s, v9 offset:%d' % (V(W + 2 * rd, 2), (16 * ks + 4 * rd) * P))
        for h in range(2):
            k('ds_read_b128 %s, v10 offset:%d' % (V(32 + 4 * h, 4), CB + 64 * ks + 16 * h))
            k('ds_read_b128 %s, v10 offset:%d' % (V(40 + 4 * h, 4), CB + 640 + 64 * ks + 16 * h))
        for d in range(4):
            unpack(k, 'v16', 'v17', V(W + d))
            k('v_pk_fma_f32 v[14:15], v[16:17], %s, v[14:15]' % V(32 + 2 * d, 2))
            k('v_pk_mul_f32 v[16:17], v[16:17], %s' % V(40 + 2 * d, 2))
            k('v_cvt_pk_bf16_f32 %s, v16, v17' % V(W + d))
            unpack(k, 'v16', 'v17', V(W + d))
            k('v_pk_add_f32 v[12:13], v[12:13], v[16:17]')
        k('buffer_store_dwordx4 %s, v6, s[4:7], s24 offen' % V(W, 4))
        if ks < 4:
            k('s_add_u32 s24, s24, s29')
    k('v_add_f32 v12, v12, v13')
    k('v_add_f32 v14, v14, v15')
    k('v_permlane32_swap_b32 v12, v14')
    k('v_add_f32 v12, v12, v14')
    k('s_lshl_b32 s24, s20, 1')
    k('s_add_u32 s24, s24, s21')
    k('s_mul_i32 s24, s24, 48')
    k('s_add_u32 s24, s24, s23')
    k('s_lshl_b32 s24, s24, 1')
    k('s_add_u32 s24, s24, s18')
    k('s_lshl_b32 s24, s24, 8')
    k('s_add_u32 s24, s24, %d' % CSB)
    k('v_lshlrev_b32 v13, 2, v1')
    k('buffer_store_dword v12, v13, s[4:7], s24 offen')


def job_w16(k, which):
    P = 656
    nks = 12 if which == 'wd' else 5
    srd(k, 8, which)
    k('s_lshr_b32 s18, s17, 1')
    k('s_and_b32 s19, s17, 1')
    sdiv(k, 's20', 's18', nks, 48)
    k('s_mul_i32 s21, s20, %d' % nks)
    k('s_sub_u32 s21, s18, s21')
    k('s_mul_i32 s22, s19, 640')
    if which == 'wd':
        k('s_mul_i32 s23, s18, %d' % (32 * 1280))
        k('s_add_u32 s22, s22, s23')

        def rowexpr(k, row, t):
            k('v_mul_u32_u24 %s, 1280, %s' % (row, row))
    else:
        k('s_mul_i32 s23, s20, 160')
        k('s_mul_i32 s24, s21, 40')
        k('s_cmp_eq_u32 s21, 4')
        k('s_cselect_b32 s24, 16, s24')
        k('s_cselect_b64 s[26:27], -1, 0')
        k('s_add_u32 s23, s23, s24')
        k('s_mul_i32 s23, s23, 1280')
        k('s_add_u32 s22, s22, s23')

        def rowexpr(k, row, t):
            k('v_lshrrev_b32 v40, 4, %s' % row)
            k('v_and_b32 v41, 15, %s' % row)
            k('v_mad_u32_u24 v41, v40, 20, v41')
            k('v_lshlrev_b32 v40, 2, v40')
            k('v_bfe_u32 v42, %s, 2, 1' % row)
            k('v_lshl_add_u32 v40, v42, 1, v40')
            k('v_bfe_u32 v42, %s, 3, 1' % row)
            k('v_add_u32 v40, v40, v42')
            k('v_and_b32 v42, 3, %s' % row)
            k('v_mad_u32_u24 v40, v40, 20, v42')
            k('v_cndmask_b32 %s, v41, v40, s[26:27]' % row)
            k('v_mul_u32_u24 %s, 1280, %s' % (row, row))
    stage40(k, 32, P, 's[8:11]', rowexpr, 's22')
    k('v_lshrrev_b32 v8, 1, v5')
    k('v_lshl_add_u32 v8, v8, 4, v4')
    k('v_and_b32 v9, 1, v5')
    k('v_lshl_add_u32 v8, v9, 2, v8')
    k('v_mul_u32_u24 v8, %d, v8' % P)
    k('s_mul_i32 s23, s16, 160')
    k('v_add_u32 v8, s23, v8')
    k('v_lshl_add_u32 v9, v3, 4, v8')
    k('v_lshl_add_u32 v10, v3, 3, v8')
    for ct in range(5):
        for rd in range(2):
            if ct < 4:
                k('ds_read_b64_tr_b16 %s, v9 offset:%d' % (V(20 + 4 * ct + 2 * rd, 2), 8 * rd * P + 64 * (ct >> 1) + 8 * (ct & 1)))
            else:
                k('ds_read_b64_tr_b16 %s, v10 offset:%d' % (V(20 + 4 * ct + 2 * rd, 2), 8 * rd * P + 128))
    k('s_lshl_b32 s23, s19, 2')
    k('s_add_u32 s23, s23, s16')
    k('s_lshl_b32 s23, s23, 2')
    k('s_add_u32 s23, s23, s20')
    k('s_mul_i32 s23, s23, %d' % nks)
    k('s_add_u32 s23, s23, s21')
    k('s_mul_i32 s23, s23, 5120')
    k('s_add_u32 s23, s23, %d' % (WD if which == 'wd' else WO))
    for ct in range(4):
        k('buffer_store_dwordx4 %s, v6, s[4:7], s23 offen offset:%d' % (V(20 + 4 * ct, 4), 1024 * ct))
    k('s_add_u32 s23, s23, 4096')
    k('buffer_store_dwordx4 %s, v6, s[4:7], s23 offen' % V(36, 4))


def job_zero(k):
    k('v_lshlrev_b32 v8, 4, v0')
    k('s_lshl_b32 s18, s17, 12')
    k('s_add_u32 s18, s18, %d' % FLG)
    for d in range(4):
        k('v_mov_b32 %s, 0' % V(12 + d))
    k('buffer_store_dwordx4 v[12:15], v8, s[4:7], s18 offen')


PREP_JOBS = [('wqkv', 240, job_wqkv), ('ln', 128, job_ln), ('wgu', 192, job_wgu),
             ('wd', 96, lambda k: job_w16(k, 'wd')), ('wo', 40, lambda k: job_w16(k, 'wo')), ('zero', 8, job_zero)]
PREP_GRID = sum(n for _, n, _ in PREP_JOBS)


def gen_prep():
    k = K()
    header(k, 'prep_kernel')
    srd(k, 4, 'ws')
    lane_parts(k)
    k.drain(force=True)
    k('s_mov_b32 s17, s2')
    for name, n, _ in PREP_JOBS:
        k('s_cmp_lt_u32 s17, %d' % n)
        k('s_cbranch_scc1 L_job_%s' % name)
        k('s_sub_u32 s17, s17, %d' % n)
    k('s_endpgm')
    for name, n, fn in PREP_JOBS:
        k.label('L_job_%s' % name)
        fn(k)
        k('s_endpgm')
        k.vm, k.lg, k.sm, k.smem_out = [], [], set(), False
    return k.text(), descriptor('prep_kernel', 128, 48, 128)
```

```python
T, D, F, H, DH = 2048, 640, 1536, 32, 20

MODP = 0x0
FLG = 0x10000
FKV = FLG + 0x0000
FO = FLG + 0x2000
FX1 = FLG + 0x4000
FH = FLG + 0x6000
FLG_BYTES = 0x8000
FM = FLG + 0x8000
FW = FLG + 0x9000
FL = FLG + 0xa000
FBG = FLG + 0xb000
STATS = 0x20000
CSB = 0x40000
PROF = 0x80000
H1 = 0x100000
WQKV = H1 + 2621440
KV = WQKV + 2621440
O = KV + 5242880
WO = O + 2621440
X1 = WO + 819200
WGU = X1 + 2621440
HH = WGU + 3932160
WD = HH + 6291456
FS = 7
FKV = WD + 1966080
FO = FKV + 0x20000
FX1 = FO + 0x20000
FH = FX1 + 0x20000
FL = FH + 0x20000
FV = FL + 0x20000
FW = FV + 0x20000
FBG = FW + 0x8000
FBG1 = FBG + 0x8000
WS_END = FBG1 + 0x8000
```

```python
import sys
from gen_prep import *
from gen_main import gen_main

def build(prof=False, stop=99):
    ref = open('cdna_kernels/%s.s.ref' % NAME).read().splitlines()
    head = [l for l in ref if l.startswith(';') and '@launch' not in l and 'Override launch' not in l and 'grid=ceil' not in l]
    t2, d2, k = gen_main(prof, stop)
    head += ['; @launch grid=(256,1,1) block=(256,1,1) lds=163840']
    s = '\n'.join(head) + '\n.amdgcn_target "amdgcn-amd-amdhsa--gfx950"\n.text\n' + t2 + '.section .rodata,"a"\n' + d2
    sys.stderr.write('main: %d instr, %d nops, maxv %d maxa %d maxs %d\n' % (k.ninst, k.nops, k.maxv, k.maxa, k.maxs))
    return s

if __name__ == '__main__':
    out = sys.argv[1]
    prof = 'rt' if 'rt' in sys.argv[2:] else ('prof' in sys.argv[2:])
    stop = 99
    for a in sys.argv[2:]:
        if a.startswith('stop='): stop = int(a[5:])
        if a.startswith('G.'):
            import gen_main as GM
            n, v = a[2:].split('=')
            setattr(GM.G, n, eval(v))
        if a.startswith('wsoff='): WSOFF[0] = int(a[6:]) << 20
    open(out, 'w').write(build(prof, stop))
```

```python
from asmgen import *
from layout import *
from gen_prep import KA, SIZE, sdiv, vdiv, unpack, rbf, LOG2E
import gen_main as M
from gen_main import WS, XS, sW, sI, sJ, sTH, sCB, sTB, sFLAG, vL16, vLANE, stamp, G

WM, CS_, WQ, BS, C2, DB = 's[32:35]', 's[36:39]', 's[40:43]', 's[44:47]', 's[48:51]', 's[52:55]'
BIG = 0x7fffffff
L_RED, L_ST, L_U3, L_B, L_C, L_K = 0, 1024, 2048, 128 * 1024, 99 * 1024, 120 * 1024
RB, RC, RCS = 160, 180, 200
PRE = 10
P40, PGU = 656, 144


def mk(k, sb, lo, size):
    k('s_mov_b32 %s, %s' % (S(sb), S(lo)))
    k('s_mov_b32 %s, %s' % (S(sb + 1), S(lo + 1)))
    k('s_mov_b32 %s, %d' % (S(sb + 2), size))
    k('s_mov_b32 %s, 0x20000' % S(sb + 3))


def flag_store(k, soff):
    k('v_mov_b32 v252, %s' % sFLAG)
    k('s_mov_b64 exec, 1')
    k('buffer_store_dword v252, off, %s, %s sc1' % (WS, soff))
    k('s_mov_b64 exec, -1')


def chunk40(k, it, rounds, row, cc):
    k('v_add_u32 v160, %d, v0' % (256 * it))
    vdiv(k, row, 'v160', 40, 256 * rounds)
    k('v_mul_u32_u24 %s, 40, %s' % (cc, row))
    k('v_sub_u32 %s, v160, %s' % (cc, cc))


def w16_unit(k, su, swo, sk, sks, sch):
    k('s_lshr_b32 s24, %s, 1' % su)
    k('s_and_b32 %s, %s, 1' % (sch, su))
    sdiv(k, 's25', 's24', 12, 48)
    sdiv(k, 's26', 's24', 5, 48)
    k('s_cmp_eq_u32 %s, 1' % swo)
    k('s_cselect_b32 %s, s26, s25' % sk)
    k('s_cselect_b32 s25, 5, 12')
    k('s_mul_i32 s25, %s, s25' % sk)
    k('s_sub_u32 %s, s24, s25' % sks)


def w16_dest(k, sd, swo, sk, sks, sch):
    k('s_lshl_b32 s24, %s, 2' % sch)
    k('s_add_u32 s24, s24, %s' % sW)
    k('s_lshl_b32 s24, s24, 2')
    k('s_add_u32 s24, s24, %s' % sk)
    k('s_cmp_eq_u32 %s, 1' % swo)
    k('s_cselect_b32 s25, 5, 12')
    k('s_mov_b32 s26, %d' % WD)
    k('s_cselect_b32 s26, %d, s26' % WO)
    k('s_mul_i32 s24, s24, s25')
    k('s_add_u32 s24, s24, %s' % sks)
    k('s_mul_i32 s24, s24, 5120')
    k('s_add_u32 %s, s24, s26' % sd)


def w16_tr(k, lds, dst):
    k('v_lshrrev_b32 v156, 1, v5')
    k('v_lshl_add_u32 v156, v156, 4, v4')
    k('v_and_b32 v157, 1, v5')
    k('v_lshl_add_u32 v156, v157, 2, v156')
    k('v_mul_u32_u24 v156, %d, v156' % P40)
    k('s_mul_i32 s24, %s, 160' % sW)
    k('s_add_u32 s24, s24, %d' % lds)
    k('v_add_u32 v156, s24, v156')
    k('v_lshl_add_u32 v157, v3, 4, v156')
    k('v_lshl_add_u32 v158, v3, 3, v156')
    for ct in range(5):
        for rd in range(2):
            if ct < 4:
                k('ds_read_b64_tr_b16 %s, v157 offset:%d' % (V(dst + 4 * ct + 2 * rd, 2), 8 * rd * P40 + 64 * (ct >> 1) + 8 * (ct & 1)))
            else:
                k('ds_read_b64_tr_b16 %s, v158 offset:%d' % (V(dst + 4 * ct + 2 * rd, 2), 8 * rd * P40 + 128))


def w16_store_ops(sd, src):
    ops = []
    for ct in range(5):
        pre = ['s_add_u32 %s, %s, 4096' % (sd, sd)] if ct == 4 else []
        ops.append(pre + ['buffer_store_dwordx4 %s, %s, %s, %s offen offset:%d sc1' % (V(src + 4 * ct, 4), vL16, WS, sd, 1024 * (ct & 3))])
    return ops


def allred_hi(k, r, t):
    k('v_add_f32_dpp %s, %s, %s row_ror:8 row_mask:0xf bank_mask:0xf' % (t, r, r))
    k('v_mov_b32 %s, %s' % (r, t))
    k('v_permlane16_swap_b32 %s, %s' % (r, t))
    k('v_add_f32 %s, %s, %s' % (r, r, t))
    k('v_mov_b32 %s, %s' % (t, r))
    k('v_permlane32_swap_b32 %s, %s' % (r, t))
    k('v_add_f32 %s, %s, %s' % (r, r, t))


def front(k):
    k.comment('---- front end')
    k('s_cmp_ge_u32 s2, 256')
    k('s_cbranch_scc1 L_main_end')
    k('s_load_dwordx16 s[80:95], s[0:1], 0')
    k('s_load_dwordx8 s[56:63], s[0:1], 64')
    k('s_memrealtime s[76:77]')
    if G.codepf:
        k('s_getpc_b64 s[24:25]')
        k.label('L_pc')
        k('v_lshl_add_u32 v248, s2, 5, v0')
        k('v_and_b32 v248, 511, v248')
        k('v_lshlrev_b32 v248, 7, v248')
        k('v_min_u32 v248, L_main_end-L_pc, v248')
        k('global_load_dword v248, v248, s[24:25]', nodst=True)
    M.setup_ids(k)
    k('v_and_b32 v3, 3, v0')
    k('v_bfe_u32 v4, v0, 2, 2')
    k('v_bfe_u32 v5, v0, 4, 2')
    sRQ, sCG, sU, sOOB = 's66', 's67', 's68', 's69'
    sdiv(k, sRQ, 's2', 60, 256)
    k('s_mul_i32 s24, %s, 60' % sRQ)
    k('s_sub_u32 %s, s2, s24' % sCG)
    k('s_cmp_lt_u32 s2, 240')
    k('s_cselect_b32 %s, 0, 0x40000000' % sOOB)
    k('s_lshl_b32 s24, %s, 4' % sI)
    k('s_add_u32 %s, s24, %s' % (sU, sJ))
    k('v_and_b32 v7, 7, v0')
    k('v_lshrrev_b32 v2, 3, v0')
    k('v_mul_u32_u24 v13, 7680, v2')
    k('v_lshl_add_u32 v13, v7, 4, v13')
    k('v_lshlrev_b32 v14, 1, v2')
    k('s_mul_i32 s27, %s, %d' % (sRQ, 160 * 7680))
    k('s_lshl_b32 s24, %s, 7' % sCG)
    k('s_add_u32 s27, s27, s24')
    k('s_add_u32 s27, s27, %s' % sOOB)
    k('s_mul_i32 s28, %s, 320' % sRQ)
    k('v_bfe_u32 v6, v0, 3, 3')
    k('v_mul_u32_u24 v15, 1280, v7')
    k('v_lshl_add_u32 v15, v6, 4, v15')
    k('v_cmp_gt_u32 s[30:31], 4, v6')
    k('v_mov_b32 v36, %d' % BIG)
    k('v_cndmask_b32 v37, v36, v15, s[30:31]')
    k('s_mul_i32 s29, %s, 10240' % sU)
    k('s_mul_i32 s24, %s, 320' % sW)
    k('s_add_u32 s29, s29, s24')
    sKS, sSEC, sJH = 's70', 's71', 's72'
    sdiv(k, sKS, 's2', 6, 256)
    k('s_mul_i32 s24, %s, 6' % sKS)
    k('s_sub_u32 s24, s2, s24')
    k('s_and_b32 %s, s24, 1' % sJH)
    k('s_lshr_b32 %s, s24, 1' % sSEC)
    k('s_mul_i32 s23, %s, %d' % (sKS, 16 * 3840))
    k('s_mul_i32 s24, s24, 640')
    k('s_add_u32 s23, s23, s24')
    k('s_add_u32 s23, s23, %s' % sOOB)
    for it in range(3):
        chunk40(k, it, 3, 'v161', 'v162')
        k('v_mul_u32_u24 %s, %d, v161' % (V(96 + it), P40))
        k('v_lshl_add_u32 %s, v162, 4, %s' % (V(96 + it), V(96 + it)))
        k('v_mul_u32_u24 v161, 3840, v161')
        k('v_lshl_add_u32 %s, v162, 4, v161' % V(164 + it))
    k('v_cmp_le_u32 vcc, 128, v0')
    k('v_cndmask_b32 v166, v166, v36, vcc')
    mk(k, 32, 56, SIZE['wmod'])
    mk(k, 36, 94, SIZE['c'])
    mk(k, 8, 80, SIZE['x'])
    mk(k, 40, 82, SIZE['wqkv'])
    for it in range(5):
        k('buffer_load_ushort %s, v14, %s, s28 offen offset:%d' % (V(8 + it), CS_, 64 * it))
    for it in range(5):
        k('buffer_load_dwordx4 %s, v13, %s, s27 offen nt' % (V(16 + 4 * it, 4), WM))
        if it < 4:
            k('s_add_u32 s27, s27, %d' % (32 * 7680))
    mk(k, 4, 62, SIZE['ws'])
    mk(k, 52, 60, SIZE['dbg'])
    k('s_or_b32 s76, s76, 1')
    k('s_or_b32 s24, s2, %s' % sW)
    k('s_cmp_eq_u32 s24, 0')
    k('s_cselect_b32 s24, 0, 0x1000')
    k('v_mov_b32 v38, s76')
    k('s_mov_b64 exec, 1')
    k('buffer_store_dword v38, off, %s, s24 sc1' % DB)
    k('s_mov_b64 exec, -1')
    for it in range(3):
        k('buffer_load_dwordx4 %s, %s, %s, s23 offen nt' % (V(84 + 4 * it, 4), V(164 + it), WQ))
    k('buffer_load_dwordx4 v[48:51], v15, %s, s29 offen nt' % XS)
    k('buffer_load_dwordx4 v[52:55], v15, %s, s29 offen offset:128 nt' % XS)
    k('buffer_load_dwordx4 v[56:59], v37, %s, s29 offen offset:256 nt' % XS)
    mk(k, 12, 58, SIZE['out'])
    if G.tlb:
        k('v_lshlrev_b32 v248, %d, %s' % (G.tlb, vLANE))
        k('s_lshl_b32 s24, %s, %d' % (sW, G.tlb + 6))
        k('buffer_load_dword v248, v248, %s, s24 offen nt' % WS, nodst=True)
    sBK, sBKS, sBCH, sBO = 's73', 's74', 's75', 's94'
    sCWO, sCK, sCKS, sCCH, sCO = 's96', 's97', 's98', 's99', 's95'
    k('s_cmp_lt_u32 s2, 192')
    k('s_cbranch_scc0 L_bdec_wd')
    k('s_and_b32 %s, s2, 1' % sBCH)
    k('s_lshr_b32 s24, s2, 1')
    sdiv(k, sBK, 's24', 24, 96)
    k('s_mul_i32 s25, %s, 24' % sBK)
    k('s_sub_u32 %s, s24, s25' % sBKS)
    k('s_cmp_eq_u32 %s, 0' % sBCH)
    k('s_cselect_b32 s44, s88, s90')
    k('s_cselect_b32 s45, s89, s91')
    k('s_mul_i32 %s, %s, %d' % (sBO, sBK, 160 * 3072))
    k('s_lshl_b32 s24, %s, 7' % sBKS)
    k('s_add_u32 %s, %s, s24' % (sBO, sBO))
    for it in range(5):
        k('v_add_u32 v160, %d, v2' % (32 * it))
        k('v_mul_u32_u24 v161, 3072, v160')
        k('v_lshl_add_u32 %s, v7, 4, v161' % V(168 + it))
        k('v_mul_u32_u24 v161, %d, v160' % PGU)
        k('v_lshl_add_u32 v161, v7, 4, v161')
        k('v_add_u32 %s, %d, v161' % (V(120 + it), L_B))
    k('s_branch L_bdec_done')
    k.label('L_bdec_wd')
    k('s_sub_u32 s23, s2, 192')
    k('s_mov_b32 s29, 0')
    w16_unit(k, 's23', 's29', sBK, sBKS, sBCH)
    k('s_mov_b32 s44, s92')
    k('s_mov_b32 s45, s93')
    k('s_lshr_b32 s24, s23, 1')
    k('s_mul_i32 %s, s24, %d' % (sBO, 32 * 1280))
    k('s_mul_i32 s24, %s, 640' % sBCH)
    k('s_add_u32 %s, %s, s24' % (sBO, sBO))
    for it in range(5):
        chunk40(k, it, 5, 'v161', 'v162')
        k('v_mul_u32_u24 v163, %d, v161' % P40)
        k('v_lshl_add_u32 v163, v162, 4, v163')
        k('v_add_u32 %s, %d, v163' % (V(120 + it), L_B))
        k('v_mul_u32_u24 v161, 1280, v161')
        k('v_lshl_add_u32 %s, v162, 4, v161' % V(168 + it))
    k.label('L_bdec_done')
    k('s_mov_b32 s46, %d' % SIZE['wd'])
    k('s_mov_b32 s47, 0x20000')
    k('s_max_u32 s23, s2, 184')
    k('s_cmp_ge_u32 s23, 216')
    k('s_cselect_b32 %s, 1, 0' % sCWO)
    k('s_cselect_b32 s48, s84, s92')
    k('s_cselect_b32 s49, s85, s93')
    k('s_mov_b32 s24, %d' % SIZE['wd'])
    k('s_cselect_b32 s50, %d, s24' % SIZE['wo'])
    k('s_movk_i32 s24, 120')
    k('s_cselect_b32 s24, 216, s24')
    k('s_mov_b32 s51, 0x20000')
    k('s_sub_u32 s23, s23, s24')
    w16_unit(k, 's23', sCWO, sCK, sCKS, sCCH)
    k('s_lshr_b32 s24, s23, 1')
    k('s_lshl_b32 s24, s24, 5')
    k('s_mul_i32 s25, %s, 40' % sCKS)
    k('s_cmp_eq_u32 %s, 4' % sCKS)
    k('s_cselect_b32 s25, 16, s25')
    k('s_cselect_b64 s[78:79], -1, 0')
    k('s_mul_i32 s26, %s, 160' % sCK)
    k('s_add_u32 s25, s25, s26')
    k('s_cmp_eq_u32 %s, 1' % sCWO)
    k('s_cselect_b32 s24, s25, s24')
    k('s_cselect_b64 vcc, -1, 0')
    k('s_mul_i32 %s, s24, 1280' % sCO)
    k('s_mul_i32 s24, %s, 640' % sCCH)
    k('s_add_u32 %s, %s, s24' % (sCO, sCO))
    k('s_cmp_lt_u32 s2, 184')
    k('s_cselect_b32 s77, 0x40000000, 0')
    k('s_add_u32 %s, %s, s77' % (sCO, sCO))
    for it in range(5):
        chunk40(k, it, 5, 'v161', 'v162')
        k('v_mul_u32_u24 v163, %d, v161' % P40)
        k('v_lshl_add_u32 v163, v162, 4, v163')
        k('v_add_u32 %s, %d, v163' % (V(148 + it), L_C))
        k('v_lshrrev_b32 v40, 4, v161')
        k('v_and_b32 v41, 15, v161')
        k('v_mad_u32_u24 v41, v40, 20, v41')
        k('v_lshlrev_b32 v40, 2, v40')
        k('v_bfe_u32 v42, v161, 2, 1')
        k('v_lshl_add_u32 v40, v42, 1, v40')
        k('v_bfe_u32 v42, v161, 3, 1')
        k('v_add_u32 v40, v40, v42')
        k('v_and_b32 v42, 3, v161')
        k('v_mad_u32_u24 v40, v40, 20, v42')
        k('v_cndmask_b32 v41, v41, v40, s[78:79]')
        k('v_cndmask_b32 v161, v161, v41, vcc')
        k('v_mul_u32_u24 v161, 1280, v161')
        k('v_lshl_add_u32 %s, v162, 4, v161' % V(173 + it))
    k('v_lshrrev_b32 v14, 1, v5')
    k('v_lshl_add_u32 v160, v14, 3, v4')
    k('v_mul_u32_u24 v160, %d, v160' % P40)
    k('s_mul_i32 s24, %s, 160' % sW)
    k('s_add_u32 s24, s24, %d' % L_U3)
    k('v_add_u32 v160, s24, v160')
    k('v_and_b32 v161, 1, v5')
    k('v_mul_u32_u24 v161, 40, v161')
    k('v_lshlrev_b32 v162, 1, v3')
    k('v_and_b32 v162, 2, v162')
    k('v_lshrrev_b32 v163, 1, v3')
    k('v_or_b32 v162, v162, v163')
    k('s_cmp_eq_u32 %s, 2' % sSEC)
    k('s_cselect_b64 vcc, -1, 0')
    k('v_cndmask_b32 v162, v3, v162, vcc')
    k('v_lshl_add_u32 v161, v162, 3, v161')
    k('v_add_u32 v153, v160, v161')
    k('v_mul_u32_u24 v162, 40, v3')
    k('v_add3_u32 v154, v160, v162, 32')
    k('v_bfe_u32 v155, v0, 3, 1')
    k('v_mul_u32_u24 v155, 163840, v155')
    k('v_lshl_add_u32 v155, v7, 4, v155')
    k('v_lshl_add_u32 v155, v14, 9, v155')
    stamp(k)
    k('s_lshl_b32 s23, %s, 3' % sJH)
    k('s_lshl_b32 s24, %s, 1' % sW)
    k('s_add_u32 s23, s23, s24')
    k('s_mul_i32 s23, s23, 163840')
    k('s_add_u32 s23, s23, %d' % WQKV)
    k('s_add_u32 s23, s23, %s' % sOOB)
    k('s_lshl_b32 s24, %s, 11' % sKS)
    k('s_add_u32 s24, s23, s24')
    k('s_lshl_b32 s25, %s, 10' % sKS)
    k('s_add_u32 s25, s23, s25')
    k('s_add_u32 s25, s25, 81920')
    k('s_add_u32 s26, s25, 40960')
    k('s_cmp_eq_u32 %s, 1' % sSEC)
    k('s_cselect_b32 s25, s24, s25')
    k('s_cmp_eq_u32 %s, 0' % sSEC)
    k('s_cselect_b32 s78, s26, s25')
    k('s_cselect_b32 s26, 3, %s' % sSEC)
    k('s_sub_u32 s26, s26, 1')
    k('s_lshl_b32 s26, s26, 7')
    k('s_add_u32 s79, s24, s26')
    k('s_mov_b64 s[70:71], s[78:79]')
    k('s_load_dword %s, s[60:61], 0' % sFLAG)
    for it in range(5):
        c = V(8 + it)
        k('v_lshlrev_b32 %s, 16, %s' % (c, c))
        k('v_mul_f32 v13, %s, %s' % (hex(f2u(-LOG2E)), c))
        k('v_exp_f32 v13, v13')
        k('v_add_f32 v13, 1.0, v13')
        k('v_rcp_f32 v13, v13')
        k('v_mul_f32 %s, %s, v13' % (c, c))
        rbf(k, c)
    for it in range(5):
        for d in range(4):
            unpack(k, 'v36', 'v37', V(16 + 4 * it + d))
            a = V(40 + 2 * d, 2)
            cc = V(8 + (it & ~1), 2)
            sel = 'op_sel:[0,1,0] op_sel_hi:[1,1,1]' if it & 1 else 'op_sel_hi:[1,0,1]'
            if it == 0:
                k('v_pk_mul_f32 %s, v[36:37], %s op_sel_hi:[1,0]' % (a, cc))
            else:
                k('v_pk_fma_f32 %s, v[36:37], %s, %s %s' % (a, cc, a, sel))
    for n in range(4):
        k('v_permlane32_swap_b32 %s, %s' % (V(40 + n), V(44 + n)))
    for n in range(2):
        k('v_pk_add_f32 %s, %s, %s' % (V(40 + 2 * n, 2), V(40 + 2 * n, 2), V(44 + 2 * n, 2)))
    for n in range(2):
        k('v_permlane16_swap_b32 %s, %s' % (V(40 + n), V(42 + n)))
    k('v_pk_add_f32 v[40:41], v[40:41], v[42:43]')
    for n in range(2):
        k('v_add_f32_dpp %s, %s, %s row_ror:8 row_mask:0xf bank_mask:0xf' % (V(42 + n), V(40 + n), V(40 + n)))
    k('s_lshl_b32 s24, %s, 8' % sW)
    k('v_lshl_add_u32 v13, v7, 5, s24')
    k('v_lshl_add_u32 v13, v5, 3, v13')
    k('ds_write_b64 v13, v[42:43] offset:%d' % L_RED)
    k('v_min_u32 v13, 240, %s' % vL16)
    k('s_mul_i32 s24, %s, %d' % (sRQ, 3840 * 4))
    k('s_lshl_b32 s25, %s, 8' % sCG)
    k('s_add_u32 s24, s24, s25')
    k('s_add_u32 s24, s24, %s' % sOOB)
    k('s_cmp_eq_u32 %s, 0' % sW)
    k('s_cselect_b32 s76, 0, 0x20000000')
    k('s_add_u32 s24, s24, s76')
    k.drain(vm=False)
    k('s_barrier')
    for n in range(4):
        k('ds_read_b128 %s, v13 offset:%d' % (V(16 + 4 * n, 4), L_RED + 256 * n))
    k.label('L_tag')
    k('s_cmp_lg_u32 %s, 0' % sFLAG)
    k('s_cbranch_scc1 L_tag_ok')
    k.raw('    buffer_load_dword v39, off, %s, 0 sc1' % DB)
    k.raw('    s_waitcnt vmcnt(0)')
    k('v_readfirstlane_b32 %s, v39' % sFLAG)
    k('s_add_u32 s65, s65, 1')
    k('s_cmp_lt_u32 s65, 0x40000')
    k('s_cbranch_scc1 L_tag')
    k.label('L_tag_ok')
    for h in range(2):
        k('v_pk_add_f32 %s, %s, %s' % (V(16 + 2 * h, 2), V(16 + 2 * h, 2), V(20 + 2 * h, 2)))
        k('v_pk_add_f32 %s, %s, %s' % (V(24 + 2 * h, 2), V(24 + 2 * h, 2), V(28 + 2 * h, 2)))
        k('v_pk_add_f32 %s, %s, %s' % (V(16 + 2 * h, 2), V(16 + 2 * h, 2), V(24 + 2 * h, 2)))
    for d in range(3):
        k('s_mov_b32 s25, 0x%08x' % (0x07060500 + 3 - d))
        k('v_perm_b32 %s, %s, v19, s25' % (V(16 + d), V(16 + d)))
    k('v_mov_b32 v19, %s' % sFLAG)
    k('s_mov_b64 exec, 0xffff')
    k('buffer_store_dwordx4 v[16:19], v13, %s, s24 offen offset:%d sc1' % (WS, MODP))
    k('s_mov_b64 exec, -1')
    for it in range(5):
        k('buffer_load_dwordx4 %s, %s, %s, %s offen nt' % (V(100 + 4 * it, 4), V(168 + it), BS, sBO))
    for it in range(5):
        k('buffer_load_dwordx4 %s, %s, %s, %s offen nt' % (V(128 + 4 * it, 4), V(173 + it), C2, sCO))
    stamp(k)
    for it in range(3):
        k('ds_write_b128 %s, %s offset:%d' % (V(96 + it), V(84 + 4 * it, 4), L_U3))
    X = 60
    for d in range(12):
        unpack(k, V(X + 2 * d), V(X + 2 * d + 1), V(48 + d))
        x = V(X + 2 * d, 2)
        if d == 0:
            k('v_pk_mul_f32 v[10:11], %s, %s' % (x, x))
        else:
            k('v_pk_add_f32 v[8:9], %s, %s' % (x, V(X, 2) if d == 1 else 'v[8:9]'))
            k('v_pk_fma_f32 v[10:11], %s, %s, v[10:11]' % (x, x))
    k('v_add_f32 v8, v8, v9')
    k('v_add_f32 v9, v10, v11')
    allred_hi(k, 'v8', 'v10')
    allred_hi(k, 'v9', 'v10')
    k('s_lshl_b32 s24, %s, 3' % sW)
    k('v_lshl_add_u32 v12, v7, 5, s24')
    k('ds_write_b64 v12, v[8:9] offset:%d' % L_ST)
    k('v_lshlrev_b32 v12, 5, v7')
    stamp(k)
    k.drain(vm=False)
    k('s_barrier')
    for jl in range(2):
        for rd in range(2):
            k('ds_read_b64_tr_b16 %s, v153 offset:%d' % (V(84 + 4 * jl + 2 * rd, 2), 80 * jl + 4 * rd * P40))
    for rd in range(2):
        k('ds_read_b64_tr_b16 %s, v154 offset:%d' % (V(92 + 2 * rd, 2), 4 * rd * P40))
    k('ds_read_b128 v[20:23], v12 offset:%d' % L_ST)
    k('ds_read_b128 v[24:27], v12 offset:%d' % (L_ST + 16))
    k('buffer_store_dwordx4 v[84:87], %s, %s, s70 offen sc1' % (vL16, WS))
    k('s_add_u32 s70, s70, 163840')
    k('buffer_store_dwordx4 v[88:91], %s, %s, s70 offen sc1' % (vL16, WS))
    tw = k('buffer_store_dwordx4 v[92:95], v155, %s, s71 offen offset:1024 sc1' % WS)
    stamp(k)
    k('s_mul_i32 s24, %s, 640' % sW)
    k('s_lshr_b32 s25, %s, 1' % sW)
    k('s_mul_i32 s25, s25, 320')
    k('s_mul_i32 s26, %s, 640' % sBK)
    k('s_add_u32 s25, s25, s26')
    k('s_add_u32 s25, s25, %d' % (3 * 2560 - 640))
    k('v_mov_b32 v34, s24')
    k('v_mov_b32 v35, s25')
    k('v_cmp_gt_u32 vcc, 40, %s' % vLANE)
    k('v_cndmask_b32 v34, v35, v34, vcc')
    k('v_min_u32 v35, %d, %s' % (59 * 16, vL16))
    k('v_add_u32 v34, v34, v35')
    k('v_pk_add_f32 v[20:21], v[20:21], v[22:23]')
    k('v_pk_add_f32 v[24:25], v[24:25], v[26:27]')
    k('v_pk_add_f32 v[20:21], v[20:21], v[24:25]')
    k('v_mul_f32 v28, %s, v20' % hex(f2u(-1.0 / 640)))
    k('v_mov_b32 v30, %s' % hex(f2u(1e-5)))
    k('v_mul_f32 v29, %s, v21' % hex(f2u(1.0 / 640)))
    k('v_fma_f32 v29, -v28, v28, v29')
    k('v_max_f32 v29, 0, v29')
    k('v_add_f32 v30, v30, v29')
    k('v_rsq_f32 v30, v30')
    k('v_mul_f32 v32, v28, v30')
    for d in range(12):
        x = V(X + 2 * d, 2)
        k('v_pk_fma_f32 %s, %s, v[30:31], v[32:33] op_sel_hi:[1,0,0]' % (x, x))
    k('s_lshl_b32 s24, %s, 11' % sW)
    k('s_add_u32 s24, s24, %d' % L_K)
    k('v_add_u32 v33, s24, %s' % vL16)
    k('v_lshl_add_u32 v31, v6, 5, s24')
    k('v_lshl_add_u32 v35, v14, 5, s24')
    k('s_lshr_b32 s27, %s, 2' % sU)
    k('s_mul_i32 s27, s27, 40960')
    k('s_mul_i32 s26, %s, 10240' % sW)
    k('s_add_u32 s27, s27, s26')
    k('s_and_b32 s26, %s, 3' % sU)
    k('s_lshl_b32 s26, s26, 7')
    k('s_add_u32 s27, s27, s26')
    k('s_add_u32 s27, s27, %d' % H1)
    k('v_lshlrev_b32 v15, 9, v6')
    k('v_lshl_add_u32 v15, v7, 4, v15')
    k('v_mov_b32 v36, %d' % BIG)
    k('v_cndmask_b32 v37, v36, v15, s[30:31]')
    k('s_mul_i32 s28, %s, 6' % sW)
    k('s_add_u32 s28, s28, %s' % sTH)
    k('s_lshl_b32 s28, s28, %d' % FS)
    k('s_add_u32 s28, s28, %d' % FW)
    k('v_min_u32 v36, 29, %s' % vLANE)
    vdiv(k, 'v38', 'v36', 3, 30)
    k('v_mul_u32_u24 v38, 9, v38')
    k('v_add_lshl_u32 v36, v36, v38, %d' % (FS + 1))
    stamp(k)
    PT = 204

    def fetch():
        k('s_mov_b32 s25, %d' % MODP)
        for p in range(4):
            for st in range(2):
                k('buffer_load_dwordx4 %s, v34, %s, s25 offen offset:%d sc1' % (V(PT + 16 * st + 4 * p, 4), WS, 2560 * st))
            if p < 3:
                k('s_add_u32 s25, s25, %d' % (3840 * 4))

    fetch()
    for it in range(5):
        k('ds_write_b128 %s, %s' % (V(120 + it), V(100 + 4 * it, 4)))
    for it in range(5):
        k('ds_write_b128 %s, %s' % (V(148 + it), V(128 + 4 * it, 4)))
    k.drain(vm=False)
    k('s_lshl_b32 s24, s2, %d' % FS)
    k('s_add_u32 s24, s24, %d' % FW)
    k('s_add_u32 s24, s24, s76')
    k.wait_vm(tw)
    stamp(k)
    k('s_barrier')
    flag_store(k, 's24')
    w16_tr(k, L_C, RC)
    k('s_cmp_lt_u32 s2, 192')
    k('s_cbranch_scc0 L_btr_wd')
    k('v_lshl_add_u32 v156, v14, 3, v4')
    k('v_mul_u32_u24 v156, %d, v156' % PGU)
    k('v_and_b32 v157, 1, v5')
    k('v_lshlrev_b32 v157, 5, v157')
    k('v_lshl_add_u32 v157, v3, 3, v157')
    k('s_lshr_b32 s24, %s, 1' % sW)
    k('s_mul_i32 s24, s24, %d' % (80 * PGU))
    k('s_and_b32 s25, %s, 1' % sW)
    k('s_lshl_b32 s26, s25, 6')
    k('s_add_u32 s24, s24, s26')
    k('s_add_u32 s24, s24, %d' % L_B)
    k('v_add3_u32 v156, v156, v157, s24')
    for ks in range(5):
        for rd in range(2):
            k('ds_read_b64_tr_b16 %s, v156 offset:%d' % (V(RB + 4 * ks + 2 * rd, 2), (16 * ks + 4 * rd) * PGU), nodst=True)
    k('s_branch L_btr_done')
    k.label('L_btr_wd')
    w16_tr(k, L_B, RB)
    k.label('L_btr_done')
    k('s_mov_b32 %s, 0x8000' % M.sTMO)
    k('v_mov_b32 v38, %s' % V(PT + 31))
    k.label('L_modp')
    for g in range(8):
        k('v_xor_b32 %s, %s, %s' % (V(PT + 4 * g + 3), sFLAG, V(PT + 4 * g + 3)))
    k('v_or3_b32 v38, %s, %s, %s' % (V(PT + 3), V(PT + 7), V(PT + 11)))
    k('v_or3_b32 v38, v38, %s, %s' % (V(PT + 15), V(PT + 19)))
    k('v_or3_b32 v38, v38, %s, %s' % (V(PT + 23), V(PT + 27)))
    k('v_or_b32 v38, v38, %s' % V(PT + 31))
    k('v_cmp_ne_u32 vcc, 0, v38')
    k('s_cbranch_vccz L_modp_ok')
    fetch()
    k.drain(lg=False, force=True)
    k('s_sub_u32 %s, %s, 1' % (M.sTMO, M.sTMO))
    k('s_cbranch_scc0 L_modp')
    k.label('L_modp_ok')
    stamp(k)
    for st in range(2):
        M.granule_sum(k, PT + 16 * st, 'v38', st)
        k('ds_write_b128 v33, %s offset:%d' % (V(PT + 16 * st, 4), 1024 * st))
    k.drain(vm=False, force=True)
    CT = 8
    for it in range(3):
        for st in range(2):
            for h in range(2):
                k('ds_read_b128 %s, v31 offset:%d' % (V(PT + 16 * (it & 1) + 8 * st + 4 * h, 4), 1024 * st + 256 * it + 16 * h))
        if it == 0:
            continue
        for i2 in ((0, 1) if it == 1 else (2,)):
            for d in range(4):
                x = V(X + 8 * i2 + 2 * d, 2)
                k('v_pk_fma_f32 %s, %s, %s, %s' % (x, x, V(PT + 16 * (i2 & 1) + 8 + 2 * d, 2), V(PT + 16 * (i2 & 1) + 2 * d, 2)))
                k('v_cvt_pk_bf16_f32 %s, %s, %s' % (V(48 + 4 * i2 + d), V(X + 8 * i2 + 2 * d), V(X + 8 * i2 + 2 * d + 1)))
            th = k('buffer_store_dwordx4 %s, %s, %s, s27 offen sc1' % (V(48 + 4 * i2, 4), 'v15' if i2 < 2 else 'v37', WS))
            if i2 < 2:
                k('s_add_u32 s27, s27, 4096')
    stamp(k)
    k('s_mul_i32 s69, %s, 163840' % sJ)
    k('s_add_u32 s69, s69, %d' % WQKV)
    k('s_lshl_b32 s66, %s, 11' % sW)
    k('s_add_u32 s67, s69, s66')
    w16_dest(k, 's96', sCWO, sCK, sCKS, sCCH)
    k('s_add_u32 s96, s96, s77')
    k('s_lshl_b32 s24, %s, 2' % sU)
    k('s_add_u32 s24, s24, %s' % sW)
    k('s_lshl_b32 s24, s24, %d' % FS)
    k('s_add_u32 s24, s24, %d' % FL)
    k('buffer_load_dword v244, v36, %s, s28 offen sc1' % WS)
    k.wait_vm(th)
    flag_store(k, 's24')
    stamp(k)
    M.check_or_poll(k, 'v244', 'v36', 's28', 'wq')
    wst = M.wq_stage_ops()
    for ops in wst[:5]:
        M.run_ops(k, ops)
    stamp(k)
    k('s_cmp_lt_u32 s2, 192')
    k('s_cbranch_scc0 L_b_wd')
    k('s_lshr_b32 s27, %s, 1' % sW)
    k('s_and_b32 s25, %s, 1' % sW)
    k('s_lshl_b32 s28, %s, 1' % sBKS)
    k('s_add_u32 s28, s28, s25')
    sdiv(k, 's24', 's28', 3, 48)
    k('s_mul_i32 s25, s24, 3')
    k('s_sub_u32 s25, s28, s25')
    k('s_lshl_b32 s26, %s, 1' % sBK)
    k('s_add_u32 s27, s27, s26')
    k('s_mul_i32 s26, s27, 5')
    k('s_mul_i32 s24, s24, 245760')
    k('s_add_u32 s24, s24, %d' % WGU)
    k('s_lshl_b32 s29, %s, 10' % sBCH)
    k('s_add_u32 s24, s24, s29')
    k('s_lshl_b32 s29, s25, 11')
    k('s_cmp_eq_u32 s25, 2')
    k('s_cselect_b32 s29, 163840, s29')
    k('s_cselect_b32 s98, 1, 2')
    k('s_lshl_b32 s98, s98, 11')
    k('s_add_u32 s24, s24, s29')
    k('s_mul_i32 s26, s26, s98')
    k('s_add_u32 s97, s24, s26')
    k('s_mul_i32 s24, s27, 48')
    k('s_add_u32 s24, s24, s28')
    k('s_lshl_b32 s24, s24, 1')
    k('s_add_u32 s24, s24, %s' % sBCH)
    k('s_lshl_b32 s24, s24, 8')
    k('s_add_u32 s99, s24, %d' % CSB)
    for r in range(8, 12):
        k('v_mov_b32 %s, 0' % V(r))
    for ks in range(5):
        W = RB + 4 * ks
        for st in range(2):
            for h in range(2):
                k('ds_read_b128 %s, v35 offset:%d' % (V(PT + 16 * (ks & 1) + 8 * st + 4 * h, 4), 640 + 1024 * st + 64 * ks + 16 * h))
        for d in range(4):
            unpack(k, 'v16', 'v17', V(W + d))
            k('v_pk_fma_f32 v[10:11], v[16:17], %s, v[10:11]' % V(PT + 16 * (ks & 1) + 2 * d, 2))
            k('v_pk_mul_f32 v[16:17], v[16:17], %s' % V(PT + 16 * (ks & 1) + 8 + 2 * d, 2))
            k('v_cvt_pk_bf16_f32 %s, v16, v17' % V(W + d))
            unpack(k, 'v16', 'v17', V(W + d))
            k('v_pk_add_f32 v[8:9], v[8:9], v[16:17]')
    k('v_add_f32 v8, v8, v9')
    k('v_add_f32 v10, v10, v11')
    k('v_permlane32_swap_b32 v8, v10')
    k('v_add_f32 %s, v8, v10' % V(RCS))
    k('s_branch L_b_done')
    k.label('L_b_wd')
    k('s_mov_b32 s29, 0')
    w16_dest(k, 's97', 's29', sBK, sBKS, sBCH)
    k('s_movk_i32 s98, 1024')
    k('s_mov_b32 s99, 0x40000000')
    k('v_mov_b32 %s, 0' % V(RCS))
    k.label('L_b_done')
    for ops in wst[5:]:
        M.run_ops(k, ops)
    stamp(k)
    k('s_lshl_b32 s23, %s, %d' % (sTB, FS + 4))
    k('s_add_u32 s23, s23, %d' % FL)
    k('v_and_b32 v36, 15, %s' % vLANE)
    k('v_lshlrev_b32 v36, %d, v36' % FS)
    M.poll(k, 'v36', 's23', 'h1')
    k.drain(force=True)
    M.c_acts(k)
```

```python
from asmgen import *
from layout import *
from gen_prep import KA, SIZE, sdiv, vdiv, unpack, rbf, LOG2E
import gen_main as M
from gen_main import WS, XS, sW, sI, sJ, sTH, sCB, sTB, sFLAG, vL16, vLANE, stamp, G

WM, CS_, WQ, BS, C2, DB = 's[32:35]', 's[36:39]', 's[40:43]', 's[44:47]', 's[48:51]', 's[52:55]'
BIG = 0x7fffffff
L_RED, L_ST, L_U3, L_B, L_C, L_K = 49152, 50176, 51200, 128 * 1024, 64 * 1024, 120 * 1024
L_H = 136 * 1024
RB, RC, RCS = 160, 180, 200
PRE = 10
P40, PGU = 656, 144


def mk(k, sb, lo, size):
    k('s_mov_b32 %s, %s' % (S(sb), S(lo)))
    k('s_mov_b32 %s, %s' % (S(sb + 1), S(lo + 1)))
    k('s_mov_b32 %s, %d' % (S(sb + 2), size))
    k('s_mov_b32 %s, 0x20000' % S(sb + 3))


def flag_store(k, soff):
    k('v_mov_b32 v252, %s' % sFLAG)
    k('s_mov_b64 exec, 1')
    k('buffer_store_dword v252, off, %s, %s sc1' % (WS, soff))
    k('s_mov_b64 exec, -1')


def chunk40(k, it, rounds, row, cc):
    k('v_add_u32 v160, %d, v0' % (256 * it))
    vdiv(k, row, 'v160', 40, 256 * rounds)
    k('v_mul_u32_u24 %s, 40, %s' % (cc, row))
    k('v_sub_u32 %s, v160, %s' % (cc, cc))


def w16_unit(k, su, swo, sk, sks, sch):
    k('s_lshr_b32 s24, %s, 1' % su)
    k('s_and_b32 %s, %s, 1' % (sch, su))
    sdiv(k, 's25', 's24', 12, 48)
    sdiv(k, 's26', 's24', 5, 48)
    k('s_cmp_eq_u32 %s, 1' % swo)
    k('s_cselect_b32 %s, s26, s25' % sk)
    k('s_cselect_b32 s25, 5, 12')
    k('s_mul_i32 s25, %s, s25' % sk)
    k('s_sub_u32 %s, s24, s25' % sks)


def w16_dest(k, sd, swo, sk, sks, sch):
    k('s_lshl_b32 s24, %s, 2' % sch)
    k('s_add_u32 s24, s24, %s' % sW)
    k('s_lshl_b32 s24, s24, 2')
    k('s_add_u32 s24, s24, %s' % sk)
    k('s_cmp_eq_u32 %s, 1' % swo)
    k('s_cselect_b32 s25, 5, 12')
    k('s_mov_b32 s26, %d' % WD)
    k('s_cselect_b32 s26, %d, s26' % WO)
    k('s_mul_i32 s24, s24, s25')
    sdiv(k, 's25', sks, 3, 12)
    k('s_mul_i32 s25, s25, 11')
    k('s_lshl_b32 s27, %s, 2' % sks)
    k('s_sub_u32 s25, s27, s25')
    k('s_cmp_eq_u32 %s, 1' % swo)
    k('s_cselect_b32 s25, %s, s25' % sks)
    k('s_add_u32 s24, s24, s25')
    k('s_mul_i32 s24, s24, 5120')
    k('s_add_u32 %s, s24, s26' % sd)


def w16_tr(k, lds, dst):
    k('v_lshrrev_b32 v40, 1, v5')
    k('v_lshl_add_u32 v40, v40, 4, v4')
    k('v_and_b32 v41, 1, v5')
    k('v_lshl_add_u32 v40, v41, 2, v40')
    k('v_mul_u32_u24 v40, %d, v40' % P40)
    k('s_mul_i32 s24, %s, 160' % sW)
    k('s_add_u32 s24, s24, %d' % lds)
    k('v_add_u32 v40, s24, v40')
    k('v_lshl_add_u32 v41, v3, 4, v40')
    k('v_lshl_add_u32 v42, v3, 3, v40')
    for ct in range(5):
        for rd in range(2):
            if ct < 4:
                k('ds_read_b64_tr_b16 %s, v41 offset:%d' % (V(dst + 4 * ct + 2 * rd, 2), 8 * rd * P40 + 64 * (ct >> 1) + 8 * (ct & 1)))
            else:
                k('ds_read_b64_tr_b16 %s, v42 offset:%d' % (V(dst + 4 * ct + 2 * rd, 2), 8 * rd * P40 + 128))


def w16_store_ops(sd, src):
    ops = []
    for ct in range(5):
        pre = ['s_add_u32 %s, %s, 4096' % (sd, sd)] if ct == 4 else []
        ops.append(pre + ['buffer_store_dwordx4 %s, %s, %s, %s offen offset:%d sc1' % (V(src + 4 * ct, 4), vL16, WS, sd, 1024 * (ct & 3))])
    return ops


def allred_hi(k, r, t):
    k('v_add_f32_dpp %s, %s, %s row_ror:8 row_mask:0xf bank_mask:0xf' % (t, r, r))
    k('v_mov_b32 %s, %s' % (r, t))
    k('v_permlane16_swap_b32 %s, %s' % (r, t))
    k('v_add_f32 %s, %s, %s' % (r, r, t))
    k('v_mov_b32 %s, %s' % (t, r))
    k('v_permlane32_swap_b32 %s, %s' % (r, t))
    k('v_add_f32 %s, %s, %s' % (r, r, t))


def front(k):
    k.comment('---- front end')
    k('s_cmp_ge_u32 s2, 256')
    k('s_cbranch_scc1 L_main_end')
    k('s_load_dwordx16 s[80:95], s[0:1], 0')
    k('s_load_dwordx8 s[56:63], s[0:1], 64')
    k('s_memrealtime s[76:77]')
    if G.codepf:
        k('s_getpc_b64 s[24:25]')
        k.label('L_pc')
        k('v_lshl_add_u32 v248, s2, 5, v0')
        k('v_and_b32 v248, 511, v248')
        k('v_lshlrev_b32 v248, 7, v248')
        k('v_min_u32 v248, L_main_end-L_pc, v248')
        k('global_load_dword v248, v248, s[24:25]', nodst=True)
    M.setup_ids(k)
    k('v_and_b32 v3, 3, v0')
    k('v_bfe_u32 v4, v0, 2, 2')
    k('v_bfe_u32 v5, v0, 4, 2')
    sRQ, sCG, sU, sOOB = 's66', 's67', 's68', 's69'
    sdiv(k, sRQ, 's2', 60, 256)
    k('s_mul_i32 s24, %s, 60' % sRQ)
    k('s_sub_u32 %s, s2, s24' % sCG)
    k('s_cmp_lt_u32 s2, 240')
    k('s_cselect_b32 %s, 0, 0x40000000' % sOOB)
    k('s_lshl_b32 s24, %s, 4' % sI)
    k('s_add_u32 %s, s24, %s' % (sU, sJ))
    k('v_and_b32 v7, 7, v0')
    k('v_lshrrev_b32 v2, 3, v0')
    k('v_mul_u32_u24 v13, 7680, v2')
    k('v_lshl_add_u32 v13, v7, 4, v13')
    k('v_lshlrev_b32 v14, 1, v2')
    k('s_mul_i32 s27, %s, %d' % (sRQ, 160 * 7680))
    k('s_lshl_b32 s24, %s, 7' % sCG)
    k('s_add_u32 s27, s27, s24')
    k('s_add_u32 s27, s27, %s' % sOOB)
    k('s_mul_i32 s28, %s, 320' % sRQ)
    k('v_bfe_u32 v6, v0, 3, 3')
    k('v_mul_u32_u24 v15, 1280, v7')
    k('v_lshl_add_u32 v15, v6, 4, v15')
    k('v_cmp_gt_u32 vcc, 4, v6')
    k('v_mov_b32 v36, %d' % BIG)
    k('v_cndmask_b32 v37, v36, v15, vcc')
    k('s_mul_i32 s29, %s, 10240' % sU)
    k('s_mul_i32 s24, %s, 320' % sW)
    k('s_add_u32 s29, s29, s24')
    sKS, sSEC, sJH = 's70', 's71', 's72'
    sdiv(k, sKS, 's2', 6, 256)
    k('s_mul_i32 s24, %s, 6' % sKS)
    k('s_sub_u32 s24, s2, s24')
    k('s_and_b32 %s, s24, 1' % sJH)
    k('s_lshr_b32 %s, s24, 1' % sSEC)
    k('s_mul_i32 s23, %s, %d' % (sKS, 16 * 3840))
    k('s_mul_i32 s24, s24, 640')
    k('s_add_u32 s23, s23, s24')
    k('s_add_u32 s23, s23, %s' % sOOB)
    for it in range(3):
        chunk40(k, it, 3, 'v161', 'v162')
        k('v_mul_u32_u24 %s, %d, v161' % (V(96 + it), P40))
        k('v_lshl_add_u32 %s, v162, 4, %s' % (V(96 + it), V(96 + it)))
        k('v_mul_u32_u24 v161, 3840, v161')
        k('v_lshl_add_u32 %s, v162, 4, v161' % V(164 + it))
    k('v_cmp_le_u32 vcc, 128, v0')
    k('v_cndmask_b32 v166, v166, v36, vcc')
    if G.fine > 1:
        stamp(k)
    mk(k, 32, 56, SIZE['wmod'])
    mk(k, 36, 94, SIZE['c'])
    mk(k, 8, 80, SIZE['x'])
    mk(k, 40, 82, SIZE['wqkv'])
    for it in range(5):
        k('buffer_load_ushort %s, v14, %s, s28 offen offset:%d' % (V(8 + it), CS_, 64 * it))
    for it in range(5):
        k('buffer_load_dwordx4 %s, v13, %s, s27 offen nt' % (V(16 + 4 * it, 4), WM))
        if it < 4:
            k('s_add_u32 s27, s27, %d' % (32 * 7680))
    mk(k, 4, 62, SIZE['ws'])
    mk(k, 52, 60, SIZE['dbg'])
    k('s_or_b32 s76, s76, 1')
    k('s_or_b32 s24, s2, %s' % sW)
    k('s_cmp_eq_u32 s24, 0')
    k('s_cselect_b32 s24, 0, 0x1000')
    k('v_mov_b32 v38, s76')
    k('s_mov_b64 exec, 1')
    k('buffer_store_dword v38, off, %s, s24 sc1' % DB)
    k('s_mov_b64 exec, -1')
    for it in range(3):
        k('buffer_load_dwordx4 %s, %s, %s, s23 offen nt' % (V(84 + 4 * it, 4), V(164 + it), WQ))
    k('buffer_load_dwordx4 v[48:51], v15, %s, s29 offen nt' % XS)
    k('buffer_load_dwordx4 v[52:55], v15, %s, s29 offen offset:128 nt' % XS)
    k('buffer_load_dwordx4 v[56:59], v37, %s, s29 offen offset:256 nt' % XS)
    mk(k, 12, 58, SIZE['out'])
    if G.fine > 1:
        stamp(k)
    if G.tlb:
        k('v_lshlrev_b32 v248, %d, %s' % (G.tlb, vLANE))
        k('s_lshl_b32 s24, %s, %d' % (sW, G.tlb + 6))
        k('buffer_load_dword v248, v248, %s, s24 offen nt' % WS, nodst=True)
    sBK, sBKS, sBCH, sBO = 's73', 's74', 's75', 's94'
    sCWO, sCK, sCKS, sCCH, sCO = 's96', 's97', 's98', 's99', 's95'
    k('s_cmp_lt_u32 s2, 192')
    k('s_cbranch_scc0 L_bdec_wd')
    k('s_and_b32 %s, s2, 1' % sBCH)
    k('s_lshr_b32 s24, s2, 1')
    sdiv(k, sBK, 's24', 24, 96)
    k('s_mul_i32 s25, %s, 24' % sBK)
    k('s_sub_u32 %s, s24, s25' % sBKS)
    k('s_cmp_eq_u32 %s, 0' % sBCH)
    k('s_cselect_b32 s44, s88, s90')
    k('s_cselect_b32 s45, s89, s91')
    k('s_mul_i32 %s, %s, %d' % (sBO, sBK, 160 * 3072))
    k('s_lshl_b32 s24, %s, 7' % sBKS)
    k('s_add_u32 %s, %s, s24' % (sBO, sBO))
    for it in range(5):
        k('v_add_u32 v160, %d, v2' % (32 * it))
        k('v_mul_u32_u24 v161, 3072, v160')
        k('v_lshl_add_u32 %s, v7, 4, v161' % V(168 + it))
        k('v_mul_u32_u24 v161, %d, v160' % PGU)
        k('v_lshl_add_u32 v161, v7, 4, v161')
        k('v_add_u32 %s, %d, v161' % (V(120 + it), L_B))
    k('s_branch L_bdec_done')
    k.label('L_bdec_wd')
    k('s_sub_u32 s23, s2, 192')
    k('s_mov_b32 s29, 0')
    w16_unit(k, 's23', 's29', sBK, sBKS, sBCH)
    k('s_mov_b32 s44, s92')
    k('s_mov_b32 s45, s93')
    k('s_lshr_b32 s24, s23, 1')
    k('s_mul_i32 %s, s24, %d' % (sBO, 32 * 1280))
    k('s_mul_i32 s24, %s, 640' % sBCH)
    k('s_add_u32 %s, %s, s24' % (sBO, sBO))
    for it in range(5):
        chunk40(k, it, 5, 'v161', 'v162')
        k('v_mul_u32_u24 v163, %d, v161' % P40)
        k('v_lshl_add_u32 v163, v162, 4, v163')
        k('v_add_u32 %s, %d, v163' % (V(120 + it), L_B))
        k('v_mul_u32_u24 v161, 1280, v161')
        k('v_lshl_add_u32 %s, v162, 4, v161' % V(168 + it))
    k.label('L_bdec_done')
    k('s_mov_b32 s46, %d' % SIZE['wd'])
    k('s_mov_b32 s47, 0x20000')
    k('s_max_u32 s23, s2, 184')
    k('s_cmp_ge_u32 s23, 216')
    k('s_cselect_b32 %s, 1, 0' % sCWO)
    k('s_cselect_b32 s48, s84, s92')
    k('s_cselect_b32 s49, s85, s93')
    k('s_mov_b32 s24, %d' % SIZE['wd'])
    k('s_cselect_b32 s50, %d, s24' % SIZE['wo'])
    k('s_movk_i32 s24, 120')
    k('s_cselect_b32 s24, 216, s24')
    k('s_mov_b32 s51, 0x20000')
    k('s_sub_u32 s23, s23, s24')
    w16_unit(k, 's23', sCWO, sCK, sCKS, sCCH)
    k('s_lshr_b32 s24, s23, 1')
    k('s_lshl_b32 s24, s24, 5')
    k('s_and_b32 s25, %s, 1' % sCKS)
    k('s_mul_i32 s25, s25, 80')
    k('s_lshr_b32 s26, %s, 1' % sCKS)
    k('s_mul_i32 s26, s26, 20')
    k('s_add_u32 s25, s25, s26')
    k('s_cmp_eq_u32 %s, 4' % sCKS)
    k('s_cselect_b32 s25, 16, s25')
    k('s_cselect_b64 s[78:79], -1, 0')
    k('s_mul_i32 s26, %s, 160' % sCK)
    k('s_add_u32 s25, s25, s26')
    k('s_cmp_eq_u32 %s, 1' % sCWO)
    k('s_cselect_b32 s24, s25, s24')
    k('s_cselect_b64 vcc, -1, 0')
    k('s_mul_i32 %s, s24, 1280' % sCO)
    k('s_mul_i32 s24, %s, 640' % sCCH)
    k('s_add_u32 %s, %s, s24' % (sCO, sCO))
    k('s_cmp_lt_u32 s2, 184')
    k('s_cselect_b32 s77, 0x40000000, 0')
    k('s_add_u32 %s, %s, s77' % (sCO, sCO))
    for it in range(5):
        chunk40(k, it, 5, 'v161', 'v162')
        k('v_mul_u32_u24 v163, %d, v161' % P40)
        k('v_lshl_add_u32 v163, v162, 4, v163')
        k('v_add_u32 v163, %d, v163' % L_C)
        k('v_accvgpr_write_b32 %s, v163' % A(180 + it))
        k('v_lshrrev_b32 v40, 4, v161')
        k('v_and_b32 v41, 15, v161')
        k('v_mad_u32_u24 v41, v40, 40, v41')
        k('v_lshlrev_b32 v40, 2, v40')
        k('v_bfe_u32 v42, v161, 2, 1')
        k('v_lshl_add_u32 v40, v42, 1, v40')
        k('v_bfe_u32 v42, v161, 3, 1')
        k('v_add_u32 v40, v40, v42')
        k('v_and_b32 v42, 3, v161')
        k('v_mad_u32_u24 v40, v40, 20, v42')
        k('v_cndmask_b32 v41, v41, v40, s[78:79]')
        k('v_cndmask_b32 v161, v161, v41, vcc')
        k('v_mul_u32_u24 v161, 1280, v161')
        k('v_lshl_add_u32 %s, v162, 4, v161' % V(236 + it))
    k('v_lshrrev_b32 v14, 1, v5')
    k('v_lshl_add_u32 v160, v14, 3, v4')
    k('v_mul_u32_u24 v160, %d, v160' % P40)
    k('s_mul_i32 s24, %s, 160' % sW)
    k('s_add_u32 s24, s24, %d' % L_U3)
    k('v_add_u32 v160, s24, v160')
    k('v_and_b32 v161, 1, v5')
    k('v_mul_u32_u24 v161, 40, v161')
    k('v_lshlrev_b32 v162, 1, v3')
    k('v_and_b32 v162, 2, v162')
    k('v_lshrrev_b32 v163, 1, v3')
    k('v_or_b32 v162, v162, v163')
    k('s_cmp_eq_u32 %s, 2' % sSEC)
    k('s_cselect_b64 vcc, -1, 0')
    k('v_cndmask_b32 v162, v3, v162, vcc')
    k('v_lshl_add_u32 v161, v162, 3, v161')
    k('v_add_u32 v153, v160, v161')
    k('v_mul_u32_u24 v162, 40, v3')
    k('v_add3_u32 v154, v160, v162, 32')
    k('v_bfe_u32 v155, v0, 3, 1')
    k('v_mul_u32_u24 v155, 163840, v155')
    k('v_lshl_add_u32 v155, v7, 4, v155')
    k('v_lshl_add_u32 v155, v14, 9, v155')
    stamp(k)
    k('s_lshl_b32 s23, %s, 3' % sJH)
    k('s_lshl_b32 s24, %s, 1' % sW)
    k('s_add_u32 s23, s23, s24')
    k('s_mul_i32 s23, s23, 163840')
    k('s_add_u32 s23, s23, %d' % WQKV)
    k('s_add_u32 s23, s23, %s' % sOOB)
    k('s_lshl_b32 s24, %s, 11' % sKS)
    k('s_add_u32 s24, s23, s24')
    k('s_lshl_b32 s25, %s, 10' % sKS)
    k('s_add_u32 s25, s23, s25')
    k('s_add_u32 s25, s25, 81920')
    k('s_add_u32 s26, s25, 40960')
    k('s_cmp_eq_u32 %s, 1' % sSEC)
    k('s_cselect_b32 s25, s24, s25')
    k('s_cmp_eq_u32 %s, 0' % sSEC)
    k('s_cselect_b32 s78, s26, s25')
    k('s_cselect_b32 s26, 3, %s' % sSEC)
    k('s_sub_u32 s26, s26, 1')
    k('s_lshl_b32 s26, s26, 7')
    k('s_add_u32 s79, s24, s26')
    k('s_mov_b64 s[70:71], s[78:79]')
    k('s_load_dword %s, s[60:61], 0' % sFLAG)
    for it in range(5):
        c = V(8 + it)
        k('v_lshlrev_b32 %s, 16, %s' % (c, c))
        k('v_mul_f32 v13, %s, %s' % (hex(f2u(-LOG2E)), c))
        k('v_exp_f32 v13, v13')
        k('v_add_f32 v13, 1.0, v13')
        k('v_rcp_f32 v13, v13')
        k('v_mul_f32 %s, %s, v13' % (c, c))
        rbf(k, c)
    for it in range(5):
        for d in range(4):
            unpack(k, 'v36', 'v37', V(16 + 4 * it + d))
            a = V(40 + 2 * d, 2)
            cc = V(8 + (it & ~1), 2)
            sel = 'op_sel:[0,1,0] op_sel_hi:[1,1,1]' if it & 1 else 'op_sel_hi:[1,0,1]'
            if it == 0:
                k('v_pk_mul_f32 %s, v[36:37], %s op_sel_hi:[1,0]' % (a, cc))
            else:
                k('v_pk_fma_f32 %s, v[36:37], %s, %s %s' % (a, cc, a, sel))
    for n in range(4):
        k('v_permlane32_swap_b32 %s, %s' % (V(40 + n), V(44 + n)))
    for n in range(2):
        k('v_pk_add_f32 %s, %s, %s' % (V(40 + 2 * n, 2), V(40 + 2 * n, 2), V(44 + 2 * n, 2)))
    for n in range(2):
        k('v_permlane16_swap_b32 %s, %s' % (V(40 + n), V(42 + n)))
    k('v_pk_add_f32 v[40:41], v[40:41], v[42:43]')
    for n in range(2):
        k('v_add_f32_dpp %s, %s, %s row_ror:8 row_mask:0xf bank_mask:0xf' % (V(42 + n), V(40 + n), V(40 + n)))
    k('s_lshl_b32 s24, %s, 8' % sW)
    k('v_lshl_add_u32 v13, v7, 5, s24')
    k('v_lshl_add_u32 v13, v5, 3, v13')
    k('ds_write_b64 v13, v[42:43] offset:%d' % L_RED)
    k('v_min_u32 v13, 240, %s' % vL16)
    k('s_mul_i32 s24, %s, %d' % (sRQ, 3840 * 4))
    k('s_lshl_b32 s25, %s, 8' % sCG)
    k('s_add_u32 s24, s24, s25')
    k('s_add_u32 s24, s24, %s' % sOOB)
    k('s_cmp_eq_u32 %s, 0' % sW)
    k('s_cselect_b32 s76, 0, 0x20000000')
    k('s_add_u32 s24, s24, s76')
    k.drain(vm=False)
    k('s_barrier')
    for n in range(4):
        k('ds_read_b128 %s, v13 offset:%d' % (V(16 + 4 * n, 4), L_RED + 256 * n))
    k.label('L_tag')
    k('s_cmp_lg_u32 %s, 0' % sFLAG)
    k('s_cbranch_scc1 L_tag_ok')
    k.raw('    buffer_load_dword v39, off, %s, 0 sc1' % DB)
    k.raw('    s_waitcnt vmcnt(0)')
    k('v_readfirstlane_b32 %s, v39' % sFLAG)
    k('s_add_u32 s65, s65, 1')
    k('s_cmp_lt_u32 s65, 0x40000')
    k('s_cbranch_scc1 L_tag')
    k.label('L_tag_ok')
    for h in range(2):
        k('v_pk_add_f32 %s, %s, %s' % (V(16 + 2 * h, 2), V(16 + 2 * h, 2), V(20 + 2 * h, 2)))
        k('v_pk_add_f32 %s, %s, %s' % (V(24 + 2 * h, 2), V(24 + 2 * h, 2), V(28 + 2 * h, 2)))
        k('v_pk_add_f32 %s, %s, %s' % (V(16 + 2 * h, 2), V(16 + 2 * h, 2), V(24 + 2 * h, 2)))
    for d in range(3):
        k('s_mov_b32 s25, 0x%08x' % (0x07060500 + 3 - d))
        k('v_perm_b32 %s, %s, v19, s25' % (V(16 + d), V(16 + d)))
    k('v_mov_b32 v19, %s' % sFLAG)
    k('s_mov_b64 exec, 0xffff')
    k('buffer_store_dwordx4 v[16:19], v13, %s, s24 offen offset:%d sc1' % (WS, MODP))
    k('s_mov_b64 exec, -1')

    def bc_loads():
        for it in range(5):
            k('buffer_load_dwordx4 %s, %s, %s, %s offen nt' % (V(100 + 4 * it, 4), V(168 + it), BS, sBO))

    if G.bc_early == 1:
        bc_loads()
    stamp(k)
    k('s_mul_i32 s24, %s, 640' % sW)
    k('s_lshr_b32 s25, %s, 1' % sW)
    k('s_mul_i32 s25, s25, 320')
    k('s_mul_i32 s26, %s, 640' % sBK)
    k('s_add_u32 s25, s25, s26')
    k('s_add_u32 s25, s25, %d' % (3 * 2560 - 640))
    k('v_mov_b32 v34, s24')
    k('v_mov_b32 v35, s25')
    k('v_cmp_gt_u32 vcc, 40, %s' % vLANE)
    k('v_cndmask_b32 v34, v35, v34, vcc')
    k('v_min_u32 v35, %d, %s' % (59 * 16, vL16))
    k('v_add_u32 v34, v34, v35')
    k('s_lshl_b32 s24, %s, 11' % sW)
    k('s_add_u32 s24, s24, %d' % L_K)
    k('v_add_u32 v45, s24, %s' % vL16)
    k('v_lshl_add_u32 v35, v14, 5, s24')
    k('v_lshl_add_u32 v46, v6, 5, s24')
    k('v_mov_b32 v200, v35')
    for it in range(3):
        k('ds_write_b128 %s, %s offset:%d' % (V(96 + it), V(84 + 4 * it, 4), L_U3))
    k.drain(vm=False)
    k('s_barrier')
    for jl in range(2):
        for rd in range(2):
            k('ds_read_b64_tr_b16 %s, v153 offset:%d' % (V(84 + 4 * jl + 2 * rd, 2), 80 * jl + 4 * rd * P40))
    for rd in range(2):
        k('ds_read_b64_tr_b16 %s, v154 offset:%d' % (V(92 + 2 * rd, 2), 4 * rd * P40))
    k('buffer_store_dwordx4 v[84:87], %s, %s, s70 offen sc1' % (vL16, WS))
    k('s_add_u32 s70, s70, 163840')
    k('buffer_store_dwordx4 v[88:91], %s, %s, s70 offen sc1' % (vL16, WS))
    tw = k('buffer_store_dwordx4 v[92:95], v155, %s, s71 offen offset:1024 sc1' % WS)
    if G.bc_early == 2:
        bc_loads()
    X = 60
    for d in range(12):
        unpack(k, V(X + 2 * d), V(X + 2 * d + 1), V(48 + d))
        x = V(X + 2 * d, 2)
        if d == 0:
            k('v_pk_mul_f32 v[10:11], %s, %s' % (x, x))
        else:
            k('v_pk_add_f32 v[8:9], %s, %s' % (x, V(X, 2) if d == 1 else 'v[8:9]'))
            k('v_pk_fma_f32 v[10:11], %s, %s, v[10:11]' % (x, x))
    k('v_add_f32 v8, v8, v9')
    k('v_add_f32 v9, v10, v11')
    allred_hi(k, 'v8', 'v10')
    allred_hi(k, 'v9', 'v10')
    k('s_lshl_b32 s24, %s, 3' % sW)
    k('v_lshl_add_u32 v12, v7, 5, s24')
    k('ds_write_b64 v12, v[8:9] offset:%d' % L_ST)
    k('v_lshlrev_b32 v12, 5, v7')
    k('s_lshr_b32 s27, %s, 2' % sU)
    k('s_mul_i32 s27, s27, 40960')
    k('s_mul_i32 s26, %s, 10240' % sW)
    k('s_add_u32 s27, s27, s26')
    k('s_and_b32 s26, %s, 3' % sU)
    k('s_lshl_b32 s26, s26, 7')
    k('s_add_u32 s27, s27, s26')
    k('s_add_u32 s27, s27, %d' % H1)
    k('v_lshlrev_b32 v15, 9, v6')
    k('v_cmp_gt_u32 vcc, 4, v6')
    k('v_lshl_add_u32 v15, v7, 4, v15')
    k('v_mov_b32 v36, %d' % BIG)
    k('v_cndmask_b32 v37, v36, v15, vcc')
    k.drain(vm=False)
    k('s_barrier')
    k('ds_read_b128 v[20:23], v12 offset:%d' % L_ST)
    k('ds_read_b128 v[24:27], v12 offset:%d' % (L_ST + 16))
    k('v_pk_add_f32 v[20:21], v[20:21], v[22:23]')
    k('v_pk_add_f32 v[24:25], v[24:25], v[26:27]')
    k('v_pk_add_f32 v[20:21], v[20:21], v[24:25]')
    k('v_mul_f32 v28, %s, v20' % hex(f2u(-1.0 / 640)))
    k('v_mov_b32 v30, %s' % hex(f2u(1e-5)))
    k('v_mul_f32 v29, %s, v21' % hex(f2u(1.0 / 640)))
    k('v_fma_f32 v29, -v28, v28, v29')
    k('v_max_f32 v29, 0, v29')
    k('v_add_f32 v30, v30, v29')
    k('v_rsq_f32 v30, v30')
    k('v_mul_f32 v32, v28, v30')
    PT = 204

    def fetch():
        k('s_mov_b32 s25, %d' % MODP)
        for p in range(4):
            for st in range(2):
                k('buffer_load_dwordx4 %s, v34, %s, s25 offen offset:%d sc1' % (V(PT + 16 * st + 4 * p, 4), WS, 2560 * st))
            if p < 3:
                k('s_add_u32 s25, s25, %d' % (3840 * 4))

    fetch()
    for d in range(12):
        x = V(X + 2 * d, 2)
        k('v_pk_fma_f32 %s, %s, v[30:31], v[32:33] op_sel_hi:[1,0,0]' % (x, x))
    k('s_lshl_b32 s72, s2, 2')
    k('s_add_u32 s72, s72, %s' % sW)
    k('s_lshl_b32 s72, s72, %d' % FS)
    k('s_add_u32 s72, s72, %d' % FW)
    k('s_mul_i32 s28, %s, 6' % sW)
    k('s_add_u32 s28, s28, %s' % sTH)
    k('s_lshl_b32 s28, s28, 2')
    k('s_lshr_b32 s24, %s, 1' % sCB)
    k('s_add_u32 s28, s28, s24')
    k('s_lshl_b32 s28, s28, %d' % FS)
    k('s_add_u32 s66, s28, %d' % FW)
    k('v_and_b32 v36, 15, %s' % vLANE)
    k('v_lshlrev_b32 v39, %d, v36' % FS)
    k('v_min_u32 v36, 9, v36')
    k('v_mul_u32_u24 v36, 12, v36')
    k('v_min_u32 v38, 2, v5')
    k('v_add_lshl_u32 v36, v36, v38, %d' % (FS + 3))
    k('s_lshl_b32 s23, %s, %d' % (sTB, FS + 4))
    k('s_add_u32 s23, s23, %d' % FL)
    k('s_lshl_b32 s67, %s, 2' % sU)
    k('s_add_u32 s67, s67, %s' % sW)
    k('s_lshl_b32 s67, s67, %d' % FS)
    k('s_add_u32 s67, s67, %d' % FL)
    stamp(k)
    k.wait_vm(tw)
    flag_store(k, 's72')
    if G.bc_early == 3:
        bc_loads()
    stamp(k)
    k('s_mov_b32 %s, 0x8000' % M.sTMO)
    k('v_mov_b32 v38, %s' % V(PT + 31))
    k.label('L_modp')
    tags = [V(PT + 4 * g + 3) for g in range(8)]
    for g in tags:
        k('v_xor_b32 %s, %s, %s' % (g, sFLAG, g))
    k('v_or3_b32 v38, %s, %s, %s' % tuple(tags[0:3]))
    k('v_or3_b32 v38, v38, %s, %s' % tuple(tags[3:5]))
    k('v_or3_b32 v38, v38, %s, %s' % tuple(tags[5:7]))
    k('v_or_b32 v38, v38, %s' % tags[7])
    k('v_cmp_ne_u32 vcc, 0, v38')
    k('s_cbranch_vccz L_modp_ok')
    save = list(k.vm)
    fetch()
    k.drain(lg=False, force=True)
    k.vm = save
    k('s_sub_u32 %s, %s, 1' % (M.sTMO, M.sTMO))
    k('s_cbranch_scc0 L_modp')
    k.label('L_modp_ok')
    stamp(k)
    for st in range(2):
        M.granule_sum(k, PT + 16 * st, 'v38', '1.0' if st else None)
        k('ds_write_b128 v45, %s offset:%d' % (V(PT + 16 * st, 4), 1024 * st))
    k.drain(vm=False)
    k('buffer_load_dword v244, v36, %s, s66 offen sc1' % WS)
    for it in range(3):
        for st in range(2):
            for h in range(2):
                k('ds_read_b128 %s, v46 offset:%d' % (V((PT, PT + 16, 16)[it] + 8 * st + 4 * h, 4), 1024 * st + 256 * it + 16 * h))
    for it in range(3):
        P = (PT, PT + 16, 16)[it]
        for d in range(4):
            x = V(X + 8 * it + 2 * d, 2)
            k('v_pk_fma_f32 %s, %s, %s, %s' % (x, x, V(P + 8 + 2 * d, 2), V(P + 2 * d, 2)))
            k('v_cvt_pk_bf16_f32 %s, %s, %s' % (V(48 + 4 * it + d), V(X + 8 * it + 2 * d), V(X + 8 * it + 2 * d + 1)))
        th = k('buffer_store_dwordx4 %s, %s, %s, s27 offen sc1' % (V(48 + 4 * it, 4), 'v15' if it < 2 else 'v37', WS))
        if it < 2:
            k('s_add_u32 s27, s27, 4096')
    stamp(k)
    w16_dest(k, 's96', sCWO, sCK, sCKS, sCCH)
    k('s_add_u32 s96, s96, s77')
    k('s_cmp_lt_u32 s2, 192')
    k('s_cbranch_scc0 L_bd_wd')
    k('s_lshr_b32 s27, %s, 1' % sW)
    k('s_and_b32 s25, %s, 1' % sW)
    k('v_lshl_add_u32 v156, v14, 3, v4')
    k('v_mul_u32_u24 v156, %d, v156' % PGU)
    k('v_and_b32 v157, 1, v5')
    k('v_lshlrev_b32 v157, 5, v157')
    k('v_lshl_add_u32 v157, v3, 3, v157')
    k('s_mul_i32 s24, s27, %d' % (80 * PGU))
    k('s_lshl_b32 s26, s25, 6')
    k('s_add_u32 s24, s24, s26')
    k('s_add_u32 s24, s24, %d' % L_B)
    k('v_add3_u32 v159, v156, v157, s24')
    k('s_lshl_b32 s28, %s, 1' % sBKS)
    k('s_add_u32 s28, s28, s25')
    sdiv(k, 's24', 's28', 3, 48)
    k('s_mul_i32 s25, s24, 3')
    k('s_sub_u32 s25, s28, s25')
    k('s_lshl_b32 s26, %s, 1' % sBK)
    k('s_add_u32 s27, s27, s26')
    k('s_mul_i32 s26, s27, %d' % (5 * 2048))
    k('s_mul_i32 s24, s24, 245760')
    k('s_add_u32 s24, s24, %d' % WGU)
    k('s_lshl_b32 s29, %s, 10' % sBCH)
    k('s_add_u32 s24, s24, s29')
    k('s_mul_i32 s29, s25, 81920')
    k('s_movk_i32 s98, 2048')
    k('s_add_u32 s24, s24, s29')
    k('s_add_u32 s97, s24, s26')
    k('s_mul_i32 s24, s27, 48')
    k('s_add_u32 s24, s24, s28')
    k('s_lshl_b32 s24, s24, 1')
    k('s_add_u32 s24, s24, %s' % sBCH)
    k('s_lshl_b32 s24, s24, 8')
    k('s_add_u32 s99, s24, %d' % CSB)
    k('s_branch L_bd_done')
    k.label('L_bd_wd')
    k('s_mov_b32 s29, 0')
    w16_dest(k, 's97', 's29', sBK, sBKS, sBCH)
    k('s_movk_i32 s98, 1024')
    k('s_mov_b32 s99, 0x40000000')
    k.label('L_bd_done')

    def em(x):
        for y in (x if isinstance(x, list) else [x]):
            k(y)

    def raw():
        if not G.bc_early:
            bc_loads()
        for it in range(5):
            k('buffer_load_dwordx4 %s, %s, %s, %s offen nt' % (A(160 + 4 * it, 4), V(236 + it), C2, sCO))

    M.c_setup(em)
    k('s_mul_i32 s69, %s, 163840' % sJ)
    k('s_add_u32 s69, s69, %d' % WQKV)
    wops = M.dma_ops('s69', 0, 0, 2, 10) + M.dma_ops('s69', 81920, 81920, 2, 5)
    n0, n1, n2 = G.w_pre, G.h_at, 20 + G.v_pre
    if n0:
        k('v_cmp_ne_u32 vcc, %s, v244' % sFLAG)
        k('s_cbranch_vccnz L_w_late')
        st0 = (list(k.vm), list(k.lg), list(k.hist))
        main_out, k.out = k.out, G.cold
        k.label('L_w_late')
        M.poll(k, 'v36', 's66', 'wq', first=lambda: flag_store(k, 's67'))
        M.run_ops(k, wops[:n0])
        k('s_branch L_w_join')
        k.out = main_out
        k.vm, k.lg, k.hist = st0
        M.run_ops(k, wops[:n0])
        k.wait_vm(th)
        flag_store(k, 's67')
        k.label('L_w_join')
        k.vm = []
        stamp(k)
    else:
        k.wait_vm(th)
        flag_store(k, 's67')
        stamp(k)
        M.check_or_poll(k, 'v244', 'v36', 's66', 'wq')
    raw()
    M.run_ops(k, wops[n0:12])
    stamp(k)
    k('s_barrier')
    M.run_ops(k, wops[12:n1])
    k('buffer_load_dword v244, v39, %s, s23 offen sc1' % WS)
    G.tok_w = M.run_ops(k, wops[n1:n2])
    G.vops = wops[n2:]
    stamp(k)
    M.check_or_poll(k, 'v244', 'v39', 's23', 'h1')


def b_unit(k):
    for it in range(5):
        k('ds_write_b128 %s, %s' % (V(120 + it), V(100 + 4 * it, 4)))
    k.drain(vm=False)
    k('s_barrier')
    k('s_cmp_lt_u32 s2, 192')
    k('s_cbranch_scc0 L_btr_wd')
    for ks in range(5):
        for rd in range(2):
            k('ds_read_b64_tr_b16 %s, v159 offset:%d' % (V(RB + 4 * ks + 2 * rd, 2), (16 * ks + 4 * rd) * PGU), nodst=True)
    k('s_branch L_btr_done')
    k.label('L_btr_wd')
    w16_tr(k, L_B, RB)
    k.label('L_btr_done')
    k.drain(vm=False, force=True)
    return [(['s_add_u32 s97, s97, s98'] if ks else []) + ['buffer_store_dwordx4 %s, %s, %s, s97 offen sc1' % (V(RB + 4 * ks, 4), vL16, WS)]
            for ks in range(5)]


def col_sums(k):
    def rd(ks):
        for st in range(2):
            for h in range(2):
                k('ds_read_b128 %s, v200 offset:%d' % (V(96 + 16 * (ks & 1) + 8 * st + 4 * h, 4), 640 + 1024 * st + 64 * ks + 16 * h))
    rd(0)
    k('v_mov_b32 v128, 0')
    k('v_mov_b32 v129, 0')
    for ks in range(5):
        W, P = RB + 4 * ks, 96 + 16 * (ks & 1)
        if ks < 4:
            rd(ks + 1)
        for d in range(4):
            unpack(k, 'v130', 'v131', V(W + d))
            for h in range(2):
                k('v_fmac_f32 v129, %s, %s' % (V(130 + h), V(P + 2 * d + h)))
                k('v_fmac_f32 v128, %s, %s' % (V(130 + h), V(P + 8 + 2 * d + h)))
    k('v_lshlrev_b32 v130, 2, %s' % vLANE)
    k('s_nop 0')
    k('v_permlane32_swap_b32 v128, v129')
    k('v_add_f32 v128, v128, v129')
    k('buffer_store_dword v128, v130, %s, s99 offen sc1' % WS)


def c_unit(k, f):
    add, tok = f.add, []
    for it in range(5):
        add('v_accvgpr_read_b32 %s, %s' % (V(8 + it), A(180 + it)))
    for it in range(5):
        add('ds_write_b128 %s, %s' % (V(8 + it), A(160 + 4 * it, 4)), 2 if it < 4 else 1)
    f.add0(lambda: tok.append(f.last))
    add('v_and_b32 v3, 3, %s' % vLANE)
    add('v_bfe_u32 v4, %s, 2, 2' % vLANE)
    add('v_bfe_u32 v5, %s, 4, 2' % vLANE)
    ops = []
    w16_tr(ops.append, L_C, RC)
    ops = [o.replace('v40', 'v13').replace('v41', 'v14').replace('v42', 'v15').replace('s24', 's27') for o in ops]
    for o in ops[:10]:
        add(o)
    add(lambda: (k.wait_lg(tok[0]), k('s_barrier')))
    for o in ops[10:]:
        add(o, 2)


def c_store(k):
    k('v_mov_b32 v8, %s' % V(RC + 19))
    k('s_cmp_lt_u32 s2, 184')
    k('s_cbranch_scc1 L_no_c')
    save = list(k.vm)
    M.run_ops(k, w16_store_ops('s96', RC))
    k.vm = save
    k.label('L_no_c')
```

```python
from asmgen import *
from layout import *
from gen_prep import srd, header, descriptor, unpack, rbf, LOG2E, NAME
KNAME = NAME + '_kernel'

WS, XS, OUTS = 's[4:7]', 's[8:11]', 's[12:15]'
sW, sI, sJ, sTH, sCB, sTB, sTE = 's16', 's17', 's18', 's19', 's20', 's21', 's22'
sFLAG, sTMO = 's64', 's65'
vL16, vLANE, vOFA = 'v255', 'v254', 'v253'
KVP = 5136
RING, RING0 = 152, 64
AUG = 152 * 1024
SCR = 158 * 1024
M32 = 'v_mfma_f32_32x32x16_bf16'
M16 = 'v_mfma_f32_16x16x32_bf16'


class G:
    prof = False
    stop = 99
    nstamp = 0
    fine = True
    c_srate = 12
    c_sfrom = 5
    c_qfrom = 58
    h_at = 18
    w_pre = 0
    out_mod = ''
    v_lag = 8
    bg_slow = 1
    v_probe_lead = 0
    v_check = 8
    v_pre = 10
    c_xat = 100
    rot = 0
    bc_early = 3
    w_late = 1
    w_slots = 3
    wo_pf = 0
    bg_check = 3
    a_probe = 5
    f_first = 10
    f_rate = 5
    h_flag = 76
    h_probe = 38
    h_check = 56
    g_flag = 40
    g_probe = (25, 45)
    g_check = (55, 79)
    tlb = 0
    codepf = 42
    wd_d = 0
    wd_e = 8
    wd_e2 = 22
    wd_f = 45
    f_vrate = 3
    g_quiet = 0
    wd_early = 26
    c_first = 10
    c_second = 6
    bg2_probe = 6
    c_wlead = 1
    force32 = 0
    k_flag_at = 26
    k_probe_at = 22
    v_flag_at = 26
    c_wrate = 8
    mod_after = 0
    bg_probe = 0
    bg_rate = (2, 2)


def stamp(k):
    if G.prof:
        k.drain(vm=False)
        k('%s s[30:31]' % ('s_memrealtime' if G.prof == 'rt' else 's_memtime'))
        k.drain(vm=False)
        k('v_writelane_b32 v249, s30, %d' % G.nstamp)
        G.nstamp += 1


def set_flag(k, base, sidx):
    k('s_lshl_b32 s24, %s, %d' % (sidx, FS))
    k('s_add_u32 s24, s24, %d' % base)
    k('v_mov_b32 v252, %s' % sFLAG)
    k.drain(lg=False, force=True)
    k('s_mov_b64 exec, 1')
    k('buffer_store_dword v252, off, %s, s24 sc1' % WS)
    k('s_mov_b64 exec, -1')


def poll(k, vaddr, soff, name, width=1, first=None):
    op = {1: 'buffer_load_dword', 2: 'buffer_load_dwordx2', 4: 'buffer_load_dwordx4'}[width]

    def probe():
        k('%s %s, %s, %s, %s offen sc1' % (op, V(244, width), vaddr, WS, soff))
        k.drain(lg=False, force=True)

    def check():
        for d in range(width):
            k('v_xor_b32 %s, %s, %s' % (V(244 + d), sFLAG, V(244 + d)))
        if width == 2:
            k('v_or_b32 v244, v244, v245')
        if width == 4:
            k('v_or3_b32 v244, v244, v245, v246')
            k('v_or_b32 v244, v244, v247')
        k('v_cmp_ne_u32 vcc, 0, v244')
        k('s_cbranch_vccz L_pdone_%s' % name)

    k('s_mov_b32 %s, 0x20000' % sTMO)
    if first:
        probe()
        first()
        check()
    k.label('L_poll_%s' % name)
    probe()
    check()
    k('s_sub_u32 %s, %s, 1' % (sTMO, sTMO))
    k('s_cbranch_scc0 L_poll_%s' % name)
    k.label('L_pdone_%s' % name)


class Fill:
    def __init__(self, k):
        self.k, self.q = k, []

    def add(self, x, cost=1):
        self.q.append((x, cost) if cost != 1 else x)

    def run(self, n):
        while n > 0 and self.q:
            x = self.q.pop(0)
            if isinstance(x, tuple):
                n -= x[1] - 1
                x = x[0]
            if callable(x):
                x()
            elif isinstance(x, list):
                for y in x:
                    self.last = self.k(y)
            else:
                self.last = self.k(x)
            n -= 1

    def fit(self, n):
        while self.q:
            c = self.q[0][1] if isinstance(self.q[0], tuple) else 1
            if c > n:
                break
            self.run(1)
            n -= c

    def add0(self, fn):
        prev = self.q.pop()

        def both():
            for y in (prev if isinstance(prev, list) else [prev]):
                self.last = self.k(y)
            fn()
        self.q.append(both)

    def flush(self):
        self.run(1 << 30)


def pf_lines(k, soff, n):
    k('v_lshlrev_b32 v248, 7, %s' % vLANE)
    if n < 64:
        k('v_min_u32 v248, %d, v248' % ((n - 1) * 128))
    k('buffer_load_dword v247, v248, %s, %s offen sc1' % (WS, soff), nodst=True)
    if n > 64:
        k('v_add_u32 v248, 8192, v248')
        if n < 128:
            k('v_min_u32 v248, %d, v248' % ((n - 1) * 128))
        k('buffer_load_dword v247, v248, %s, %s offen sc1' % (WS, soff), nodst=True)


def pf_share(k, sbase, sidx, n):
    k('s_mul_i32 s24, %s, %d' % (sidx, n * 128))
    k('s_add_u32 s24, s24, %s' % sbase)
    pf_lines(k, 's24', n)


def pf_wtile(k, sbase, n):
    k('s_and_b32 s25, %s, 15' % sTB)
    pf_share(k, sbase, 's25', n)


def dma_group(k, sm0, sglob):
    k('s_mov_b32 m0, %s' % sm0)
    t = None
    for b in range(4):
        t = k('buffer_load_dwordx4 %s, %s, %s offen offset:%d lds' % (vL16, WS, sglob, 1024 * b))
    return t


def setup(k):
    k('s_cmp_ge_u32 s2, 256')
    k('s_cbranch_scc1 L_main_end')
    srd(k, 4, 'ws')
    srd(k, 8, 'x')
    srd(k, 12, 'out')
    setup_ids(k)
    k('s_mov_b32 %s, 1' % sFLAG)
    k.drain(force=True)


def setup_ids(k):
    k('v_lshrrev_b32 v1, 6, v0')
    k('v_and_b32 %s, 63, v0' % vLANE)
    k('v_readfirstlane_b32 %s, v1' % sW)
    k('v_lshlrev_b32 %s, 4, %s' % (vL16, vLANE))
    k('s_bfe_u32 s24, s2, 0x20001')
    k('s_lshl_b32 s24, s24, 2')
    k('s_lshr_b32 s25, s2, 6')
    k('s_add_u32 %s, s24, s25' % sI)
    k('s_and_b32 %s, s2, 1' % sTH)
    k('s_bfe_u32 %s, s2, 0x30003' % sCB)
    k('s_lshl_b32 s24, %s, 3' % sTH)
    k('s_add_u32 %s, s24, %s' % (sJ, sCB))
    k('s_lshl_b32 s24, %s, 2' % sI)
    k('s_add_u32 %s, s24, %s' % (sTB, sW))
    k('s_lshl_b32 s25, %s, 1' % sTH)
    k('s_add_u32 %s, s24, s25' % sTE)
    k('s_mov_b32 %s, 0' % sTMO)
    k('v_lshrrev_b32 v1, 4, %s' % vLANE)
    k('v_and_b32 v2, 15, %s' % vLANE)
    k('v_lshlrev_b32 v2, 4, v2')
    k('v_lshl_add_u32 %s, v1, 9, v2' % vOFA)


def dma_ops(sbase, img, lds, nb, nr):
    R = 4096 * nb
    ops = []
    for r in range(nr):
        if r == 0:
            pre = ['s_and_b32 s70, %s, %d' % (sI, 3 if G.rot else 0), 's_mul_i32 s70, s70, %d' % nr, 's_and_b32 s70, s70, 0xfc',
                   's_add_u32 s70, s70, %s' % sW, 's_mul_i32 s70, s70, %d' % (1024 * nb), 's_add_u32 s79, %s, %d' % (sbase, img)]
        else:
            pre = ['s_add_u32 s70, s70, %d' % R]
            if G.rot:
                pre += ['s_cmp_ge_u32 s70, %d' % (nr * R), 's_cselect_b32 s72, %d, 0' % (nr * R), 's_sub_u32 s70, s70, s72']
        pre += ['s_add_u32 m0, s70, %d' % lds, 's_add_u32 s71, s70, s79']
        for b in range(nb):
            ops.append((pre if b == 0 else []) + ['buffer_load_dwordx4 %s, %s, s71 offen offset:%d sc1 lds' % (vL16, WS, 1024 * b)])
    return ops


def granule_sum(k, r, t, plus1):
    k('s_mov_b32 s24, 0x04000c0c')
    k('s_mov_b32 s26, 0x0706000c')
    for p in range(4):
        k('v_perm_b32 %s, %s, %s, s24' % (V(r + 4 * p + 3), V(r + 4 * p), V(r + 4 * p + 1)))
        k('v_perm_b32 %s, %s, %s, s26' % (V(r + 4 * p + 3), V(r + 4 * p + 3), V(r + 4 * p + 2)))
    for h in range(2):
        x = [V(r + 4 * p + 2 * h, 2) for p in range(4)]
        k('v_pk_add_f32 %s, %s, %s' % (x[0], x[0], x[1]))
        k('v_pk_add_f32 %s, %s, %s' % (x[2], x[2], x[3]))
        k('v_pk_add_f32 %s, %s, %s' % (x[0], x[0], x[2]))
        a, b = V(r + 2 * h), V(r + 2 * h + 1)
        k('v_cvt_pk_bf16_f32 %s, %s, %s' % (t, a, b))
        unpack(k, a, b, t)
        if plus1:
            k('v_pk_add_f32 %s, %s, %s op_sel_hi:[1,0]' % (x[0], x[0], plus1))
            k('v_cvt_pk_bf16_f32 %s, %s, %s' % (t, a, b))
            unpack(k, a, b, t)


def flag_ops(soff):
    return ['v_mov_b32 v252, %s' % sFLAG, 's_mov_b64 exec, 1', 'buffer_store_dword v252, off, %s, %s sc1' % (WS, soff), 's_mov_b64 exec, -1']


QF = 224


sNV, sOM, sOT, sKVO, sKF, sVF, sNF, sNG, sNL = 's80', 's81', 's82', 's83', 's84', 's85', 's86', 's87', 's88'
PM = 208
vK, vST, vB0, vBG, VA = 'v216', 'v217', 'v218', 'v219', 220
vNA, vNP, vVO = 'v156', 'v157', 'v158'


def c_setup(k):
    k('s_lshl_b32 s24, %s, 4' % sTB)
    k('s_add_u32 s24, s24, %s' % sJ)
    k('s_mul_i32 %s, s24, 5120' % sKVO)
    k('s_add_u32 %s, %s, %d' % (sKVO, sKVO, KV))
    k('s_lshl_b32 s24, s24, %d' % FS)
    k('s_add_u32 %s, s24, %d' % (sKF, FKV))
    k('s_add_u32 %s, s24, %d' % (sVF, FV))
    k('v_and_b32 %s, 31, %s' % (vVO, vLANE))
    k('v_lshlrev_b32 %s, 5, %s' % (vVO, vVO))
    k('v_lshrrev_b32 v201, 5, %s' % vLANE)
    k('v_lshl_add_u32 %s, v201, 4, %s' % (vVO, vVO))
    k('s_add_u32 s24, %s, 8' % sW)
    k('s_mul_i32 s24, s24, %d' % KVP)
    k('v_add_u32 v154, s24, %s' % vL16)
    k('v_add_u32 v155, s24, %s' % vVO)
    k('v_min_u32 v150, 11, %s' % vLANE)
    k('v_mul_u32_u24 v150, %d, v150' % KVP)
    k('v_mov_b32 v152, 0x3f803f80')
    k('v_mov_b32 v153, 0x3f803f80')
    k('s_mov_b32 s90, %s' % hex(f2u((DH ** -0.5) * LOG2E)))
    k('s_mov_b32 s91, s90')
    k('s_lshl_b32 s24, %s, 2' % sI)
    k('s_lshl_b32 s25, %s, 1' % sW)
    k('s_add_u32 s24, s24, s25')
    k('s_mul_i32 %s, s25, %d' % (sNL, KVP))
    k('s_max_u32 s25, s24, 8')
    k('s_sub_u32 s25, s25, 8')
    k('s_lshl_b32 s25, s25, 4')
    k('s_add_u32 s25, s25, %s' % sJ)
    k('s_mul_i32 %s, s25, 5120' % sNG)
    k('s_add_u32 %s, %s, %d' % (sNG, sNG, KV))
    k('s_lshl_b32 s25, s25, %d' % FS)
    k('s_add_u32 s25, s25, %d' % FKV)
    k(['s_cmp_ge_u32 s24, 8', 's_cselect_b32 %s, s25, %s' % (sNF, sKF), 's_cselect_b64 s[30:31], -1, 0'])
    k('v_mov_b32 v201, 0x7fffffff')
    k('v_cndmask_b32 %s, v201, %s, s[30:31]' % (vNA, vL16))
    k('v_and_b32 v201, 1, %s' % vLANE)
    k('v_lshlrev_b32 v201, %d, v201' % (FS + 4))
    k('v_cndmask_b32 %s, 0, v201, s[30:31]' % vNP)
    k('s_lshl_b32 s24, s2, %d' % FS)
    k(['s_cmp_eq_u32 %s, 0' % sW, 's_cselect_b32 s25, 0, 0x40000000'])
    k('s_add_u32 s24, s24, s25')
    k('s_add_u32 s92, s24, %d' % FBG)


def d_setup(k):
    w16_base(k, 's77', WO, 5)
    w16_base(k, 's74', WD, 12)
    k('s_mul_i32 s23, %s, 245760' % sJ)
    k('s_add_u32 s23, s23, %d' % WGU)
    k('v_and_b32 v201, 3, %s' % vLANE)
    k('v_bfe_u32 v202, %s, 2, 1' % vLANE)
    k('v_bfe_u32 v203, %s, 3, 1' % vLANE)
    k('s_mul_i32 s24, %s, 3' % sJ)
    k('s_and_b32 s24, s24, 0xfffe')
    k('v_mad_u32_u24 v219, v201, 48, s24')
    k('v_lshl_add_u32 v219, v202, 1, v219')
    k('v_add_u32 v219, v219, v203')
    k('s_mul_i32 s24, %s, 5' % sCB)
    k('s_lshr_b32 s24, s24, 2')
    k('s_add_u32 s24, s24, 20')
    k('v_mad_u32_u24 v204, v201, 60, s24')
    k('v_mad_u32_u24 v204, v203, 30, v204')
    k('v_cmp_gt_u32 vcc, 16, %s' % vLANE)
    k('v_add_u32 v204, v204, v202')
    k('s_lshr_b32 s25, %s, 2' % sCB)
    k('v_cndmask_b32 v219, v204, v219, vcc')
    k('s_mul_i32 s24, %s, 24' % sW)
    k('s_add_u32 s24, s24, s25')
    k('s_add_u32 s24, s24, 128')
    k('v_lshl_add_u32 v204, %s, 1, s24' % vLANE)
    k('v_cmp_le_u32 vcc, 256, v204')
    k('v_subrev_u32 v205, 72, v204')
    k('s_mul_i32 s24, %s, 10' % sW)
    k('v_cndmask_b32 v204, v204, v205, vcc')
    k('v_cmp_gt_u32 vcc, 32, %s' % vLANE)
    k('s_add_u32 s24, s24, s25')
    k('s_add_u32 s24, s24, 128')
    k('v_cndmask_b32 v219, v204, v219, vcc')
    k('v_cmp_gt_u32 vcc, 44, %s' % vLANE)
    k('v_min_u32 v204, 48, %s' % vLANE)
    k('v_lshl_add_u32 v204, v204, 1, s24')
    k('v_cndmask_b32 v219, v204, v219, vcc')
    k('s_mul_i32 s24, %s, 5' % sCB)
    k('s_lshr_b32 s24, s24, 2')
    k('s_add_u32 s24, s24, 40')
    k('v_cmp_gt_u32 vcc, 56, %s' % vLANE)
    k('v_mad_u32_u24 v204, v201, 60, s24')
    k('v_add_u32 v204, v204, v202')
    k('v_cndmask_b32 v219, v204, v219, vcc')
    k('v_lshlrev_b32 v219, %d, v219' % FS)
    k('s_mov_b32 s89, %d' % FBG)
    k('s_mul_i32 s75, %s, 320' % sCB)
    k('s_add_u32 s75, s75, %d' % (MODP + 2 * 2560))
    k('v_min_u32 v242, %d, %s' % (59 * 16, vL16))
    k('v_cmp_le_u32 vcc, 320, v242')
    k('v_add_u32 v241, %d, v242' % (3 * 2560 - 320))
    k('s_min_u32 s24, %s, 2' % sW)
    k('v_cndmask_b32 v240, v242, v241, vcc')
    k('v_cmp_le_u32 vcc, 640, v242')
    k('v_add_u32 v241, %d, v242' % (2 * 2560 - 640))
    k('s_nop 0')
    k('v_cndmask_b32 v240, v240, v241, vcc')
    k('s_mul_i32 s76, %s, 3' % sJ)
    k('s_add_u32 s76, s76, s24')
    k('s_lshl_b32 s76, s76, 9')
    k('s_add_u32 s76, s76, %d' % CSB)
    k('v_and_b32 v241, 31, %s' % vLANE)
    k('v_lshlrev_b32 v241, 2, v241')
    k('v_lshrrev_b32 v242, 5, %s' % vLANE)
    k('v_lshl_add_u32 v248, v242, 8, v241')
    for r in range(16):
        kl = 8 * (r >> 2) + (r & 3)
        k('s_mov_b32 %s, 0x%x' % (S(32 + 2 * r), (0xffffffff << kl) & 0xffffffff))
        k('s_mov_b32 %s, 0x%x' % (S(33 + 2 * r), (0xffffffff << (kl + 4)) & 0xffffffff))
    k('v_mov_b32 v201, 0xffff')
    k('v_mov_b32 v202, 0xffff0000')
    for p in range(8):
        k('v_cndmask_b32 %s, 0, v201, %s' % (V(PM + p), S(32 + 4 * p, 2)))
        k('v_cndmask_b32 v203, 0, v202, %s' % S(34 + 4 * p, 2))
        k('v_or_b32 %s, %s, v203' % (V(PM + p), V(PM + p)))
    k('s_mul_i32 s24, %s, %d' % (sW, KVP))
    k('v_add_u32 %s, s24, %s' % (vK, vL16))
    k('v_and_b32 v201, 3, %s' % vLANE)
    k('v_cmp_eq_u32 vcc, 0, v201')
    k('v_bfe_u32 v202, %s, 2, 2' % vLANE)
    k('v_lshrrev_b32 v203, 5, %s' % vLANE)
    k('v_lshl_add_u32 v202, v203, 2, v202')
    k('v_cndmask_b32 %s, 0, 16, vcc' % vST)
    k('v_mov_b32 v204, 5120')
    k('v_mov_b32 v205, 2056')
    k('v_cndmask_b32 %s, v204, v205, vcc' % vB0)
    k('v_and_b32 v203, 16, %s' % vLANE)
    k('v_cmp_eq_u32 vcc, 0, v203')
    k('v_lshlrev_b32 v201, 3, v201')
    k('v_add_u32 v201, 3072, v201')
    k('v_cndmask_b32 %s, %s, 32, vcc' % (vST, vST))
    k('v_cndmask_b32 %s, %s, v201, vcc' % (vB0, vB0))
    k('v_mad_u32_u24 %s, %s, v202, %s' % (vB0, vST, vB0))
    k('v_add_u32 %s, s24, %s' % (vB0, vB0))
    k('s_sub_i32 %s, 8, %s' % (sNV, sTB))
    k('s_max_i32 %s, %s, 0' % (sNV, sNV))
    k('v_cmp_gt_u32 vcc, 32, %s' % vLANE)
    k('v_mov_b32 v201, 0x3f803f80')
    k('v_mov_b32 v202, 0x3f80')
    k('v_cndmask_b32 v201, 0, v201, vcc')
    k('v_cndmask_b32 v202, 0, v202, vcc')
    k('v_accvgpr_write_b32 a252, v201')
    k('v_accvgpr_write_b32 a253, v202')
    k('v_accvgpr_write_b32 a254, 0')
    k('v_accvgpr_write_b32 a255, 0')
    k('v_mov_b32 v202, 0')
    k('v_mov_b32 v203, 0')
    for d in range(2):
        k('v_mov_b32 %s, 0' % V(QF + 6 + d))
        k('v_mov_b32 %s, 0' % V(QF + 14 + d))
    k('s_mul_i32 %s, %s, 40960' % (sOM, sTB))
    k('s_add_u32 %s, %s, %d' % (sOM, sOM, O))
    k('s_lshl_b32 s24, %s, 9' % sJ)
    k('s_add_u32 %s, %s, s24' % (sOT, sOM))
    k('s_add_u32 %s, %s, 32768' % (sOT, sOT))
    k('s_lshl_b32 s24, %s, 10' % sJ)
    k('s_add_u32 %s, %s, s24' % (sOM, sOM))
    k('s_sub_u32 s93, %s, %d' % (sKF, FKV))
    k('s_add_u32 s94, s93, %d' % FOA)
    k('s_lshl_b32 s95, %s, 2' % sTE)
    k('s_add_u32 s95, s95, %s' % sW)
    k('s_lshl_b32 s95, s95, %d' % (FS + 2))
    k('v_and_b32 v250, 3, %s' % vLANE)
    k('v_lshlrev_b32 v250, %d, v250' % FS)
    k('v_bfe_u32 v251, %s, 2, 1' % vLANE)
    k('v_lshl_add_u32 v250, v251, %d, v250' % (FS + 4))


def phase_c(k):
    from gen_front import b_unit, c_unit, c_store, col_sums
    aK, aT, aV, aQ, WB, NB, AH = 0, 16, 32, 48, 64, 8, 6
    tok = {}
    va, vq, vs, f = Fill(k), Fill(k), Fill(k), Fill(k)
    k('s_mul_i32 s68, %s, 40960' % sTB)
    k('s_add_u32 s68, s68, %d' % H1)
    for ks in range(40):
        pre = ['s_add_u32 s68, s68, 4096'] if ks & 3 == 0 and ks else []
        va.add(pre + ['buffer_load_dwordx4 %s, %s, %s, s68 offen offset:%d sc1' % (A(4 * ks, 4), vL16, WS, 1024 * (ks & 3))])
    va.run(G.c_first)
    for op in b_unit(k):
        vs.add(op)
    k.wait_vm(G.tok_w)
    k('s_barrier')
    stamp(k)
    k('v_add_u32 v148, 65536, %s' % vL16)
    k('v_add_u32 v149, 131072, %s' % vL16)
    for op in G.vops:
        vq.add(op)
    if G.vops:
        vq.add0(lambda: tok.__setitem__('v', vq.last))
    qorder = list(range(8, 40)) + list(range(8))
    steps = [(16 * t, ks, 2 * ks + t) for ks in range(40) for t in range(2)] + [(aV, ks, 80 + ks) for ks in range(40)] + [(aQ, ks, 120 + ks) for ks in qorder]

    def rd(n):
        if n == 80 and G.vops:
            while 'v' not in tok:
                vq.run(1)
            k.wait_vm(tok['v'])
            k('s_barrier')
        if n == 120:
            assert not vs.q and not vq.q
            k.wait_vm(tok['cs'])
            k.wait_vm(vs.last)
            k.wait_vm(vq.last)
            k('s_barrier')
            run_ops(k, [flag_ops('s92')])
        byte = 1024 * steps[n][2]
        k('ds_read_b128 %s, %s offset:%d' % (V(WB + 4 * (n % NB), 4), [vL16, 'v148', 'v149'][byte >> 16], byte & 0xffff))

    PK = 128

    def publish(blocks, name):
        for b, src in blocks:
            for d in range(4):
                f.add('v_cvt_pk_bf16_f32 %s, %s, %s' % (V(PK + 4 * b + d), V(src + 2 * d), V(src + 2 * d + 1)))
            pre = ['s_add_u32 %s, %s, 4096' % (sKVO, sKVO)] if b == 4 else []
            f.add(pre + ['buffer_store_dwordx4 %s, %s, %s, %s offen offset:%d sc1' % (V(PK + 4 * b, 4), vVO if b > 2 else vL16, WS, sKVO, 1024 * (b & 3))])
        f.add0(lambda: tok.__setitem__(name, f.last))
        for b, src in blocks:
            f.add('ds_write_b128 %s, %s offset:%d' % ('v155' if b > 2 else 'v154', V(PK + 4 * b, 4), 1024 * b))

    for n in range(AH):
        rd(n)
    col_sums(f.add)
    f.add0(lambda: tok.__setitem__('cs', f.last))
    g = Fill(k)
    d_setup(g.add)
    row_offsets(g.add, 'v242', 'v243', 'v106')
    g.add('s_mov_b32 s66, s26')
    k.lg_batch = 2
    for n, (acc, ks, blk) in enumerate(steps):
        if n in (80, 120):
            stamp(k)
        a = V(acc, 16)
        k('%s %s, %s, %s, %s' % (M32, a, V(WB + 4 * (n % NB), 4), A(4 * ks, 4), '0' if n in (0, 1, 80, 120) else a))
        if n + AH < len(steps):
            rd(n + AH)
        if n == G.c_qfrom:
            for op in dma_ops('s69', 131072, 131072, 2, 4):
                vq.add(op)
        if n & 1 == 0:
            (va if va.q else vq).run(1)
        if n >= G.c_sfrom and (n - G.c_sfrom) % G.c_srate == 0:
            vs.run(1)
        if n == 80:
            assert not f.q
            k('s_barrier')
            for op in dma_ops('s69', 122880, 122880, 2, 1):
                vq.add(op)
        if n == 82:
            publish([(0, aK), (1, aK + 8), (2, aT)], 'k')
            f.add('ds_write_b64 v150, v[152:153] offset:5120')
            for d in range(4):
                f.add('v_mul_f32 %s, s90, %s' % (V(aT + 8 + d), V(aT + 8 + d)))
            f.add('v_cvt_pk_bf16_f32 v24, v24, v25')
            f.add('v_cvt_pk_bf16_f32 v25, v26, v27')
            f.add('v_cmp_gt_u32 s[28:29], 32, %s' % vLANE)
            for d in range(2):
                f.add('v_cndmask_b32 %s, 0, %s, s[28:29]' % (V(QF + 4 + d), V(24 + d)))
                f.add('v_cndmask_b32 %s, %s, 0, s[28:29]' % (V(QF + 12 + d), V(24 + d)))
        if n == 122:
            publish([(3, aV), (4, aV + 8)], 'vv')
            c_unit(k, f)
        if n == 80 + G.k_flag_at:
            k.wait_vm(tok['k'])
            run_ops(k, [flag_ops(sKF)])
        if n == 120 + G.k_probe_at:
            k('buffer_load_dword v244, %s, %s, %s offen sc1' % (vNP, WS, sNF))
        if n == 120 + G.v_flag_at:
            k.wait_vm(tok['vv'])
            run_ops(k, [flag_ops(sVF)])
            assert not f.q
            c_store(k)
        (f if f.q else g).run(4)
    assert not f.q
    g.flush()
    k.lg_batch = 1
    stamp(k)


def ring_ops(g0, g1):
    lds = ((RING0 + 4 * g0) % RING) * 1024
    assert lds + (g1 - g0) * 4096 <= RING * 1024
    nb = 4 if (g1 - g0) % 4 == 0 else 2
    return dma_ops('s23', 4096 * g0, lds, nb, (g1 - g0) // nb)


def wd_ops(n0, n1):
    ops = []
    for n in range(n0, n1):
        c, ct = divmod(n, 5)
        pre = []
        if ct == 0:
            pre = ['s_add_u32 s73, %s, %d' % (sI if G.rot else '0', c & 3), 's_and_b32 s73, s73, 3', 's_add_u32 s73, s73, %d' % (c & ~3),
                   's_mul_i32 s73, s73, 5120', 's_add_u32 s73, s73, s74']
        if ct == 4:
            pre = ['s_add_u32 s73, s73, 4096']
        ops.append(pre + ['buffer_load_dwordx4 %s, %s, %s, s73 offen offset:%d sc1' % (wd_reg(n), vL16, WS, 1024 * (ct & 3))])
    return ops


def w16_base(k, sdst, base, nks):
    k('s_lshl_b32 %s, %s, 2' % (sdst, sCB))
    k('s_add_u32 %s, %s, %s' % (sdst, sdst, sW))
    k('s_mul_i32 %s, %s, %d' % (sdst, sdst, nks * 5120))
    k('s_add_u32 %s, %s, %d' % (sdst, sdst, base))


def w16_ops(sreg, n0, n1, areg):
    ops = []
    for n in range(n0, n1):
        pre = ['s_add_u32 %s, %s, 4096' % (sreg, sreg)] if n & 3 == 0 and n > 0 else []
        ops.append(pre + ['buffer_load_dwordx4 %s, %s, %s, %s offen offset:%d sc1' % (areg(n), vL16, WS, sreg, 1024 * (n & 3))])
    return ops


def run_ops(k, ops):
    t = None
    for op in ops:
        for y in op:
            t = k(y)
    return t


def wd_reg(n):
    if n < 20:
        return A(160 + 4 * n, 4)
    if n < 41:
        return V(160 + 4 * (n - 20), 4)
    if n < 48:
        return V(132 + 4 * (n - 41), 4)
    return A(4 * (n - 48), 4)


def wo_reg(n):
    return A(4 * n, 4)


def kv_dma(k, blocks, va=vNA):
    k('s_mov_b32 s24, %s' % sNG)
    k('s_mov_b32 s25, %s' % sNL)
    t = None
    for sl in range(2):
        if sl:
            k('s_add_u32 s24, s24, %d' % (16 * 5120))
            k('s_add_u32 s25, s25, %d' % KVP)
        k('s_mov_b32 m0, s25')
        for b in blocks:
            t = k('buffer_load_dwordx4 %s, %s, s24 offen offset:%d sc1 lds' % (va, WS, 1024 * b))
    return t


def check_or_poll(k, vreg, vaddr, soff, name):
    k('v_cmp_ne_u32 vcc, %s, %s' % (sFLAG, vreg))
    k('s_cbranch_vccz L_pdone_%s' % name)
    save = list(k.vm)
    poll(k, vaddr, soff, name)
    k.vm = save


def phase_d(k):
    k.comment('---- phase D: attention')
    from gen_front import c_unit
    aQ = 48
    check_or_poll(k, 'v244', vNP, sNF, 'k')
    stamp(k)
    tokk = kv_dma(k, (0, 1, 2))
    k('s_add_u32 %s, %s, %d' % (sNF, sNF, FV - FKV))
    k('s_add_u32 %s, %s, 3072' % (sNG, sNG))
    k('s_add_u32 %s, %s, 3072' % (sNL, sNL))
    for d in range(8):
        k('v_pk_mul_f32 %s, %s, s[90:91]' % (V(aQ + 2 * d, 2), V(aQ + 2 * d, 2)))
        k('v_cvt_pk_bf16_f32 %s, %s, %s' % (V(QF + (d & 3) + 8 * (d >> 2)), V(aQ + 2 * d), V(aQ + 2 * d + 1)))
    tile_bases(k, O, 40960, 4096)
    k('s_add_u32 s92, s92, %d' % (FBG2 - FBG))
    k('v_mov_b32 v206, %s' % vNA)
    k('v_mov_b32 v207, %s' % vNP)
    k.wait_vm(tokk - G.v_probe_lead)
    k('buffer_load_dword v245, %s, %s, s89 offen sc1' % (vBG, WS))
    k('buffer_load_dword v244, %s, %s, %s offen sc1' % (vNP, WS, sNF))
    k.wait_vm(tokk)
    k.drain(vm=False)
    k('s_barrier')
    run_ops(k, [flag_ops('s92')])
    tk = {}

    def after_probe(tag):
        check_or_poll(k, 'v244', 'v207', sNF, 'v' + tag)
        tk['v'] = kv_dma(k, (0, 1), 'v206')
        check_or_poll(k, 'v245', vBG, 's89', 'bg' + tag)

    bg = []
    small = []
    for p in range(4):
        small.append((['s_add_u32 s75, s75, %d' % (3840 * 4)] if p else []) + ['buffer_load_dwordx4 %s, v240, %s, s75 offen sc1' % (A(208 + 4 * p, 4), WS)])
    for p in range(8):
        small.append((['s_add_u32 s76, s76, %d' % (48 * 512)] if p else []) +
                     ['buffer_load_dword %s, v248, %s, s76 offen sc1' % (A(224 + 2 * p), WS),
                      'buffer_load_dword %s, v248, %s, s76 offen offset:128 sc1' % (A(225 + 2 * p), WS)])
    xl = [['buffer_load_dwordx4 a[240:243], v242, %s, s66 offen nt' % XS], ['buffer_load_dwordx4 a[244:247], v242, %s, s66 offen offset:64 nt' % XS],
          ['buffer_load_dwordx2 a[248:249], v243, %s, s66 offen offset:128 nt' % XS]]
    bgall = small[:4] + ring_ops(0, (RING - RING0) // 4) + xl + small[4:]
    bg2 = w16_ops('s77', 0, 25, wo_reg) + wd_ops(0, G.wd_d)
    bg.extend(bgall)
    if G.wo_pf:
        k('s_mul_i32 s26, %s, 102400' % sCB)
        k('s_add_u32 s26, s26, %d' % WO)
        pf_wtile(k, 's26', 50)
    stamp(k)
    KB, VB, PB, OA, NM, OT = 144, 168, 184, 144, 200, 240
    order = [8, 0, 1, 2, 3, 4, 5, 6, 7]
    bg_on = [True]
    for X in range(2):
        Q1, Q2 = V(QF + 8 * X, 4), V(QF + 8 * X + 4, 4)
        for n, (kk, rd) in enumerate(((0, 0), (0, 1), (1, 0), (1, 1))):
            k('v_mad_u32_u24 %s, %s, %d, %s' % (V(VA + n), vST, 16 * kk + 8 * rd + 32 * X, vB0))

        def rdk(n):
            u = order[n]
            k('ds_read_b128 %s, %s offset:%d' % (V(KB + 8 * (n % 3), 4), vK, u * KVP + 1024 * X))
            k('ds_read_b128 %s, %s offset:%d' % (V(KB + 8 * (n % 3) + 4, 4), vK, u * KVP + 2048))

        f = Fill(k)

        def maxes(u, add):
            for p in range(8):
                m = V(204 + (p & 1))
                if u == 0 and p < 2:
                    add('v_max_f32 %s, %s, %s' % (m, V(2 * p), V(2 * p + 1)))
                else:
                    add('v_max3_f32 %s, %s, %s, %s' % (m, m, V(16 * u + 2 * p), V(16 * u + 2 * p + 1)))

        def post(u):
            if u == 0:
                for r in range(16):
                    f.add('v_cndmask_b32 %s, %s, %s, %s' % (V(r), V(r), V(128 + r), S(32 + 2 * r, 2)))
            maxes(u, f.add)

        pv = [(u, kk) for u in (1, 2, 3, 4, 5, 6, 7, 8, 0) for kk in range(2)]

        def rdv(n):
            u, kk = pv[n]
            for rd in range(2):
                k('ds_read_b64_tr_b16 %s, %s offset:%d' % (V(VB + 4 * (n % 4) + 2 * rd, 2), V(VA + 2 * kk + rd), u * KVP))

        def qk(edge, bgl):
            k.lg_batch = 2
            for n in range(9):
                u = order[n]
                sreg = V(16 * u, 16)
                first = '%s %s, %s, %s, ' % (M32, sreg, V(KB + 8 * (n % 3), 4), Q1)
                if edge and u < 8:
                    k('s_cmp_gt_u32 %s, %d' % (sNV, u))
                    k('v_mov_b32 v201, %s' % V(KB + 8 * (n % 3)))
                    k('s_cbranch_scc1 L_neg_%d_%d' % (X, u))
                    k(first + '0')
                    k('s_branch L_pos_%d_%d' % (X, u))
                    k.label('L_neg_%d_%d' % (X, u))
                    k.raw('    ' + first + V(PB, 16))
                    k.label('L_pos_%d_%d' % (X, u))
                else:
                    k(first + '0')
                f.run(6)
                k('%s %s, %s, %s, %s' % (M32, sreg, V(KB + 8 * (n % 3) + 4, 4), Q2, sreg))
                if n + 2 < 9:
                    rdk(n + 2)
                if X == 0 and n == G.v_check:
                    after_probe('e' if edge else 'n')
                if n % 2 == 1 and bgl and X:
                    run_ops(k, [bgl.pop(0)])
                if n >= 2:
                    post(order[n - 1])
                f.run(4)
            k.lg_batch = 1
            post(order[8])
            if X:
                rdv(0)
                rdv(1)
            f.flush()

        rdk(0)
        rdk(1)
        k('s_cmp_lg_u32 %s, 0' % sNV)
        k('s_cbranch_scc1 L_qkedge_%d' % X)
        st0 = (list(k.vm), list(k.lg), list(k.hist))
        main_out, k.out = k.out, G.cold
        k.label('L_qkedge_%d' % X)
        for r in range(16):
            k('v_mov_b32 %s, 0xf149f2ca' % V(PB + r))
        qk(True, list(bg))
        k('s_branch L_qkdone_%d' % X)
        k.out = main_out
        k.vm, k.lg, k.hist = st0
        qk(False, bg)
        k.label('L_qkdone_%d' % X)
        if G.fine:
            stamp(k)
        k('v_max_f32 v204, v204, v205')
        k('v_mov_b32 v205, v204')
        k('v_permlane32_swap_b32 v204, v205')
        k('v_max_f32 v204, v204, v205')
        k('v_cvt_pk_bf16_f32 v205, -v204, -v204')
        k('v_and_b32 v206, 0xffff0000, v205')
        k('v_add_f32 v204, v204, v206')
        k('v_cvt_pk_bf16_f32 v207, -v204, -v204')
        k('v_and_b32 v206, 0xffff0000, v207')
        k('v_add_f32 v204, v204, v206')
        k('v_alignbit_b32 %s, v207, v205, 16' % V(NM))
        k('v_cvt_pk_bf16_f32 %s, -v204, -v204' % V(NM + 1))
        oacc = V(OA, 16)
        pend = []
        vready = [X == 1]
        tiles = [1, 2, 3, 4, 5, 6, 7, 0]

        def sub(u):
            k('%s %s, a[252:255], %s, %s' % (M32, V(16 * u, 16), V(NM, 4), V(16 * u, 16)))

        def issue():
            if pend and vready[0]:
                n, preg = pend.pop(0)
                k('%s %s, %s, %s, %s' % (M32, oacc, V(VB + 4 * (n % 4), 4), preg, oacc if n else '0'))
                if n + 2 < 18:
                    rdv(n + 2)

        def bgrun(n):
            while bg_on[0] and bg and n > 0:
                run_ops(k, [bg.pop(0)])
                n -= 1

        sub(tiles[0])
        sub(tiles[1])
        for ti, u in enumerate(tiles):
            P = 16 * u
            if X == 0 and ti == G.bg2_probe:
                k('s_mov_b32 s89, %d' % FBG2)
                k('buffer_load_dword v251, %s, %s, s89 offen sc1' % (vBG, WS))
            if G.fine > 2 and ti in (1, 2, 3, 5):
                stamp(k)
            if X == 1 and ti == 0:
                check_or_poll(k, 'v251', vBG, 's89', 'bg2')
                bg.extend(bg2)
            if X == 1 and ti == 0:
                k.wait_vm(toka)
                run_ops(k, [flag_ops('s94')])
            if X == 1 and ti == G.a_probe:
                k('s_add_u32 s25, s95, %d' % FOA)
                k('buffer_load_dword v251, v250, %s, s25 offen sc1' % WS)
            for h in range(2):
                for r in range(8 * h, 8 * h + 8):
                    k('v_exp_f32 %s, %s' % (V(16 * u + r), V(16 * u + r)))
                    if r & 7 == 1 or (r & 7 == 5 and len(pend) > 1 and (r != 13 or ti + 2 >= 8)):
                        issue()
                    if r == 13 and ti + 2 < 8:
                        sub(tiles[ti + 2])
                if X == 0 and 2 * ti + h == G.v_lag:
                    vready[0] = True
                    k.wait_vm(tk['v'])
                    k('s_barrier')
                    rdv(0)
                    rdv(1)
                bgrun(G.bg_rate[h] if vready[0] else G.bg_slow)
                for p in range(4 * h, 4 * h + 4):
                    k('v_cvt_pk_bf16_f32 %s, %s, %s' % (V(P + p), V(16 * u + 2 * p), V(16 * u + 2 * p + 1)))
                if u:
                    pend.append((2 * ti + h, V(P + 4 * h, 4)))
                else:
                    for p in range(4 * h, 4 * h + 4):
                        k('v_and_b32 %s, %s, %s' % (V(136 + p), V(p), V(PM + p)))
                    pend.append((14 + h, V(136 + 4 * h, 4)))
        for p in range(8):
            k('v_xor_b32 %s, %s, %s' % (V(128 + p), V(p), V(136 + p)))
            if p == 0:
                issue()
        pend += [(16, V(128, 4)), (17, V(132, 4))]
        while pend:
            issue()
        if G.fine:
            stamp(k)
        k('v_rcp_f32 v204, %s' % V(OA + 12))
        for p in range(6):
            k('v_pk_mul_f32 %s, %s, v[204:205] op_sel_hi:[1,0]' % (V(OA + 2 * p, 2), V(OA + 2 * p, 2)))
        for p in range(4):
            k('v_cvt_pk_bf16_f32 %s, %s, %s' % (V(244 + p), V(OA + 2 * p), V(OA + 2 * p + 1)))
        toka = k('buffer_store_dwordx4 v[244:247], %s, %s, %s offen sc1' % (vL16, WS, sOM))
        if X == 0:
            k('s_add_u32 %s, %s, 16384' % (sOM, sOM))
        for p in range(2):
            k('v_cvt_pk_bf16_f32 %s, %s, %s' % (V(OT + 2 * X + p), V(OA + 8 + 2 * p), V(OA + 9 + 2 * p)))
        if G.fine and X == 0:
            stamp(k)
    k('s_mov_b32 exec_hi, 0')
    G.tok_o = k('buffer_store_dwordx4 %s, %s, %s, %s offen sc1' % (V(OT, 4), vL16, WS, sOT))
    k('s_mov_b64 exec, -1')
    assert len(bg) <= len(bg2)
    G.bg_left = bg
    stamp(k)


def colconst_issue(k, tmp):
    k('s_mul_i32 s24, %s, 320' % sCB)
    k('s_add_u32 s24, s24, %d' % (MODP + 2 * 2560))
    k('v_min_u32 %s, %d, %s' % (V(tmp + 16), 39 * 16, vL16))
    k('v_cmp_le_u32 vcc, 320, %s' % V(tmp + 16))
    k('v_add_u32 %s, %d, %s' % (V(tmp + 17), 3 * 2560 - 320, V(tmp + 16)))
    k('v_cndmask_b32 %s, %s, %s, vcc' % (V(tmp + 17), V(tmp + 16), V(tmp + 17)))
    for p in range(4):
        k('buffer_load_dwordx4 %s, %s, %s, s24 offen sc1' % (V(tmp + 4 * p, 4), V(tmp + 17), WS))
        if p < 3:
            k('s_add_u32 s24, s24, %d' % (3840 * 4))


def colconst_finish(k, tmp):
    granule_sum(k, tmp, V(tmp + 17), V(tmp + 18, 2))
    k('v_add_u32 %s, %d, %s' % (V(tmp + 16), SCR, V(tmp + 16)))
    k('ds_write_b128 %s, %s' % (V(tmp + 16), V(tmp, 4)))
    k.drain(vm=False)


def colconst_read(k, which, dst, t0, t1):
    k('v_and_b32 %s, 48, %s' % (t1, vLANE))
    k('v_lshlrev_b32 %s, 1, %s' % (t0, t1))
    k('v_add_u32 %s, %d, %s' % (t0, SCR + 320 * which, t0))
    k('v_add_u32 %s, %d, %s' % (t1, SCR + 320 * which, t1))
    for ct in range(4):
        k('ds_read_b128 %s, %s offset:%d' % (V(dst + 4 * ct, 4), t0, 128 * (ct >> 1) + 16 * (ct & 1)))
    k('ds_read_b128 %s, %s offset:256' % (V(dst + 16, 4), t1))


def row_offsets(k, va, vb, vt='v251'):
    k('v_and_b32 %s, 15, %s' % (va, vLANE))
    k('v_mul_u32_u24 %s, 1280, %s' % (va, va))
    k('v_lshrrev_b32 %s, 4, %s' % (vb, vLANE))
    k('v_lshl_add_u32 %s, %s, 3, %s' % (vb, vb, va))
    k('v_and_b32 %s, 48, %s' % (vt, vLANE))
    k('v_add_u32 %s, %s, %s' % (va, vt, va))
    k('s_lshl_b32 s26, %s, 1' % sTE)
    k('s_add_u32 s26, s26, %s' % sW)
    k('s_mul_i32 s26, s26, %d' % (16 * 1280))
    k('s_mul_i32 s24, %s, 160' % sCB)
    k('s_add_u32 s26, s26, s24')


def tile_bases(k, base, tbstride, wstride):
    k('s_mul_i32 s26, %s, %d' % (sTE, tbstride))
    k('s_mul_i32 s24, %s, %d' % (sW, wstride))
    k('s_add_u32 s26, s26, s24')
    k('s_add_u32 s26, s26, %d' % base)
    for s in range(4):
        k('s_add_u32 s24, %s, %d' % (sW, s + 1))
        k('s_bfe_u32 s27, s24, 0x10001')
        k('s_mul_i32 s27, s27, %d' % tbstride)
        k('s_and_b32 s24, s24, 1')
        k('s_lshl_b32 s24, s24, 8')
        k('s_add_u32 s24, s24, s27')
        k('s_add_u32 %s, s26, s24' % S(96 + s))


def xchg_addrs(k):
    for s in range(4):
        k('s_add_u32 s24, %s, %d' % (sW, s + 1))
        k('s_and_b32 s24, s24, 3')
        k('s_mul_i32 s24, s24, 15360')
        k('v_add_u32 %s, s24, %s' % (V(80 + s), vL16))


def sweep(k, slots, first, last, wreg, areg, hook):
    f = Fill(k)
    n = 0
    for s in range(4):
        m = 0
        for ki, ks in enumerate(slots):
            for ct in range(5):
                a = V(20 * s + 4 * ct, 4)
                k('%s %s, %s, %s, %s' % (M16, a, wreg(5 * ks + ct), areg(s, ki), '0' if first and ki == 0 else a))
                hook(n)
                n += 1
                m += 1
                if m > 3:
                    f.run(2)
        f.flush()
        if last and s < 3:
            for ct in range(5):
                f.add('ds_write_b128 %s, %s offset:%d' % (V(80 + s), V(20 * s + 4 * ct, 4), 5120 * s + 1024 * ct), 2)
        if last and s == 2:
            f.add(lambda: k.drain(vm=False))
            f.add('s_barrier')
            for q in range(3):
                for ct in range(5):
                    f.add('ds_read_b128 %s, v83 offset:%d' % (V(20 * q + 4 * ct, 4), 5120 * q + 1024 * ct))
    if last:
        for p in range(10):
            k('v_pk_add_f32 %s, %s, %s' % (V(2 * p, 2), V(2 * p, 2), V(20 + 2 * p, 2)))
        for p in range(10):
            k('v_pk_add_f32 %s, %s, %s' % (V(60 + 2 * p, 2), V(60 + 2 * p, 2), V(40 + 2 * p, 2)))
        for p in range(10):
            k('v_pk_add_f32 %s, %s, %s' % (V(60 + 2 * p, 2), V(60 + 2 * p, 2), V(2 * p, 2)))


def xreduce(k, r, t):
    k('v_mov_b32 %s, %s' % (t, r))
    k('v_permlane16_swap_b32 %s, %s' % (r, t))
    k('v_add_f32 %s, %s, %s' % (r, r, t))
    k('v_mov_b32 %s, %s' % (t, r))
    k('v_permlane32_swap_b32 %s, %s' % (r, t))
    k('v_add_f32 %s, %s, %s' % (r, r, t))


def phase_e(k):
    k.comment('---- phase E: O projection')
    GA, XF, XR = 84, 104, 124
    vXT, vSW = 'v134', 'v135'
    S2, YR, XR = 140, 124, 8

    def ereg(i):
        return A(100 + 4 * (i % 15), 4)

    k('s_add_u32 s25, s95, %d' % FOA)
    check_or_poll(k, 'v251', 'v250', 's25', 'oa')
    for s in range(4):
        for n in range(2):
            k('buffer_load_dwordx4 %s, %s, %s, %s offen offset:%d sc1' % (ereg(2 * s + n), vOFA, WS, S(96 + s), 2048 * n))
    for r in range(16):
        k('v_accvgpr_read_b32 %s, %s' % (V(r), A(208 + r)))
        k('v_accvgpr_read_b32 %s, %s' % (V(AT + r), A(224 + r)))
    k('v_cmp_le_u32 vcc, 40, %s' % vLANE)
    k('v_min_u32 v16, %d, %s' % (59 * 16, vL16))
    k('v_mov_b32 v18, 0')
    k('v_cndmask_b32 v18, v18, 1.0, vcc')
    k('v_and_b32 v180, 31, %s' % vLANE)
    k('v_lshrrev_b32 v181, 5, %s' % vLANE)
    colconst_finish(k, 0)
    colconst_read(k, 0, GA, 'v136', 'v137')
    colconst_read(k, 2, S2, 'v138', 'v139')
    aug_finish(k)
    k('s_add_u32 s24, s93, %d' % FO)
    k.wait_vm(G.tok_o)
    run_ops(k, [flag_ops('s24')])
    stamp(k)
    run_ops(k, G.bg_left)
    run_ops(k, wd_ops(G.wd_d, G.wd_e))
    f = Fill(k)
    add = f.add
    add('s_lshl_b32 s24, %s, 11' % sW)
    add('s_sub_u32 s24, 16384, s24')
    for s in range(4):
        add('s_add_u32 %s, %s, 16384' % (S(96 + s), S(96 + s)))
        add('s_add_u32 %s, %s, s24' % (S(88 + s), S(96 + s)))
    add('s_add_u32 s68, s95, %d' % FO)
    for d in range(10):
        add('v_accvgpr_read_b32 v136, %s' % A(240 + d))
        unpack(add, V(XF + 2 * d), V(XF + 2 * d + 1), 'v136')
    xchg_addrs(add)
    add('s_lshr_b32 s24, %s, 1' % sW)
    add('s_add_u32 s24, s24, %s' % sTE)
    add('s_mul_i32 s24, s24, 40960')
    add('s_mul_i32 s25, %s, 5120' % sCB)
    add('s_add_u32 s24, s24, s25')
    add('s_and_b32 s25, %s, 1' % sW)
    add('s_lshl_b32 s25, s25, 8')
    add('s_add_u32 s24, s24, s25')
    add('s_add_u32 s28, s24, %d' % X1)
    add('s_add_u32 s29, s28, 4096')
    add('v_and_b32 %s, 15, %s' % (vXT, vLANE))
    add('v_lshlrev_b32 %s, 3, %s' % (vSW, vXT))
    add('v_lshlrev_b32 %s, 4, %s' % (vXT, vXT))
    add('v_lshrrev_b32 v136, 5, %s' % vLANE)
    add('v_lshl_add_u32 %s, v136, 9, %s' % (vXT, vXT))
    add('v_lshl_add_u32 %s, v136, 2, %s' % (vSW, vSW))
    add('v_bfe_u32 v136, %s, 4, 1' % vLANE)
    add('v_lshl_add_u32 %s, v136, 3, %s' % (vXT, vXT))
    add('s_lshl_b32 s66, %s, 1' % sTE)
    add('s_add_u32 s66, s66, %s' % sW)
    add('s_lshl_b32 s66, s66, 3')
    add('s_add_u32 s66, s66, %s' % sCB)
    add('s_lshl_b32 s67, s66, 7')
    add('s_add_u32 s67, s67, %d' % STATS)
    add('s_lshl_b32 s66, s66, %d' % FS)
    add('s_add_u32 s66, s66, %d' % FX1)
    sweep(k, (0, 1), True, False, wo_reg, lambda s, ki: ereg(2 * s + ki), lambda n: f.run(2))
    f.flush()
    k('s_barrier')
    poll(k, 'v250', 's68', 'o')
    stamp(k)
    for s in range(4):
        for n in range(3):
            src = (S(96 + s), 2048 * n) if n < 2 else (S(88 + s), 0)
            k('buffer_load_dwordx4 %s, %s, %s, %s offen offset:%d sc1' % (ereg(8 + 3 * s + n), vOFA, WS, src[0], src[1]))
    wdl = wd_ops(G.wd_e, G.wd_e2)

    def hook(n):
        if n % 3 == 0 and wdl:
            run_ops(k, [wdl.pop(0)])
    sweep(k, (2, 3, 4), False, True, wo_reg, lambda s, ki: ereg(8 + 3 * s + ki), hook)
    assert not wdl
    stamp(k)
    for d in range(10):
        x = V(60 + 2 * d, 2)
        k('v_pk_fma_f32 %s, %s, %s, %s' % (x, x, V(GA + 2 * d, 2), V(XF + 2 * d, 2)))
        k('v_pk_mul_f32 %s, %s, %s' % (V(S2 + 2 * d, 2), x, V(S2 + 2 * d, 2)))
        k('v_cvt_pk_bf16_f32 %s, %s, %s' % (V(YR + d), V(S2 + 2 * d), V(S2 + 2 * d + 1)))
        if d == 3:
            k('buffer_store_dwordx4 %s, %s, %s, s28 offen sc1' % (V(YR, 4), vOFA, WS))
        if d == 7:
            k('buffer_store_dwordx4 %s, %s, %s, s28 offen offset:2048 sc1' % (V(YR + 4, 4), vOFA, WS))
    k('buffer_store_dwordx2 %s, %s, %s, s29 offen sc1' % (V(YR + 8, 2), vXT, WS))
    for d in range(10):
        x = V(60 + 2 * d, 2)
        if d == 0:
            k('v_pk_mul_f32 v[6:7], %s, %s' % (x, x))
        else:
            k('v_pk_add_f32 v[4:5], %s, %s' % (x, 'v[60:61]' if d == 1 else 'v[4:5]'))
            k('v_pk_fma_f32 v[6:7], %s, %s, v[6:7]' % (x, x))
    k('v_add_f32 v4, v4, v5')
    k('v_add_f32 v6, v6, v7')
    k('v_permlane32_swap_b32 v4, v6')
    k('v_add_f32 v4, v4, v6')
    k('v_mov_b32 v5, v4')
    k('v_permlane16_swap_b32 v4, v5')
    k('v_add_f32 v4, v4, v5')
    G.tok_x = k('buffer_store_dword v4, %s, %s, s67 offen sc1' % (vSW, WS))
    for d in range(10):
        k('v_cvt_pk_bf16_f32 %s, %s, %s' % (V(XR + d), V(60 + 2 * d), V(61 + 2 * d)))
        k('v_accvgpr_write_b32 %s, %s' % (A(240 + d), V(XR + d)))
    stamp(k)


def split2(k, hi, lo, x):
    k('v_cvt_pk_bf16_f32 %s, %s, %s' % (hi, x, x))
    k('v_and_b32 %s, 0xffff0000, %s' % (lo, hi))
    k('v_sub_f32 %s, %s, %s' % (x, x, lo))
    k('v_cvt_pk_bf16_f32 %s, %s, %s' % (lo, x, x))


AT = 160


def aug_issue(k):
    k('s_min_u32 s24, %s, 2' % sW)
    k('s_mul_i32 s25, %s, 3' % sJ)
    k('s_add_u32 s25, s25, s24')
    k('s_lshl_b32 s25, s25, 9')
    k('s_add_u32 s25, s25, %d' % CSB)
    k('v_and_b32 v180, 31, %s' % vLANE)
    k('v_lshrrev_b32 v181, 5, %s' % vLANE)
    k('v_lshlrev_b32 v182, 2, v180')
    k('v_lshl_add_u32 v182, v181, 8, v182')
    for p in range(8):
        k('buffer_load_dword %s, v182, %s, s25 offen sc1' % (V(AT + 2 * p), WS))
        k('buffer_load_dword %s, v182, %s, s25 offen offset:128 sc1' % (V(AT + 1 + 2 * p), WS))
        if p < 7:
            k('s_add_u32 s25, s25, %d' % (48 * 512))


def aug_finish(k):
    for st in (4, 2, 1):
        for p in range(st):
            k('v_pk_add_f32 %s, %s, %s' % (V(AT + 2 * p, 2), V(AT + 2 * p, 2), V(AT + 2 * (p + st), 2)))
    split2(k, 'v162', 'v163', 'v160')
    split2(k, 'v164', 'v165', 'v161')
    k('s_mov_b32 s26, 0xffff')
    k('v_bfi_b32 v168, s26, v162, v163')
    k('v_bfi_b32 v169, s26, v162, v164')
    k('v_bfi_b32 v170, s26, v165, v164')
    for d in range(5):
        k('v_mov_b32 %s, 0' % V(171 + d))
    k('s_min_u32 s24, %s, 2' % sW)
    k('s_lshl_b32 s24, s24, 11')
    k('s_add_u32 s24, s24, %d' % AUG)
    k('v_lshlrev_b32 v182, 4, v180')
    k('v_lshl_add_u32 v182, v181, 10, v182')
    k('v_add_u32 v182, s24, v182')
    k('ds_write_b128 v182, v[168:171]')
    k('ds_write_b128 v182, v[172:175] offset:512')


def greg(i):
    return A(48 + 4 * (i % 28), 4)


def g_act_ops(p):
    return [['buffer_load_dwordx4 %s, %s, %s, %s offen sc1' % (greg(16 * p + 4 * s + jl), V(124 + jl), WS, S(96 + s))]
            for s in range(4) for jl in range(4)]


def phase_f(k):
    k.comment('---- phase F: gate/up')
    WB, BA, CK, T0, ST = 64, 96, 100, 108, 108
    k('s_barrier')
    r2 = ring_ops((RING - RING0) // 4, RING // 4)
    run_ops(k, r2[:8])
    k.wait_vm(G.tok_x)
    run_ops(k, [flag_ops('s66')])
    stamp(k)
    run_ops(k, r2[8:])
    run_ops(k, wd_ops(G.wd_e2, G.wd_early))
    k('v_add_u32 v106, 65536, %s' % vL16)
    k('v_add_u32 v107, 131072, %s' % vL16)
    k('s_lshl_b32 s69, %s, 11' % sTB)
    k('s_add_u32 s69, s69, %d' % STATS)
    k('v_and_b32 v120, 15, %s' % vLANE)
    k('v_lshlrev_b32 v128, %d, v120' % FS)
    k('v_lshlrev_b32 v120, 3, v120')
    k('v_bfe_u32 v121, %s, 4, 1' % vLANE)
    k('v_lshl_add_u32 v120, v121, 10, v120')
    k('v_lshrrev_b32 v121, 5, %s' % vLANE)
    k('v_lshl_add_u32 v120, v121, 9, v120')
    k('s_mul_i32 s28, %s, 98304' % sTB)
    k('s_mul_i32 s24, %s, 6144' % sJ)
    k('s_add_u32 s28, s28, s24')
    k('s_add_u32 s28, s28, %d' % HH)
    k('s_add_u32 s29, s28, 4096')
    tile_bases(k, HH, 98304, 24576)
    for jl in range(4):
        k('s_add_u32 s24, %s, %d' % (sI if G.rot else '0', jl))
        k('s_and_b32 s24, s24, 3')
        k('s_mul_i32 s24, s24, 6144')
        k('v_add_u32 %s, s24, %s' % (V(124 + jl), vOFA))
    k('s_mul_i32 s68, %s, 40960' % sTB)
    k('s_add_u32 s68, s68, %d' % X1)
    k('s_lshl_b32 s25, %s, %d' % (sTB, FS + 4))
    k('s_add_u32 s25, s25, %d' % FX1)
    poll(k, 'v128', 's25', 'x1')
    stamp(k)
    vq, va = Fill(k), Fill(k)
    for ks in range(40):
        pre = ['s_add_u32 s68, s68, 4096'] if ks & 3 == 0 and ks else []
        va.add(pre + ['buffer_load_dwordx4 %s, %s, %s, s68 offen offset:%d sc1' % (A(4 * ks, 4), vL16, WS, 1024 * (ks & 3))])
        if ks == 20:
            for c in range(4):
                va.add('buffer_load_dwordx2 %s, v120, %s, s69 offen offset:%d sc1' % (V(ST + 2 * c, 2), WS, 128 * c), 0)
    va.run(G.f_first)

    def stats(k):
        for h in range(2):
            k('v_add_f32 %s, %s, %s' % (V(116 + h), V(ST + h), V(ST + 2 + h)))
            k('v_add_f32 v118, %s, %s' % (V(ST + 4 + h), V(ST + 6 + h)))
            k('v_add_f32 %s, %s, v118' % (V(116 + h), V(116 + h)))
            k('v_mov_b32 v118, %s' % V(116 + h))
            k('v_permlane32_swap_b32 %s, v118' % V(116 + h))
            k('v_add_f32 %s, %s, v118' % (V(116 + h), V(116 + h)))
        k('v_mul_f32 v116, %s, v116' % hex(f2u(-1.0 / 640)))
        k('v_mul_f32 v117, %s, v117' % hex(f2u(1.0 / 640)))
        k('v_fma_f32 v117, -v116, v116, v117')
        k('v_max_f32 v117, 0, v117')
        k('v_add_f32 %s, %s, v117' % (V(CK + 4), hex(f2u(1e-5))))
        k('v_rsq_f32 v118, %s' % V(CK + 4))
        k('s_mov_b32 s26, 0xffff')
        k('v_mul_f32 v117, %s, v118' % V(CK + 4))
        cc = -2.0 * 0.7978845608028654 * LOG2E
        k('v_mul_f32 %s, %s, v118' % (V(CK), hex(f2u(cc))))
        k('v_mul_f32 v119, v118, v118')
        k('v_mul_f32 v119, %s, v119' % hex(f2u(0.044715)))
        k('v_mul_f32 %s, %s, v119' % (V(CK + 2), V(CK)))
        split2(k, V(BA), 'v109', 'v116')
        split2(k, 'v110', 'v111', 'v117')
        k('v_bfi_b32 %s, s26, v109, v110' % V(BA + 1))
        k('v_bfi_b32 %s, s26, v110, v111' % V(BA + 2))
        k('v_mov_b32 %s, 0' % V(BA + 3))

    steps = []
    for p in range(3):
        for ks in range(41):
            for t in range(2):
                blk = 80 * p + 2 * ks + t
                byte = ((RING0 + blk) % RING) * 1024 if ks < 40 else AUG + 1024 * (2 * p + t)
                steps.append((32 * (p & 1) + 16 * t, byte, A(4 * ks, 4) if ks < 40 else V(BA, 4), ks == 0, blk if ks < 40 else None))
    AH, NB = 6, 8
    refill = {64: (38, 54), 92: (54, 60)}
    toks = []
    vis = [RING - RING0]

    def rd(n):
        blk = steps[n][4]
        if blk is not None and blk >= vis[0]:
            while not toks:
                vq.run(1)
            t, g1 = toks.pop(0)
            k.wait_vm(t)
            k('s_barrier')
            vis[0] = 4 * g1
        byte = steps[n][1]
        k('ds_read_b128 %s, %s offset:%d' % (V(WB + 4 * (n % NB), 4), [vL16, 'v106', 'v107'][byte >> 16], byte & 0xffff))

    f = Fill(k)
    tokh = {}

    def gelu(p, add, packed):
        g, u = 32 * (p & 1), 32 * (p & 1) + 16
        for e in range(8):
            a, b, t = V(g + 2 * e, 2), V(u + 2 * e, 2), V(T0 + 2 * (e & 3), 2)
            aa, bb, tt = [V(g + 2 * e + h) for h in range(2)], [V(u + 2 * e + h) for h in range(2)], [V(T0 + 2 * (e & 3) + h) for h in range(2)]
            if packed:
                add('v_pk_mul_f32 %s, %s, %s' % (t, a, a))
                add('v_pk_fma_f32 %s, %s, %s, %s op_sel_hi:[1,0,0]' % (t, t, V(CK + 2, 2), V(CK, 2)))
                add('v_pk_mul_f32 %s, %s, %s' % (t, t, a))
                add('v_exp_f32 %s, %s' % (tt[0], tt[0]))
                add('v_exp_f32 %s, %s' % (tt[1], tt[1]))
                add('v_pk_mul_f32 %s, %s, %s' % (b, a, b))
                add('v_pk_fma_f32 %s, %s, %s, %s op_sel_hi:[1,0,0]' % (t, t, V(CK + 4, 2), V(CK + 4, 2)))
                add('v_rcp_f32 %s, %s' % (tt[0], tt[0]))
                add('v_rcp_f32 %s, %s' % (tt[1], tt[1]))
                vq.run(1)
                add('v_pk_mul_f32 %s, %s, %s' % (b, b, t))
            else:
                for h in range(2):
                    add('v_mul_f32 %s, %s, %s' % (tt[h], aa[h], aa[h]))
                    add('v_fma_f32 %s, %s, %s, %s' % (tt[h], tt[h], V(CK + 2), V(CK)))
                    add('v_mul_f32 %s, %s, %s' % (tt[h], tt[h], aa[h]))
                    add('v_exp_f32 %s, %s' % (tt[h], tt[h]), 2)
                    add('v_mul_f32 %s, %s, %s' % (bb[h], aa[h], bb[h]))
                    add('v_fma_f32 %s, %s, %s, %s' % (tt[h], tt[h], V(CK + 4), V(CK + 4)))
                    add('v_rcp_f32 %s, %s' % (tt[h], tt[h]), 2)
                for h in range(2):
                    add('v_mul_f32 %s, %s, %s' % (bb[h], bb[h], tt[h]))
            add('v_cvt_pk_bf16_f32 %s, %s, %s' % (V(116 + e), bb[0], bb[1]))
            if e & 3 == 3:
                blk = 2 * p + (e >> 2)
                tokh[p] = add('buffer_store_dwordx4 %s, %s, %s, %s offen offset:%d sc1' %
                              (V(116 + (e & 4), 4), vL16, WS, 's28' if blk < 4 else 's29', 1024 * (blk & 3)))
        if not packed:
            f.add0(lambda: tokh.__setitem__(p, f.last))

    k.lg_batch = 2
    for n in range(AH):
        rd(n)
    wdl = wd_ops(G.wd_early, G.wd_f)
    nwd = G.wd_early
    for n, (acc, byte, B, first, blk) in enumerate(steps):
        if n in refill:
            k('s_barrier')
            if n == 64:
                vis[0] = RING
            g0, g1 = refill[n]
            for op in ring_ops(g0, g1):
                vq.add(op)
            vq.add0(lambda g1=g1: toks.append((vq.last, g1)))
        if n == 56:
            stats(f.add)
        if n == 80:
            assert not f.q
        if n in (82, 164):
            stamp(k)
        a = V(acc, 16)
        k('%s %s, %s, %s, %s' % (M32, a, V(WB + 4 * (n % NB), 4), B, '0' if first else a))
        n0 = k.ninst
        if n + AH < len(steps):
            rd(n + AH)
        if (n & 1 if va.q or n >= 164 + G.h_check else n % G.f_vrate == 1):
            if va.q:
                va.run(1)
            elif vq.q:
                vq.run(1)
            elif wdl and (nwd < 48 or nwd - 48 <= (n - 164) // 2):
                run_ops(k, [wdl.pop(0)])
                nwd += 1
        if n in (84, 166):
            gelu(n // 82 - 1, f.add, False)
        if n in (82 + G.h_flag, 164 + G.h_flag):
            p = n // 82 - 1
            k('s_add_u32 s24, s93, %d' % (FH, FH1)[p])
            k.wait_vm(tokh[p])
            run_ops(k, [flag_ops('s24')])
        if n == 164 + G.h_probe:
            k('s_add_u32 s25, s95, %d' % FH)
            k('buffer_load_dword v251, v250, %s, s25 offen sc1' % WS)
        if n == 164 + G.h_check:
            assert G.h_check >= 56 and not wdl
            check_or_poll(k, 'v251', 'v250', 's25', 'h0')
            for op in g_act_ops(0):
                vq.add(op)
        f.fit(G.f_rate - (k.ninst - n0) - (n & 1))
    assert not f.q
    k.lg_batch = 1
    stamp(k)
    gelu(2, k, True)
    vq.flush()
    G.tok_h = tokh[2]
    stamp(k)


def phase_g(k):
    k.comment('---- phase G: down projection')
    GB, XF = 84, 104
    vq, f = Fill(k), Fill(k)
    k('s_barrier')
    wdl = wd_ops(G.wd_f, 60)
    for p in range(3):
        def hook(n, p=p):
            if p == 0 and n == G.g_flag:
                k('s_add_u32 s24, s93, %d' % FH2)
                k.wait_vm(G.tok_h)
                run_ops(k, [flag_ops('s24')])
            if p < 2 and n == G.g_probe[p]:
                k('s_add_u32 s25, s95, %d' % (FH1, FH2)[p])
                k('buffer_load_dword v251, v250, %s, s25 offen sc1' % WS)
                for s in range(4):
                    k('s_add_u32 %s, %s, 2048' % (S(96 + s), S(96 + s)))
            if p < 2 and n == G.g_check[p]:
                check_or_poll(k, 'v251', 'v250', 's25', 'hh%d' % (p + 1))
                for op in g_act_ops(p + 1):
                    vq.add(op)
                vq.run(10)
            elif n % 5 == 0 and vq.q:
                vq.run(1)
            elif n % 3 == 1 and wdl and not vq.q and n < G.g_probe[min(p, 1)] - G.g_quiet:
                run_ops(k, [wdl.pop(0)])
            else:
                f.run(1)
        if p == 2:
            run_ops(k, wdl)
        if p == 1:
            colconst_read(f.add, 1, GB, 'v128', 'v129')
            xchg_addrs(f.add)
            row_offsets(f.add, 'v128', 'v129', 'v130')
            f.add('s_mov_b32 s28, s26')
            for d in range(10):
                f.add('v_accvgpr_read_b32 v131, %s' % A(240 + d))
                unpack(f.add, V(XF + 2 * d), V(XF + 1 + 2 * d), 'v131')
        sweep(k, range(4 * p, 4 * p + 4), p == 0, p == 2, wd_reg, lambda s, ki, p=p: greg(16 * p + 4 * s + ki), hook)
        f.flush()
        stamp(k)
    for d in range(10):
        k('v_pk_fma_f32 %s, %s, %s, %s' % (V(60 + 2 * d, 2), V(60 + 2 * d, 2), V(GB + 2 * d, 2), V(XF + 2 * d, 2)))
        k('v_cvt_pk_bf16_f32 %s, %s, %s' % (V(40 + d), V(60 + 2 * d), V(61 + 2 * d)))
        if d == 3:
            k('buffer_store_dwordx4 v[40:43], v128, %s, s28 offen %s' % (OUTS, G.out_mod))
        if d == 7:
            k('buffer_store_dwordx4 v[44:47], v128, %s, s28 offen offset:64 %s' % (OUTS, G.out_mod))
    k('buffer_store_dwordx2 v[48:49], v129, %s, s28 offen offset:128 %s' % (OUTS, G.out_mod))


def gen_main(prof=False, stop=99):
    G.prof, G.stop, G.nstamp, G.cold, G.cold2 = prof, stop, 0, [], []
    k = K()
    from gen_front import front
    header(k, KNAME)
    if prof:
        k('s_memrealtime s[100:101]')
        stamp(k)
    front(k)
    stamp(k)
    for n, ph in enumerate((phase_c, phase_d, phase_e, phase_f, phase_g)):
        if n < stop:
            ph(k)
    if prof:
        k.drain(force=True)
        stamp(k)
        k('s_lshl_b32 s24, s2, 2')
        k('s_add_u32 s24, s24, %s' % sW)
        k('s_lshl_b32 s24, s24, 8')
        k('s_add_u32 s24, s24, %d' % PROF)
        k('s_memrealtime s[30:31]')
        k('v_writelane_b32 v249, s100, 62')
        k('v_writelane_b32 v249, s30, 63')
        k('v_lshlrev_b32 v0, 2, %s' % vLANE)
        k('buffer_store_dword v249, v0, %s, s24 offen' % WS)
    k('s_endpgm')
    k.out += G.cold
    k.label('L_main_end')
    k('s_endpgm')
    k.out += G.cold2
    assert G.nstamp <= 60, G.nstamp
    import sys
    sys.stderr.write('stamps %d\n' % G.nstamp)
    return k.text(), descriptor(KNAME, 512, 102, 256), k
```

```python
T, D, F, H, DH = 2048, 640, 1536, 32, 20

MODP = 0x0
FLG = 0x10000
FKV = FLG + 0x0000
FO = FLG + 0x2000
FX1 = FLG + 0x4000
FH = FLG + 0x6000
FLG_BYTES = 0x8000
FM = FLG + 0x8000
FW = FLG + 0x9000
FL = FLG + 0xa000
FBG = FLG + 0xb000
STATS = 0x20000
CSB = 0x40000
PROF = 0x80000
H1 = 0x100000
WQKV = H1 + 2621440
KV = WQKV + 2621440
O = KV + 5242880
WO = O + 2621440
X1 = WO + 819200
WGU = X1 + 2621440
HH = WGU + 3932160
WD = HH + 6291456
FS = 7
FKV = WD + 1966080
FO = FKV + 0x20000
FX1 = FO + 0x20000
FH = FX1 + 0x20000
FL = FH + 0x20000
FV = FL + 0x20000
FW = FV + 0x20000
FBG = FW + 0x20000
FBG2 = FBG + 0x8000
FH1 = FBG2 + 0x8000
FH2 = FH1 + 0x20000
FOA = FH2 + 0x20000
WS_END = FOA + 0x20000
```

```python
from asmgen import *
from layout import *
from gen_prep import srd, header, descriptor, unpack, rbf, LOG2E, NAME
KNAME = NAME + '_kernel'

WS, XS, OUTS = 's[4:7]', 's[8:11]', 's[12:15]'
sW, sI, sJ, sTH, sCB, sTB, sTE = 's16', 's17', 's18', 's19', 's20', 's21', 's22'
sFLAG, sTMO = 's64', 's65'
vL16, vLANE, vOFA = 'v255', 'v254', 'v253'
KVP = 5136
RING, RING0 = 152, 64
AUG = 152 * 1024
SCR = 158 * 1024
M32 = 'v_mfma_f32_32x32x16_bf16'
M16 = 'v_mfma_f32_16x16x32_bf16'


class G:
    prof = False
    stop = 99
    nstamp = 0
    fine = True
    c_srate = 12
    c_sfrom = 5
    c_qfrom = 58
    h_at = 18
    w_pre = 0
    out_mod = ''
    v_lag = 8
    bg_slow = 1
    v_probe_lead = 0
    v_check = 8
    v_pre = 10
    c_xat = 100
    rot = 0
    bc_early = 3
    w_late = 1
    w_slots = 3
    wo_pf = 0
    bg_check = 3
    a_probe = 5
    f_first = 10
    f_rate = 5
    h_flag = 76
    h_probe = 38
    h_check = 56
    g_flag = 40
    g_probe = (25, 45)
    g_check = (55, 79)
    tlb = 0
    codepf = 42
    wd_d = 0
    wd_e = 8
    wd_e2 = 22
    wd_f = 45
    f_vrate = 3
    g_quiet = 0
    wd_early = 26
    c_first = 10
    c_second = 6
    bg2_probe = 6
    c_wlead = 1
    force32 = 0
    k_flag_at = 26
    k_probe_at = 22
    v_flag_at = 26
    c_wrate = 8
    mod_after = 0
    bg_probe = 0
    bg_rate = (2, 2)


def stamp(k):
    if G.prof:
        k.drain(vm=False)
        k('%s s[30:31]' % ('s_memrealtime' if G.prof == 'rt' else 's_memtime'))
        k.drain(vm=False)
        k('v_writelane_b32 v249, s30, %d' % G.nstamp)
        G.nstamp += 1


def set_flag(k, base, sidx):
    k('s_lshl_b32 s24, %s, %d' % (sidx, FS))
    k('s_add_u32 s24, s24, %d' % base)
    k('v_mov_b32 v252, %s' % sFLAG)
    k.drain(lg=False, force=True)
    k('s_mov_b64 exec, 1')
    k('buffer_store_dword v252, off, %s, s24 sc1' % WS)
    k('s_mov_b64 exec, -1')


def poll(k, vaddr, soff, name, width=1, first=None):
    op = {1: 'buffer_load_dword', 2: 'buffer_load_dwordx2', 4: 'buffer_load_dwordx4'}[width]

    def probe():
        k('%s %s, %s, %s, %s offen sc1' % (op, V(244, width), vaddr, WS, soff))
        k.drain(lg=False, force=True)

    def check():
        for d in range(width):
            k('v_xor_b32 %s, %s, %s' % (V(244 + d), sFLAG, V(244 + d)))
        if width == 2:
            k('v_or_b32 v244, v244, v245')
        if width == 4:
            k('v_or3_b32 v244, v244, v245, v246')
            k('v_or_b32 v244, v244, v247')
        k('v_cmp_ne_u32 vcc, 0, v244')
        k('s_cbranch_vccz L_pdone_%s' % name)

    k('s_mov_b32 %s, 0x20000' % sTMO)
    if first:
        probe()
        first()
        check()
    k.label('L_poll_%s' % name)
    probe()
    check()
    k('s_sub_u32 %s, %s, 1' % (sTMO, sTMO))
    k('s_cbranch_scc0 L_poll_%s' % name)
    k.label('L_pdone_%s' % name)


class Fill:
    def __init__(self, k):
        self.k, self.q = k, []

    def add(self, x, cost=1):
        self.q.append((x, cost) if cost != 1 else x)

    def run(self, n):
        while n > 0 and self.q:
            x = self.q.pop(0)
            if isinstance(x, tuple):
                n -= x[1] - 1
                x = x[0]
            if callable(x):
                x()
            elif isinstance(x, list):
                for y in x:
                    self.last = self.k(y)
            else:
                self.last = self.k(x)
            n -= 1

    def fit(self, n):
        while self.q:
            c = self.q[0][1] if isinstance(self.q[0], tuple) else 1
            if c > n:
                break
            self.run(1)
            n -= c

    def add0(self, fn):
        prev = self.q.pop()

        def both():
            for y in (prev if isinstance(prev, list) else [prev]):
                self.last = self.k(y)
            fn()
        self.q.append(both)

    def flush(self):
        self.run(1 << 30)


def pf_lines(k, soff, n):
    k('v_lshlrev_b32 v248, 7, %s' % vLANE)
    if n < 64:
        k('v_min_u32 v248, %d, v248' % ((n - 1) * 128))
    k('buffer_load_dword v247, v248, %s, %s offen sc1' % (WS, soff), nodst=True)
    if n > 64:
        k('v_add_u32 v248, 8192, v248')
        if n < 128:
            k('v_min_u32 v248, %d, v248' % ((n - 1) * 128))
        k('buffer_load_dword v247, v248, %s, %s offen sc1' % (WS, soff), nodst=True)


def pf_share(k, sbase, sidx, n):
    k('s_mul_i32 s24, %s, %d' % (sidx, n * 128))
    k('s_add_u32 s24, s24, %s' % sbase)
    pf_lines(k, 's24', n)


def pf_wtile(k, sbase, n):
    k('s_and_b32 s25, %s, 15' % sTB)
    pf_share(k, sbase, 's25', n)


def dma_group(k, sm0, sglob):
    k('s_mov_b32 m0, %s' % sm0)
    t = None
    for b in range(4):
        t = k('buffer_load_dwordx4 %s, %s, %s offen offset:%d lds' % (vL16, WS, sglob, 1024 * b))
    return t


def setup(k):
    k('s_cmp_ge_u32 s2, 256')
    k('s_cbranch_scc1 L_main_end')
    srd(k, 4, 'ws')
    srd(k, 8, 'x')
    srd(k, 12, 'out')
    setup_ids(k)
    k('s_mov_b32 %s, 1' % sFLAG)
    k.drain(force=True)


def setup_ids(k):
    k('v_lshrrev_b32 v1, 6, v0')
    k('v_and_b32 %s, 63, v0' % vLANE)
    k('v_readfirstlane_b32 %s, v1' % sW)
    k('v_lshlrev_b32 %s, 4, %s' % (vL16, vLANE))
    k('s_bfe_u32 s24, s2, 0x20001')
    k('s_lshl_b32 s24, s24, 2')
    k('s_lshr_b32 s25, s2, 6')
    k('s_add_u32 %s, s24, s25' % sI)
    k('s_and_b32 %s, s2, 1' % sTH)
    k('s_bfe_u32 %s, s2, 0x30003' % sCB)
    k('s_lshl_b32 s24, %s, 3' % sTH)
    k('s_add_u32 %s, s24, %s' % (sJ, sCB))
    k('s_lshl_b32 s24, %s, 2' % sI)
    k('s_add_u32 %s, s24, %s' % (sTB, sW))
    k('s_lshl_b32 s25, %s, 1' % sTH)
    k('s_add_u32 %s, s24, s25' % sTE)
    k('s_mov_b32 %s, 0' % sTMO)
    k('v_lshrrev_b32 v1, 4, %s' % vLANE)
    k('v_and_b32 v2, 15, %s' % vLANE)
    k('v_lshlrev_b32 v2, 4, v2')
    k('v_lshl_add_u32 %s, v1, 9, v2' % vOFA)


def dma_ops(sbase, img, lds, nb, nr):
    R = 4096 * nb
    ops = []
    for r in range(nr):
        if r == 0:
            pre = ['s_and_b32 s70, %s, %d' % (sI, 3 if G.rot else 0), 's_mul_i32 s70, s70, %d' % nr, 's_and_b32 s70, s70, 0xfc',
                   's_add_u32 s70, s70, %s' % sW, 's_mul_i32 s70, s70, %d' % (1024 * nb), 's_add_u32 s79, %s, %d' % (sbase, img)]
        else:
            pre = ['s_add_u32 s70, s70, %d' % R]
            if G.rot:
                pre += ['s_cmp_ge_u32 s70, %d' % (nr * R), 's_cselect_b32 s72, %d, 0' % (nr * R), 's_sub_u32 s70, s70, s72']
        pre += ['s_add_u32 m0, s70, %d' % lds, 's_add_u32 s71, s70, s79']
        for b in range(nb):
            ops.append((pre if b == 0 else []) + ['buffer_load_dwordx4 %s, %s, s71 offen offset:%d sc1 lds' % (vL16, WS, 1024 * b)])
    return ops


def granule_sum(k, r, t, plus1):
    k('s_mov_b32 s24, 0x04000c0c')
    k('s_mov_b32 s26, 0x0706000c')
    for p in range(4):
        k('v_perm_b32 %s, %s, %s, s24' % (V(r + 4 * p + 3), V(r + 4 * p), V(r + 4 * p + 1)))
        k('v_perm_b32 %s, %s, %s, s26' % (V(r + 4 * p + 3), V(r + 4 * p + 3), V(r + 4 * p + 2)))
    for h in range(2):
        x = [V(r + 4 * p + 2 * h, 2) for p in range(4)]
        k('v_pk_add_f32 %s, %s, %s' % (x[0], x[0], x[1]))
        k('v_pk_add_f32 %s, %s, %s' % (x[2], x[2], x[3]))
        k('v_pk_add_f32 %s, %s, %s' % (x[0], x[0], x[2]))
        a, b = V(r + 2 * h), V(r + 2 * h + 1)
        k('v_cvt_pk_bf16_f32 %s, %s, %s' % (t, a, b))
        unpack(k, a, b, t)
        if plus1:
            k('v_pk_add_f32 %s, %s, %s op_sel_hi:[1,0]' % (x[0], x[0], plus1))
            k('v_cvt_pk_bf16_f32 %s, %s, %s' % (t, a, b))
            unpack(k, a, b, t)


def flag_ops(soff):
    return ['v_mov_b32 v252, %s' % sFLAG, 's_mov_b64 exec, 1', 'buffer_store_dword v252, off, %s, %s sc1' % (WS, soff), 's_mov_b64 exec, -1']


QF = 224


sNV, sOM, sOT, sKVO, sKF, sVF, sNF, sNG, sNL = 's80', 's81', 's82', 's83', 's84', 's85', 's86', 's87', 's88'
PM = 208
vK, vST, vB0, vBG, VA = 'v216', 'v217', 'v218', 'v219', 220
vNA, vNP, vVO = 'v156', 'v157', 'v158'


def c_setup(k):
    k('s_lshl_b32 s24, %s, 4' % sTB)
    k('s_add_u32 s24, s24, %s' % sJ)
    k('s_mul_i32 %s, s24, 5120' % sKVO)
    k('s_add_u32 %s, %s, %d' % (sKVO, sKVO, KV))
    k('s_lshl_b32 s24, s24, %d' % FS)
    k('s_add_u32 %s, s24, %d' % (sKF, FKV))
    k('s_add_u32 %s, s24, %d' % (sVF, FV))
    k('v_and_b32 %s, 31, %s' % (vVO, vLANE))
    k('v_lshlrev_b32 %s, 5, %s' % (vVO, vVO))
    k('v_lshrrev_b32 v201, 5, %s' % vLANE)
    k('v_lshl_add_u32 %s, v201, 4, %s' % (vVO, vVO))
    k('s_add_u32 s24, %s, 8' % sW)
    k('s_mul_i32 s24, s24, %d' % KVP)
    k('v_add_u32 v154, s24, %s' % vL16)
    k('v_add_u32 v155, s24, %s' % vVO)
    k('v_min_u32 v150, 11, %s' % vLANE)
    k('v_mul_u32_u24 v150, %d, v150' % KVP)
    k('v_mov_b32 v152, 0x3f803f80')
    k('v_mov_b32 v153, 0x3f803f80')
    k('s_mov_b32 s90, %s' % hex(f2u((DH ** -0.5) * LOG2E)))
    k('s_mov_b32 s91, s90')
    k('s_lshl_b32 s24, %s, 2' % sI)
    k('s_lshl_b32 s25, %s, 1' % sW)
    k('s_add_u32 s24, s24, s25')
    k('s_mul_i32 %s, s25, %d' % (sNL, KVP))
    k('s_max_u32 s25, s24, 8')
    k('s_sub_u32 s25, s25, 8')
    k('s_lshl_b32 s25, s25, 4')
    k('s_add_u32 s25, s25, %s' % sJ)
    k('s_mul_i32 %s, s25, 5120' % sNG)
    k('s_add_u32 %s, %s, %d' % (sNG, sNG, KV))
    k('s_lshl_b32 s25, s25, %d' % FS)
    k('s_add_u32 s25, s25, %d' % FKV)
    k(['s_cmp_ge_u32 s24, 8', 's_cselect_b32 %s, s25, %s' % (sNF, sKF), 's_cselect_b64 s[30:31], -1, 0'])
    k('v_mov_b32 v201, 0x7fffffff')
    k('v_cndmask_b32 %s, v201, %s, s[30:31]' % (vNA, vL16))
    k('v_and_b32 v201, 1, %s' % vLANE)
    k('v_lshlrev_b32 v201, %d, v201' % (FS + 4))
    k('v_cndmask_b32 %s, 0, v201, s[30:31]' % vNP)
    k('s_lshl_b32 s24, s2, %d' % FS)
    k(['s_cmp_eq_u32 %s, 0' % sW, 's_cselect_b32 s25, 0, 0x40000000'])
    k('s_add_u32 s24, s24, s25')
    k('s_add_u32 s92, s24, %d' % FBG)


def d_setup(k):
    w16_base(k, 's77', WO, 5)
    w16_base(k, 's74', WD, 12)
    k('s_mul_i32 s23, %s, 245760' % sJ)
    k('s_add_u32 s23, s23, %d' % WGU)
    k('v_and_b32 v201, 3, %s' % vLANE)
    k('v_bfe_u32 v202, %s, 2, 1' % vLANE)
    k('v_bfe_u32 v203, %s, 3, 1' % vLANE)
    k('s_mul_i32 s24, %s, 3' % sJ)
    k('s_and_b32 s24, s24, 0xfffe')
    k('v_mad_u32_u24 v219, v201, 48, s24')
    k('v_lshl_add_u32 v219, v202, 1, v219')
    k('v_add_u32 v219, v219, v203')
    k('s_mul_i32 s24, %s, 5' % sCB)
    k('s_lshr_b32 s24, s24, 2')
    k('s_add_u32 s24, s24, 20')
    k('v_mad_u32_u24 v204, v201, 60, s24')
    k('v_mad_u32_u24 v204, v203, 30, v204')
    k('v_cmp_gt_u32 vcc, 16, %s' % vLANE)
    k('v_add_u32 v204, v204, v202')
    k('s_lshr_b32 s25, %s, 2' % sCB)
    k('v_cndmask_b32 v219, v204, v219, vcc')
    k('s_mul_i32 s24, %s, 24' % sW)
    k('s_add_u32 s24, s24, s25')
    k('s_add_u32 s24, s24, 128')
    k('v_lshl_add_u32 v204, %s, 1, s24' % vLANE)
    k('v_cmp_le_u32 vcc, 256, v204')
    k('v_subrev_u32 v205, 72, v204')
    k('s_mul_i32 s24, %s, 10' % sW)
    k('v_cndmask_b32 v204, v204, v205, vcc')
    k('v_cmp_gt_u32 vcc, 32, %s' % vLANE)
    k('s_add_u32 s24, s24, s25')
    k('s_add_u32 s24, s24, 128')
    k('v_cndmask_b32 v219, v204, v219, vcc')
    k('v_cmp_gt_u32 vcc, 44, %s' % vLANE)
    k('v_min_u32 v204, 48, %s' % vLANE)
    k('v_lshl_add_u32 v204, v204, 1, s24')
    k('v_cndmask_b32 v219, v204, v219, vcc')
    k('s_mul_i32 s24, %s, 5' % sCB)
    k('s_lshr_b32 s24, s24, 2')
    k('s_add_u32 s24, s24, 40')
    k('v_cmp_gt_u32 vcc, 56, %s' % vLANE)
    k('v_mad_u32_u24 v204, v201, 60, s24')
    k('v_add_u32 v204, v204, v202')
    k('v_cndmask_b32 v219, v204, v219, vcc')
    k('v_lshlrev_b32 v219, %d, v219' % FS)
    k('s_mov_b32 s89, %d' % FBG)
    k('s_mul_i32 s75, %s, 320' % sCB)
    k('s_add_u32 s75, s75, %d' % (MODP + 2 * 2560))
    k('v_min_u32 v242, %d, %s' % (59 * 16, vL16))
    k('v_cmp_le_u32 vcc, 320, v242')
    k('v_add_u32 v241, %d, v242' % (3 * 2560 - 320))
    k('s_min_u32 s24, %s, 2' % sW)
    k('v_cndmask_b32 v240, v242, v241, vcc')
    k('v_cmp_le_u32 vcc, 640, v242')
    k('v_add_u32 v241, %d, v242' % (2 * 2560 - 640))
    k('s_nop 0')
    k('v_cndmask_b32 v240, v240, v241, vcc')
    k('s_mul_i32 s76, %s, 3' % sJ)
    k('s_add_u32 s76, s76, s24')
    k('s_lshl_b32 s76, s76, 9')
    k('s_add_u32 s76, s76, %d' % CSB)
    k('v_and_b32 v241, 31, %s' % vLANE)
    k('v_lshlrev_b32 v241, 2, v241')
    k('v_lshrrev_b32 v242, 5, %s' % vLANE)
    k('v_lshl_add_u32 v248, v242, 8, v241')
    for r in range(16):
        kl = 8 * (r >> 2) + (r & 3)
        k('s_mov_b32 %s, 0x%x' % (S(32 + 2 * r), (0xffffffff << kl) & 0xffffffff))
        k('s_mov_b32 %s, 0x%x' % (S(33 + 2 * r), (0xffffffff << (kl + 4)) & 0xffffffff))
    k('v_mov_b32 v201, 0xffff')
    k('v_mov_b32 v202, 0xffff0000')
    for p in range(8):
        k('v_cndmask_b32 %s, 0, v201, %s' % (V(PM + p), S(32 + 4 * p, 2)))
        k('v_cndmask_b32 v203, 0, v202, %s' % S(34 + 4 * p, 2))
        k('v_or_b32 %s, %s, v203' % (V(PM + p), V(PM + p)))
    k('s_mul_i32 s24, %s, %d' % (sW, KVP))
    k('v_add_u32 %s, s24, %s' % (vK, vL16))
    k('v_and_b32 v201, 3, %s' % vLANE)
    k('v_cmp_eq_u32 vcc, 0, v201')
    k('v_bfe_u32 v202, %s, 2, 2' % vLANE)
    k('v_lshrrev_b32 v203, 5, %s' % vLANE)
    k('v_lshl_add_u32 v202, v203, 2, v202')
    k('v_cndmask_b32 %s, 0, 16, vcc' % vST)
    k('v_mov_b32 v204, 5120')
    k('v_mov_b32 v205, 2056')
    k('v_cndmask_b32 %s, v204, v205, vcc' % vB0)
    k('v_and_b32 v203, 16, %s' % vLANE)
    k('v_cmp_eq_u32 vcc, 0, v203')
    k('v_lshlrev_b32 v201, 3, v201')
    k('v_add_u32 v201, 3072, v201')
    k('v_cndmask_b32 %s, %s, 32, vcc' % (vST, vST))
    k('v_cndmask_b32 %s, %s, v201, vcc' % (vB0, vB0))
    k('v_mad_u32_u24 %s, %s, v202, %s' % (vB0, vST, vB0))
    k('v_add_u32 %s, s24, %s' % (vB0, vB0))
    k('s_sub_i32 %s, 8, %s' % (sNV, sTB))
    k('s_max_i32 %s, %s, 0' % (sNV, sNV))
    k('v_cmp_gt_u32 vcc, 32, %s' % vLANE)
    k('v_mov_b32 v201, 0x3f803f80')
    k('v_mov_b32 v202, 0x3f80')
    k('v_cndmask_b32 v201, 0, v201, vcc')
    k('v_cndmask_b32 v202, 0, v202, vcc')
    k('v_accvgpr_write_b32 a252, v201')
    k('v_accvgpr_write_b32 a253, v202')
    k('v_accvgpr_write_b32 a254, 0')
    k('v_accvgpr_write_b32 a255, 0')
    k('v_mov_b32 v202, 0')
    k('v_mov_b32 v203, 0')
    for d in range(2):
        k('v_mov_b32 %s, 0' % V(QF + 6 + d))
        k('v_mov_b32 %s, 0' % V(QF + 14 + d))
    k('s_mul_i32 %s, %s, 40960' % (sOM, sTB))
    k('s_add_u32 %s, %s, %d' % (sOM, sOM, O))
    k('s_lshl_b32 s24, %s, 9' % sJ)
    k('s_add_u32 %s, %s, s24' % (sOT, sOM))
    k('s_add_u32 %s, %s, 32768' % (sOT, sOT))
    k('s_lshl_b32 s24, %s, 10' % sJ)
    k('s_add_u32 %s, %s, s24' % (sOM, sOM))
    k('s_sub_u32 s93, %s, %d' % (sKF, FKV))
    k('s_add_u32 s94, s93, %d' % FOA)
    k('s_lshl_b32 s95, %s, 2' % sTE)
    k('s_add_u32 s95, s95, %s' % sW)
    k('s_lshl_b32 s95, s95, %d' % (FS + 2))
    k('v_and_b32 v250, 3, %s' % vLANE)
    k('v_lshlrev_b32 v250, %d, v250' % FS)
    k('v_bfe_u32 v251, %s, 2, 1' % vLANE)
    k('v_lshl_add_u32 v250, v251, %d, v250' % (FS + 4))


def phase_c(k):
    from gen_front import b_unit, c_unit, c_store, col_sums
    aK, aT, aV, aQ, WB, NB, AH = 0, 16, 32, 48, 64, 8, 6
    tok = {}
    va, vq, vs, f = Fill(k), Fill(k), Fill(k), Fill(k)
    k('s_mul_i32 s68, %s, 40960' % sTB)
    k('s_add_u32 s68, s68, %d' % H1)
    for ks in range(40):
        pre = ['s_add_u32 s68, s68, 4096'] if ks & 3 == 0 and ks else []
        va.add(pre + ['buffer_load_dwordx4 %s, %s, %s, s68 offen offset:%d sc1' % (A(4 * ks, 4), vL16, WS, 1024 * (ks & 3))])
    va.run(G.c_first)
    for op in b_unit(k):
        vs.add(op)
    k.wait_vm(G.tok_w)
    k('s_barrier')
    stamp(k)
    k('v_add_u32 v148, 65536, %s' % vL16)
    k('v_add_u32 v149, 131072, %s' % vL16)
    for op in G.vops:
        vq.add(op)
    if G.vops:
        vq.add0(lambda: tok.__setitem__('v', vq.last))
    qorder = list(range(8, 40)) + list(range(8))
    steps = [(16 * t, ks, 2 * ks + t) for ks in range(40) for t in range(2)] + [(aV, ks, 80 + ks) for ks in range(40)] + [(aQ, ks, 120 + ks) for ks in qorder]

    def rd(n):
        if n == 80 and G.vops:
            while 'v' not in tok:
                vq.run(1)
            k.wait_vm(tok['v'])
            k('s_barrier')
        if n == 120:
            assert not vs.q and not vq.q
            k.wait_vm(tok['cs'])
            k.wait_vm(vs.last)
            k.wait_vm(vq.last)
            k('s_barrier')
            run_ops(k, [flag_ops('s92')])
        byte = 1024 * steps[n][2]
        k('ds_read_b128 %s, %s offset:%d' % (V(WB + 4 * (n % NB), 4), [vL16, 'v148', 'v149'][byte >> 16], byte & 0xffff))

    PK = 128

    def publish(blocks, name):
        for b, src in blocks:
            for d in range(4):
                f.add('v_cvt_pk_bf16_f32 %s, %s, %s' % (V(PK + 4 * b + d), V(src + 2 * d), V(src + 2 * d + 1)))
            pre = ['s_add_u32 %s, %s, 4096' % (sKVO, sKVO)] if b == 4 else []
            f.add(pre + ['buffer_store_dwordx4 %s, %s, %s, %s offen offset:%d sc1' % (V(PK + 4 * b, 4), vVO if b > 2 else vL16, WS, sKVO, 1024 * (b & 3))])
        f.add0(lambda: tok.__setitem__(name, f.last))
        for b, src in blocks:
            f.add('ds_write_b128 %s, %s offset:%d' % ('v155' if b > 2 else 'v154', V(PK + 4 * b, 4), 1024 * b))

    for n in range(AH):
        rd(n)
    col_sums(f.add)
    f.add0(lambda: tok.__setitem__('cs', f.last))
    g = Fill(k)
    d_setup(g.add)
    row_offsets(g.add, 'v242', 'v243', 'v106')
    g.add('s_mov_b32 s66, s26')
    k.lg_batch = 2
    for n, (acc, ks, blk) in enumerate(steps):
        if n in (80, 120):
            stamp(k)
        a = V(acc, 16)
        k('%s %s, %s, %s, %s' % (M32, a, V(WB + 4 * (n % NB), 4), A(4 * ks, 4), '0' if n in (0, 1, 80, 120) else a))
        if n + AH < len(steps):
            rd(n + AH)
        if n == G.c_qfrom:
            for op in dma_ops('s69', 131072, 131072, 2, 4):
                vq.add(op)
        if n & 1 == 0:
            (va if va.q else vq).run(1)
        if n >= G.c_sfrom and (n - G.c_sfrom) % G.c_srate == 0:
            vs.run(1)
        if n == 80:
            assert not f.q
            k('s_barrier')
            for op in dma_ops('s69', 122880, 122880, 2, 1):
                vq.add(op)
        if n == 82:
            publish([(0, aK), (1, aK + 8), (2, aT)], 'k')
            f.add('ds_write_b64 v150, v[152:153] offset:5120')
            for d in range(4):
                f.add('v_mul_f32 %s, s90, %s' % (V(aT + 8 + d), V(aT + 8 + d)))
            f.add('v_cvt_pk_bf16_f32 v24, v24, v25')
            f.add('v_cvt_pk_bf16_f32 v25, v26, v27')
            f.add('v_cmp_gt_u32 s[28:29], 32, %s' % vLANE)
            for d in range(2):
                f.add('v_cndmask_b32 %s, 0, %s, s[28:29]' % (V(QF + 4 + d), V(24 + d)))
                f.add('v_cndmask_b32 %s, %s, 0, s[28:29]' % (V(QF + 12 + d), V(24 + d)))
        if n == 122:
            publish([(3, aV), (4, aV + 8)], 'vv')
            c_unit(k, f)
        if n == 80 + G.k_flag_at:
            k.wait_vm(tok['k'])
            run_ops(k, [flag_ops(sKF)])
        if n == 120 + G.k_probe_at:
            k('buffer_load_dword v244, %s, %s, %s offen sc1' % (vNP, WS, sNF))
        if n == 120 + G.v_flag_at:
            k.wait_vm(tok['vv'])
            run_ops(k, [flag_ops(sVF)])
            assert not f.q
            c_store(k)
        (f if f.q else g).run(4)
    assert not f.q
    g.flush()
    k.lg_batch = 1
    stamp(k)


def ring_ops(g0, g1):
    lds = ((RING0 + 4 * g0) % RING) * 1024
    assert lds + (g1 - g0) * 4096 <= RING * 1024
    nb = 4 if (g1 - g0) % 4 == 0 else 2
    return dma_ops('s23', 4096 * g0, lds, nb, (g1 - g0) // nb)


def wd_ops(n0, n1):
    ops = []
    for n in range(n0, n1):
        c, ct = divmod(n, 5)
        pre = []
        if ct == 0:
            pre = ['s_add_u32 s73, %s, %d' % (sI if G.rot else '0', c & 3), 's_and_b32 s73, s73, 3', 's_add_u32 s73, s73, %d' % (c & ~3),
                   's_mul_i32 s73, s73, 5120', 's_add_u32 s73, s73, s74']
        if ct == 4:
            pre = ['s_add_u32 s73, s73, 4096']
        ops.append(pre + ['buffer_load_dwordx4 %s, %s, %s, s73 offen offset:%d sc1' % (wd_reg(n), vL16, WS, 1024 * (ct & 3))])
    return ops


def w16_base(k, sdst, base, nks):
    k('s_lshl_b32 %s, %s, 2' % (sdst, sCB))
    k('s_add_u32 %s, %s, %s' % (sdst, sdst, sW))
    k('s_mul_i32 %s, %s, %d' % (sdst, sdst, nks * 5120))
    k('s_add_u32 %s, %s, %d' % (sdst, sdst, base))


def w16_ops(sreg, n0, n1, areg):
    ops = []
    for n in range(n0, n1):
        pre = ['s_add_u32 %s, %s, 4096' % (sreg, sreg)] if n & 3 == 0 and n > 0 else []
        ops.append(pre + ['buffer_load_dwordx4 %s, %s, %s, %s offen offset:%d sc1' % (areg(n), vL16, WS, sreg, 1024 * (n & 3))])
    return ops


def run_ops(k, ops):
    t = None
    for op in ops:
        for y in op:
            t = k(y)
    return t


def wd_reg(n):
    if n < 20:
        return A(160 + 4 * n, 4)
    if n < 41:
        return V(160 + 4 * (n - 20), 4)
    if n < 48:
        return V(132 + 4 * (n - 41), 4)
    return A(4 * (n - 48), 4)


def wo_reg(n):
    return A(4 * n, 4)


def kv_dma(k, blocks, va=vNA):
    k('s_mov_b32 s24, %s' % sNG)
    k('s_mov_b32 s25, %s' % sNL)
    t = None
    for sl in range(2):
        if sl:
            k('s_add_u32 s24, s24, %d' % (16 * 5120))
            k('s_add_u32 s25, s25, %d' % KVP)
        k('s_mov_b32 m0, s25')
        for b in blocks:
            t = k('buffer_load_dwordx4 %s, %s, s24 offen offset:%d sc1 lds' % (va, WS, 1024 * b))
    return t


def check_or_poll(k, vreg, vaddr, soff, name):
    k('v_cmp_ne_u32 vcc, %s, %s' % (sFLAG, vreg))
    k('s_cbranch_vccz L_pdone_%s' % name)
    save = list(k.vm)
    poll(k, vaddr, soff, name)
    k.vm = save


def phase_d(k):
    k.comment('---- phase D: attention')
    from gen_front import c_unit
    aQ = 48
    check_or_poll(k, 'v244', vNP, sNF, 'k')
    stamp(k)
    tokk = kv_dma(k, (0, 1, 2))
    k('s_add_u32 %s, %s, %d' % (sNF, sNF, FV - FKV))
    k('s_add_u32 %s, %s, 3072' % (sNG, sNG))
    k('s_add_u32 %s, %s, 3072' % (sNL, sNL))
    for d in range(8):
        k('v_pk_mul_f32 %s, %s, s[90:91]' % (V(aQ + 2 * d, 2), V(aQ + 2 * d, 2)))
        k('v_cvt_pk_bf16_f32 %s, %s, %s' % (V(QF + (d & 3) + 8 * (d >> 2)), V(aQ + 2 * d), V(aQ + 2 * d + 1)))
    tile_bases(k, O, 40960, 4096)
    k('s_add_u32 s92, s92, %d' % (FBG2 - FBG))
    k('v_mov_b32 v206, %s' % vNA)
    k('v_mov_b32 v207, %s' % vNP)
    k.wait_vm(tokk - G.v_probe_lead)
    k('buffer_load_dword v245, %s, %s, s89 offen sc1' % (vBG, WS))
    k('buffer_load_dword v244, %s, %s, %s offen sc1' % (vNP, WS, sNF))
    k.wait_vm(tokk)
    k.drain(vm=False)
    k('s_barrier')
    run_ops(k, [flag_ops('s92')])
    tk = {}

    def after_probe(tag):
        check_or_poll(k, 'v244', 'v207', sNF, 'v' + tag)
        tk['v'] = kv_dma(k, (0, 1), 'v206')
        check_or_poll(k, 'v245', vBG, 's89', 'bg' + tag)

    bg = []
    small = []
    for p in range(4):
        small.append((['s_add_u32 s75, s75, %d' % (3840 * 4)] if p else []) + ['buffer_load_dwordx4 %s, v240, %s, s75 offen sc1' % (A(208 + 4 * p, 4), WS)])
    for p in range(8):
        small.append((['s_add_u32 s76, s76, %d' % (48 * 512)] if p else []) +
                     ['buffer_load_dword %s, v248, %s, s76 offen sc1' % (A(224 + 2 * p), WS),
                      'buffer_load_dword %s, v248, %s, s76 offen offset:128 sc1' % (A(225 + 2 * p), WS)])
    xl = [['buffer_load_dwordx4 a[240:243], v242, %s, s66 offen nt' % XS], ['buffer_load_dwordx4 a[244:247], v242, %s, s66 offen offset:64 nt' % XS],
          ['buffer_load_dwordx2 a[248:249], v243, %s, s66 offen offset:128 nt' % XS]]
    bgall = small[:4] + ring_ops(0, (RING - RING0) // 4) + xl + small[4:]
    bg2 = w16_ops('s77', 0, 25, wo_reg) + wd_ops(0, G.wd_d)
    bg.extend(bgall)
    if G.wo_pf:
        k('s_mul_i32 s26, %s, 102400' % sCB)
        k('s_add_u32 s26, s26, %d' % WO)
        pf_wtile(k, 's26', 50)
    stamp(k)
    KB, VB, PB, OA, NM, OT = 144, 168, 184, 144, 200, 240
    order = [8, 0, 1, 2, 3, 4, 5, 6, 7]
    bg_on = [True]
    for X in range(2):
        Q1, Q2 = V(QF + 8 * X, 4), V(QF + 8 * X + 4, 4)
        for n, (kk, rd) in enumerate(((0, 0), (0, 1), (1, 0), (1, 1))):
            k('v_mad_u32_u24 %s, %s, %d, %s' % (V(VA + n), vST, 16 * kk + 8 * rd + 32 * X, vB0))

        def rdk(n):
            u = order[n]
            k('ds_read_b128 %s, %s offset:%d' % (V(KB + 8 * (n % 3), 4), vK, u * KVP + 1024 * X))
            k('ds_read_b128 %s, %s offset:%d' % (V(KB + 8 * (n % 3) + 4, 4), vK, u * KVP + 2048))

        f = Fill(k)

        def maxes(u, add):
            for p in range(8):
                m = V(204 + (p & 1))
                if u == 0 and p < 2:
                    add('v_max_f32 %s, %s, %s' % (m, V(2 * p), V(2 * p + 1)))
                else:
                    add('v_max3_f32 %s, %s, %s, %s' % (m, m, V(16 * u + 2 * p), V(16 * u + 2 * p + 1)))

        def post(u):
            if u == 0:
                for r in range(16):
                    f.add('v_cndmask_b32 %s, %s, %s, %s' % (V(r), V(r), V(128 + r), S(32 + 2 * r, 2)))
            maxes(u, f.add)

        pv = [(u, kk) for u in (1, 2, 3, 4, 5, 6, 7, 8, 0) for kk in range(2)]

        def rdv(n):
            u, kk = pv[n]
            for rd in range(2):
                k('ds_read_b64_tr_b16 %s, %s offset:%d' % (V(VB + 4 * (n % 4) + 2 * rd, 2), V(VA + 2 * kk + rd), u * KVP))

        def qk(edge, bgl):
            k.lg_batch = 2
            for n in range(9):
                u = order[n]
                sreg = V(16 * u, 16)
                first = '%s %s, %s, %s, ' % (M32, sreg, V(KB + 8 * (n % 3), 4), Q1)
                if edge and u < 8:
                    k('s_cmp_gt_u32 %s, %d' % (sNV, u))
                    k('v_mov_b32 v201, %s' % V(KB + 8 * (n % 3)))
                    k('s_cbranch_scc1 L_neg_%d_%d' % (X, u))
                    k(first + '0')
                    k('s_branch L_pos_%d_%d' % (X, u))
                    k.label('L_neg_%d_%d' % (X, u))
                    k.raw('    ' + first + V(PB, 16))
                    k.label('L_pos_%d_%d' % (X, u))
                else:
                    k(first + '0')
                f.run(6)
                k('%s %s, %s, %s, %s' % (M32, sreg, V(KB + 8 * (n % 3) + 4, 4), Q2, sreg))
                if n + 2 < 9:
                    rdk(n + 2)
                if X == 0 and n == G.v_check:
                    after_probe('e' if edge else 'n')
                if n % 2 == 1 and bgl and X:
                    run_ops(k, [bgl.pop(0)])
                if n >= 2:
                    post(order[n - 1])
                f.run(4)
            k.lg_batch = 1
            post(order[8])
            if X:
                rdv(0)
                rdv(1)
            f.flush()

        rdk(0)
        rdk(1)
        k('s_cmp_lg_u32 %s, 0' % sNV)
        k('s_cbranch_scc1 L_qkedge_%d' % X)
        st0 = (list(k.vm), list(k.lg), list(k.hist))
        main_out, k.out = k.out, G.cold
        k.label('L_qkedge_%d' % X)
        for r in range(16):
            k('v_mov_b32 %s, 0xf149f2ca' % V(PB + r))
        qk(True, list(bg))
        k('s_branch L_qkdone_%d' % X)
        k.out = main_out
        k.vm, k.lg, k.hist = st0
        qk(False, bg)
        k.label('L_qkdone_%d' % X)
        if G.fine:
            stamp(k)
        k('v_max_f32 v204, v204, v205')
        k('v_mov_b32 v205, v204')
        k('v_permlane32_swap_b32 v204, v205')
        k('v_max_f32 v204, v204, v205')
        k('v_cvt_pk_bf16_f32 v205, -v204, -v204')
        k('v_and_b32 v206, 0xffff0000, v205')
        k('v_add_f32 v204, v204, v206')
        k('v_cvt_pk_bf16_f32 v207, -v204, -v204')
        k('v_and_b32 v206, 0xffff0000, v207')
        k('v_add_f32 v204, v204, v206')
        k('v_alignbit_b32 %s, v207, v205, 16' % V(NM))
        k('v_cvt_pk_bf16_f32 %s, -v204, -v204' % V(NM + 1))
        oacc = V(OA, 16)
        pend = []
        vready = [X == 1]
        tiles = [1, 2, 3, 4, 5, 6, 7, 0]

        def sub(u):
            k('%s %s, a[252:255], %s, %s' % (M32, V(16 * u, 16), V(NM, 4), V(16 * u, 16)))

        def issue():
            if pend and vready[0]:
                n, preg = pend.pop(0)
                k('%s %s, %s, %s, %s' % (M32, oacc, V(VB + 4 * (n % 4), 4), preg, oacc if n else '0'))
                if n + 2 < 18:
                    rdv(n + 2)

        def bgrun(n):
            while bg_on[0] and bg and n > 0:
                run_ops(k, [bg.pop(0)])
                n -= 1

        sub(tiles[0])
        sub(tiles[1])
        for ti, u in enumerate(tiles):
            P = 16 * u
            if X == 0 and ti == G.bg2_probe:
                k('s_mov_b32 s89, %d' % FBG2)
                k('buffer_load_dword v251, %s, %s, s89 offen sc1' % (vBG, WS))
            if G.fine > 2 and ti in (1, 2, 3, 5):
                stamp(k)
            if X == 1 and ti == 0:
                check_or_poll(k, 'v251', vBG, 's89', 'bg2')
                bg.extend(bg2)
            if X == 1 and ti == 0:
                k.wait_vm(toka)
                run_ops(k, [flag_ops('s94')])
            if X == 1 and ti == G.a_probe:
                k('s_add_u32 s25, s95, %d' % FOA)
                k('buffer_load_dword v251, v250, %s, s25 offen sc1' % WS)
            for h in range(2):
                for r in range(8 * h, 8 * h + 8):
                    k('v_exp_f32 %s, %s' % (V(16 * u + r), V(16 * u + r)))
                    if r & 7 == 1 or (r & 7 == 5 and len(pend) > 1 and (r != 13 or ti + 2 >= 8)):
                        issue()
                    if r == 13 and ti + 2 < 8:
                        sub(tiles[ti + 2])
                if X == 0 and 2 * ti + h == G.v_lag:
                    vready[0] = True
                    k.wait_vm(tk['v'])
                    k('s_barrier')
                    rdv(0)
                    rdv(1)
                bgrun(G.bg_rate[h] if vready[0] else G.bg_slow)
                for p in range(4 * h, 4 * h + 4):
                    k('v_cvt_pk_bf16_f32 %s, %s, %s' % (V(P + p), V(16 * u + 2 * p), V(16 * u + 2 * p + 1)))
                if u:
                    pend.append((2 * ti + h, V(P + 4 * h, 4)))
                else:
                    for p in range(4 * h, 4 * h + 4):
                        k('v_and_b32 %s, %s, %s' % (V(136 + p), V(p), V(PM + p)))
                    pend.append((14 + h, V(136 + 4 * h, 4)))
        for p in range(8):
            k('v_xor_b32 %s, %s, %s' % (V(128 + p), V(p), V(136 + p)))
            if p == 0:
                issue()
        pend += [(16, V(128, 4)), (17, V(132, 4))]
        while pend:
            issue()
        if G.fine:
            stamp(k)
        k('v_rcp_f32 v204, %s' % V(OA + 12))
        for p in range(6):
            k('v_pk_mul_f32 %s, %s, v[204:205] op_sel_hi:[1,0]' % (V(OA + 2 * p, 2), V(OA + 2 * p, 2)))
        for p in range(4):
            k('v_cvt_pk_bf16_f32 %s, %s, %s' % (V(244 + p), V(OA + 2 * p), V(OA + 2 * p + 1)))
        toka = k('buffer_store_dwordx4 v[244:247], %s, %s, %s offen sc1' % (vL16, WS, sOM))
        if X == 0:
            k('s_add_u32 %s, %s, 16384' % (sOM, sOM))
        for p in range(2):
            k('v_cvt_pk_bf16_f32 %s, %s, %s' % (V(OT + 2 * X + p), V(OA + 8 + 2 * p), V(OA + 9 + 2 * p)))
        if G.fine and X == 0:
            stamp(k)
    k('s_mov_b32 exec_hi, 0')
    G.tok_o = k('buffer_store_dwordx4 %s, %s, %s, %s offen sc1' % (V(OT, 4), vL16, WS, sOT))
    k('s_mov_b64 exec, -1')
    assert len(bg) <= len(bg2)
    G.bg_left = bg
    stamp(k)


def colconst_issue(k, tmp):
    k('s_mul_i32 s24, %s, 320' % sCB)
    k('s_add_u32 s24, s24, %d' % (MODP + 2 * 2560))
    k('v_min_u32 %s, %d, %s' % (V(tmp + 16), 39 * 16, vL16))
    k('v_cmp_le_u32 vcc, 320, %s' % V(tmp + 16))
    k('v_add_u32 %s, %d, %s' % (V(tmp + 17), 3 * 2560 - 320, V(tmp + 16)))
    k('v_cndmask_b32 %s, %s, %s, vcc' % (V(tmp + 17), V(tmp + 16), V(tmp + 17)))
    for p in range(4):
        k('buffer_load_dwordx4 %s, %s, %s, s24 offen sc1' % (V(tmp + 4 * p, 4), V(tmp + 17), WS))
        if p < 3:
            k('s_add_u32 s24, s24, %d' % (3840 * 4))


def colconst_finish(k, tmp):
    granule_sum(k, tmp, V(tmp + 17), V(tmp + 18, 2))
    k('v_add_u32 %s, %d, %s' % (V(tmp + 16), SCR, V(tmp + 16)))
    k('ds_write_b128 %s, %s' % (V(tmp + 16), V(tmp, 4)))
    k.drain(vm=False)


def colconst_read(k, which, dst, t0, t1):
    k('v_and_b32 %s, 48, %s' % (t1, vLANE))
    k('v_lshlrev_b32 %s, 1, %s' % (t0, t1))
    k('v_add_u32 %s, %d, %s' % (t0, SCR + 320 * which, t0))
    k('v_add_u32 %s, %d, %s' % (t1, SCR + 320 * which, t1))
    for ct in range(4):
        k('ds_read_b128 %s, %s offset:%d' % (V(dst + 4 * ct, 4), t0, 128 * (ct >> 1) + 16 * (ct & 1)))
    k('ds_read_b128 %s, %s offset:256' % (V(dst + 16, 4), t1))


def row_offsets(k, va, vb, vt='v251'):
    k('v_and_b32 %s, 15, %s' % (va, vLANE))
    k('v_mul_u32_u24 %s, 1280, %s' % (va, va))
    k('v_lshrrev_b32 %s, 4, %s' % (vb, vLANE))
    k('v_lshl_add_u32 %s, %s, 3, %s' % (vb, vb, va))
    k('v_and_b32 %s, 48, %s' % (vt, vLANE))
    k('v_add_u32 %s, %s, %s' % (va, vt, va))
    k('s_lshl_b32 s26, %s, 1' % sTE)
    k('s_add_u32 s26, s26, %s' % sW)
    k('s_mul_i32 s26, s26, %d' % (16 * 1280))
    k('s_mul_i32 s24, %s, 160' % sCB)
    k('s_add_u32 s26, s26, s24')


def tile_bases(k, base, tbstride, wstride):
    k('s_mul_i32 s26, %s, %d' % (sTE, tbstride))
    k('s_mul_i32 s24, %s, %d' % (sW, wstride))
    k('s_add_u32 s26, s26, s24')
    k('s_add_u32 s26, s26, %d' % base)
    for s in range(4):
        k('s_add_u32 s24, %s, %d' % (sW, s + 1))
        k('s_bfe_u32 s27, s24, 0x10001')
        k('s_mul_i32 s27, s27, %d' % tbstride)
        k('s_and_b32 s24, s24, 1')
        k('s_lshl_b32 s24, s24, 8')
        k('s_add_u32 s24, s24, s27')
        k('s_add_u32 %s, s26, s24' % S(96 + s))


def xchg_addrs(k):
    for s in range(4):
        k('s_add_u32 s24, %s, %d' % (sW, s + 1))
        k('s_and_b32 s24, s24, 3')
        k('s_mul_i32 s24, s24, 15360')
        k('v_add_u32 %s, s24, %s' % (V(80 + s), vL16))


def sweep(k, slots, first, last, wreg, areg, hook):
    f = Fill(k)
    n = 0
    for s in range(4):
        m = 0
        for ki, ks in enumerate(slots):
            for ct in range(5):
                a = V(20 * s + 4 * ct, 4)
                k('%s %s, %s, %s, %s' % (M16, a, wreg(5 * ks + ct), areg(s, ki), '0' if first and ki == 0 else a))
                hook(n)
                n += 1
                m += 1
                if m > 3:
                    f.run(2)
        f.flush()
        if last and s < 3:
            for ct in range(5):
                f.add('ds_write_b128 %s, %s offset:%d' % (V(80 + s), V(20 * s + 4 * ct, 4), 5120 * s + 1024 * ct), 2)
        if last and s == 2:
            f.add(lambda: k.drain(vm=False))
            f.add('s_barrier')
            for q in range(3):
                for ct in range(5):
                    f.add('ds_read_b128 %s, v83 offset:%d' % (V(20 * q + 4 * ct, 4), 5120 * q + 1024 * ct))
    if last:
        for p in range(10):
            k('v_pk_add_f32 %s, %s, %s' % (V(2 * p, 2), V(2 * p, 2), V(20 + 2 * p, 2)))
        for p in range(10):
            k('v_pk_add_f32 %s, %s, %s' % (V(60 + 2 * p, 2), V(60 + 2 * p, 2), V(40 + 2 * p, 2)))
        for p in range(10):
            k('v_pk_add_f32 %s, %s, %s' % (V(60 + 2 * p, 2), V(60 + 2 * p, 2), V(2 * p, 2)))


def xreduce(k, r, t):
    k('v_mov_b32 %s, %s' % (t, r))
    k('v_permlane16_swap_b32 %s, %s' % (r, t))
    k('v_add_f32 %s, %s, %s' % (r, r, t))
    k('v_mov_b32 %s, %s' % (t, r))
    k('v_permlane32_swap_b32 %s, %s' % (r, t))
    k('v_add_f32 %s, %s, %s' % (r, r, t))


def phase_e(k):
    k.comment('---- phase E: O projection')
    GA, XF, XR = 84, 104, 124
    vXT, vSW = 'v134', 'v135'
    S2, YR, XR = 140, 124, 8

    def ereg(i):
        return A(100 + 4 * (i % 15), 4)

    k('s_add_u32 s25, s95, %d' % FOA)
    check_or_poll(k, 'v251', 'v250', 's25', 'oa')
    for s in range(4):
        for n in range(2):
            k('buffer_load_dwordx4 %s, %s, %s, %s offen offset:%d sc1' % (ereg(2 * s + n), vOFA, WS, S(96 + s), 2048 * n))
    for r in range(16):
        k('v_accvgpr_read_b32 %s, %s' % (V(r), A(208 + r)))
        k('v_accvgpr_read_b32 %s, %s' % (V(AT + r), A(224 + r)))
    k('v_cmp_le_u32 vcc, 40, %s' % vLANE)
    k('v_min_u32 v16, %d, %s' % (59 * 16, vL16))
    k('v_mov_b32 v18, 0')
    k('v_cndmask_b32 v18, v18, 1.0, vcc')
    k('v_and_b32 v180, 31, %s' % vLANE)
    k('v_lshrrev_b32 v181, 5, %s' % vLANE)
    colconst_finish(k, 0)
    colconst_read(k, 0, GA, 'v136', 'v137')
    colconst_read(k, 2, S2, 'v138', 'v139')
    aug_finish(k)
    k('s_add_u32 s24, s93, %d' % FO)
    k.wait_vm(G.tok_o)
    run_ops(k, [flag_ops('s24')])
    stamp(k)
    run_ops(k, G.bg_left)
    run_ops(k, wd_ops(G.wd_d, G.wd_e))
    f = Fill(k)
    add = f.add
    add('s_lshl_b32 s24, %s, 11' % sW)
    add('s_sub_u32 s24, 16384, s24')
    for s in range(4):
        add('s_add_u32 %s, %s, 16384' % (S(96 + s), S(96 + s)))
        add('s_add_u32 %s, %s, s24' % (S(88 + s), S(96 + s)))
    add('s_add_u32 s68, s95, %d' % FO)
    for d in range(10):
        add('v_accvgpr_read_b32 v136, %s' % A(240 + d))
        unpack(add, V(XF + 2 * d), V(XF + 2 * d + 1), 'v136')
    xchg_addrs(add)
    add('s_lshr_b32 s24, %s, 1' % sW)
    add('s_add_u32 s24, s24, %s' % sTE)
    add('s_mul_i32 s24, s24, 40960')
    add('s_mul_i32 s25, %s, 5120' % sCB)
    add('s_add_u32 s24, s24, s25')
    add('s_and_b32 s25, %s, 1' % sW)
    add('s_lshl_b32 s25, s25, 8')
    add('s_add_u32 s24, s24, s25')
    add('s_add_u32 s28, s24, %d' % X1)
    add('s_add_u32 s29, s28, 4096')
    add('v_and_b32 %s, 15, %s' % (vXT, vLANE))
    add('v_lshlrev_b32 %s, 3, %s' % (vSW, vXT))
    add('v_lshlrev_b32 %s, 4, %s' % (vXT, vXT))
    add('v_lshrrev_b32 v136, 5, %s' % vLANE)
    add('v_lshl_add_u32 %s, v136, 9, %s' % (vXT, vXT))
    add('v_lshl_add_u32 %s, v136, 2, %s' % (vSW, vSW))
    add('v_bfe_u32 v136, %s, 4, 1' % vLANE)
    add('v_lshl_add_u32 %s, v136, 3, %s' % (vXT, vXT))
    add('s_lshl_b32 s66, %s, 1' % sTE)
    add('s_add_u32 s66, s66, %s' % sW)
    add('s_lshl_b32 s66, s66, 3')
    add('s_add_u32 s66, s66, %s' % sCB)
    add('s_lshl_b32 s67, s66, 7')
    add('s_add_u32 s67, s67, %d' % STATS)
    add('s_lshl_b32 s66, s66, %d' % FS)
    add('s_add_u32 s66, s66, %d' % FX1)
    sweep(k, (0, 1), True, False, wo_reg, lambda s, ki: ereg(2 * s + ki), lambda n: f.run(2))
    f.flush()
    k('s_barrier')
    poll(k, 'v250', 's68', 'o')
    stamp(k)
    for s in range(4):
        for n in range(3):
            src = (S(96 + s), 2048 * n) if n < 2 else (S(88 + s), 0)
            k('buffer_load_dwordx4 %s, %s, %s, %s offen offset:%d sc1' % (ereg(8 + 3 * s + n), vOFA, WS, src[0], src[1]))
    wdl = wd_ops(G.wd_e, G.wd_e2)

    def hook(n):
        if n % 3 == 0 and wdl:
            run_ops(k, [wdl.pop(0)])
    sweep(k, (2, 3, 4), False, True, wo_reg, lambda s, ki: ereg(8 + 3 * s + ki), hook)
    assert not wdl
    stamp(k)
    for d in range(10):
        x = V(60 + 2 * d, 2)
        k('v_pk_fma_f32 %s, %s, %s, %s' % (x, x, V(GA + 2 * d, 2), V(XF + 2 * d, 2)))
        k('v_pk_mul_f32 %s, %s, %s' % (V(S2 + 2 * d, 2), x, V(S2 + 2 * d, 2)))
        k('v_cvt_pk_bf16_f32 %s, %s, %s' % (V(YR + d), V(S2 + 2 * d), V(S2 + 2 * d + 1)))
        if d == 3:
            k('buffer_store_dwordx4 %s, %s, %s, s28 offen sc1' % (V(YR, 4), vOFA, WS))
        if d == 7:
            k('buffer_store_dwordx4 %s, %s, %s, s28 offen offset:2048 sc1' % (V(YR + 4, 4), vOFA, WS))
    k('buffer_store_dwordx2 %s, %s, %s, s29 offen sc1' % (V(YR + 8, 2), vXT, WS))
    for d in range(10):
        x = V(60 + 2 * d, 2)
        if d == 0:
            k('v_pk_mul_f32 v[6:7], %s, %s' % (x, x))
        else:
            k('v_pk_add_f32 v[4:5], %s, %s' % (x, 'v[60:61]' if d == 1 else 'v[4:5]'))
            k('v_pk_fma_f32 v[6:7], %s, %s, v[6:7]' % (x, x))
    k('v_add_f32 v4, v4, v5')
    k('v_add_f32 v6, v6, v7')
    k('v_permlane32_swap_b32 v4, v6')
    k('v_add_f32 v4, v4, v6')
    k('v_mov_b32 v5, v4')
    k('v_permlane16_swap_b32 v4, v5')
    k('v_add_f32 v4, v4, v5')
    G.tok_x = k('buffer_store_dword v4, %s, %s, s67 offen sc1' % (vSW, WS))
    for d in range(10):
        k('v_cvt_pk_bf16_f32 %s, %s, %s' % (V(XR + d), V(60 + 2 * d), V(61 + 2 * d)))
        k('v_accvgpr_write_b32 %s, %s' % (A(240 + d), V(XR + d)))
    stamp(k)


def split2(k, hi, lo, x):
    k('v_cvt_pk_bf16_f32 %s, %s, %s' % (hi, x, x))
    k('v_and_b32 %s, 0xffff0000, %s' % (lo, hi))
    k('v_sub_f32 %s, %s, %s' % (x, x, lo))
    k('v_cvt_pk_bf16_f32 %s, %s, %s' % (lo, x, x))


AT = 160


def aug_issue(k):
    k('s_min_u32 s24, %s, 2' % sW)
    k('s_mul_i32 s25, %s, 3' % sJ)
    k('s_add_u32 s25, s25, s24')
    k('s_lshl_b32 s25, s25, 9')
    k('s_add_u32 s25, s25, %d' % CSB)
    k('v_and_b32 v180, 31, %s' % vLANE)
    k('v_lshrrev_b32 v181, 5, %s' % vLANE)
    k('v_lshlrev_b32 v182, 2, v180')
    k('v_lshl_add_u32 v182, v181, 8, v182')
    for p in range(8):
        k('buffer_load_dword %s, v182, %s, s25 offen sc1' % (V(AT + 2 * p), WS))
        k('buffer_load_dword %s, v182, %s, s25 offen offset:128 sc1' % (V(AT + 1 + 2 * p), WS))
        if p < 7:
            k('s_add_u32 s25, s25, %d' % (48 * 512))


def aug_finish(k):
    for st in (4, 2, 1):
        for p in range(st):
            k('v_pk_add_f32 %s, %s, %s' % (V(AT + 2 * p, 2), V(AT + 2 * p, 2), V(AT + 2 * (p + st), 2)))
    split2(k, 'v162', 'v163', 'v160')
    split2(k, 'v164', 'v165', 'v161')
    k('s_mov_b32 s26, 0xffff')
    k('v_bfi_b32 v168, s26, v162, v163')
    k('v_bfi_b32 v169, s26, v162, v164')
    k('v_bfi_b32 v170, s26, v165, v164')
    for d in range(5):
        k('v_mov_b32 %s, 0' % V(171 + d))
    k('s_min_u32 s24, %s, 2' % sW)
    k('s_lshl_b32 s24, s24, 11')
    k('s_add_u32 s24, s24, %d' % AUG)
    k('v_lshlrev_b32 v182, 4, v180')
    k('v_lshl_add_u32 v182, v181, 10, v182')
    k('v_add_u32 v182, s24, v182')
    k('ds_write_b128 v182, v[168:171]')
    k('ds_write_b128 v182, v[172:175] offset:512')


def greg(i):
    return A(48 + 4 * (i % 28), 4)


def g_act_ops(p):
    return [['buffer_load_dwordx4 %s, %s, %s, %s offen sc1' % (greg(16 * p + 4 * s + jl), V(124 + jl), WS, S(96 + s))]
            for s in range(4) for jl in range(4)]


def phase_f(k):
    k.comment('---- phase F: gate/up')
    WB, BA, CK, T0, ST = 64, 96, 100, 108, 108
    k('s_barrier')
    r2 = ring_ops((RING - RING0) // 4, RING // 4)
    run_ops(k, r2[:8])
    k.wait_vm(G.tok_x)
    run_ops(k, [flag_ops('s66')])
    stamp(k)
    run_ops(k, r2[8:])
    run_ops(k, wd_ops(G.wd_e2, G.wd_early))
    k('v_add_u32 v106, 65536, %s' % vL16)
    k('v_add_u32 v107, 131072, %s' % vL16)
    k('s_lshl_b32 s69, %s, 11' % sTB)
    k('s_add_u32 s69, s69, %d' % STATS)
    k('v_and_b32 v120, 15, %s' % vLANE)
    k('v_lshlrev_b32 v128, %d, v120' % FS)
    k('v_lshlrev_b32 v120, 3, v120')
    k('v_bfe_u32 v121, %s, 4, 1' % vLANE)
    k('v_lshl_add_u32 v120, v121, 10, v120')
    k('v_lshrrev_b32 v121, 5, %s' % vLANE)
    k('v_lshl_add_u32 v120, v121, 9, v120')
    k('s_mul_i32 s28, %s, 98304' % sTB)
    k('s_mul_i32 s24, %s, 6144' % sJ)
    k('s_add_u32 s28, s28, s24')
    k('s_add_u32 s28, s28, %d' % HH)
    k('s_add_u32 s29, s28, 4096')
    tile_bases(k, HH, 98304, 24576)
    for jl in range(4):
        k('s_add_u32 s24, %s, %d' % (sI if G.rot else '0', jl))
        k('s_and_b32 s24, s24, 3')
        k('s_mul_i32 s24, s24, 6144')
        k('v_add_u32 %s, s24, %s' % (V(124 + jl), vOFA))
    k('s_mul_i32 s68, %s, 40960' % sTB)
    k('s_add_u32 s68, s68, %d' % X1)
    k('s_or_b32 s24, s2, %s' % sW)
    k('s_cmp_eq_u32 s24, 0')
    k('s_cbranch_scc1 L_untag')
    st0 = (list(k.vm), list(k.lg), list(k.hist))
    main_out, k.out = k.out, G.cold
    k.label('L_untag')
    k('s_load_dwordx2 s[32:33], s[0:1], 80')
    k('s_mov_b32 s34, 256')
    k('s_mov_b32 s35, 0x20000')
    k('v_lshlrev_b32 v0, %d, %s' % (FS, vLANE))
    k('s_mov_b32 s24, %d' % FBG)
    for q in range(4):
        k('buffer_load_dword %s, v0, %s, s24 offen sc1' % (V(1 + q), WS))
        k('s_add_u32 s24, s24, %d' % (64 << FS))
    for q in range(4):
        k('v_xor_b32 %s, %s, %s' % (V(1 + q), sFLAG, V(1 + q)))
    k('v_or3_b32 v1, v1, v2, v3')
    k('v_or_b32 v1, v1, v4')
    k('v_cmp_ne_u32 vcc, 0, v1')
    k.drain(force=True)
    k('s_cbranch_vccnz L_untag_done')
    k('buffer_store_dword v1, off, s[32:35], 0 sc1')
    k('s_branch L_untag_done')
    k.out = main_out
    k.vm, k.lg, k.hist = st0
    k.label('L_untag_done')
    k('s_lshl_b32 s25, %s, %d' % (sTB, FS + 4))
    k('s_add_u32 s25, s25, %d' % FX1)
    poll(k, 'v128', 's25', 'x1')
    stamp(k)
    vq, va = Fill(k), Fill(k)
    for ks in range(40):
        pre = ['s_add_u32 s68, s68, 4096'] if ks & 3 == 0 and ks else []
        va.add(pre + ['buffer_load_dwordx4 %s, %s, %s, s68 offen offset:%d sc1' % (A(4 * ks, 4), vL16, WS, 1024 * (ks & 3))])
        if ks == 20:
            for c in range(4):
                va.add('buffer_load_dwordx2 %s, v120, %s, s69 offen offset:%d sc1' % (V(ST + 2 * c, 2), WS, 128 * c), 0)
    va.run(G.f_first)

    def stats(k):
        for h in range(2):
            k('v_add_f32 %s, %s, %s' % (V(116 + h), V(ST + h), V(ST + 2 + h)))
            k('v_add_f32 v118, %s, %s' % (V(ST + 4 + h), V(ST + 6 + h)))
            k('v_add_f32 %s, %s, v118' % (V(116 + h), V(116 + h)))
            k('v_mov_b32 v118, %s' % V(116 + h))
            k('v_permlane32_swap_b32 %s, v118' % V(116 + h))
            k('v_add_f32 %s, %s, v118' % (V(116 + h), V(116 + h)))
        k('v_mul_f32 v116, %s, v116' % hex(f2u(-1.0 / 640)))
        k('v_mul_f32 v117, %s, v117' % hex(f2u(1.0 / 640)))
        k('v_fma_f32 v117, -v116, v116, v117')
        k('v_max_f32 v117, 0, v117')
        k('v_add_f32 %s, %s, v117' % (V(CK + 4), hex(f2u(1e-5))))
        k('v_rsq_f32 v118, %s' % V(CK + 4))
        k('s_mov_b32 s26, 0xffff')
        k('v_mul_f32 v117, %s, v118' % V(CK + 4))
        cc = -2.0 * 0.7978845608028654 * LOG2E
        k('v_mul_f32 %s, %s, v118' % (V(CK), hex(f2u(cc))))
        k('v_mul_f32 v119, v118, v118')
        k('v_mul_f32 v119, %s, v119' % hex(f2u(0.044715)))
        k('v_mul_f32 %s, %s, v119' % (V(CK + 2), V(CK)))
        split2(k, V(BA), 'v109', 'v116')
        split2(k, 'v110', 'v111', 'v117')
        k('v_bfi_b32 %s, s26, v109, v110' % V(BA + 1))
        k('v_bfi_b32 %s, s26, v110, v111' % V(BA + 2))
        k('v_mov_b32 %s, 0' % V(BA + 3))

    steps = []
    for p in range(3):
        for ks in range(41):
            for t in range(2):
                blk = 80 * p + 2 * ks + t
                byte = ((RING0 + blk) % RING) * 1024 if ks < 40 else AUG + 1024 * (2 * p + t)
                steps.append((32 * (p & 1) + 16 * t, byte, A(4 * ks, 4) if ks < 40 else V(BA, 4), ks == 0, blk if ks < 40 else None))
    AH, NB = 6, 8
    refill = {64: (38, 54), 92: (54, 60)}
    toks = []
    vis = [RING - RING0]

    def rd(n):
        blk = steps[n][4]
        if blk is not None and blk >= vis[0]:
            while not toks:
                vq.run(1)
            t, g1 = toks.pop(0)
            k.wait_vm(t)
            k('s_barrier')
            vis[0] = 4 * g1
        byte = steps[n][1]
        k('ds_read_b128 %s, %s offset:%d' % (V(WB + 4 * (n % NB), 4), [vL16, 'v106', 'v107'][byte >> 16], byte & 0xffff))

    f = Fill(k)
    tokh = {}

    def gelu(p, add, packed):
        g, u = 32 * (p & 1), 32 * (p & 1) + 16
        for e in range(8):
            a, b, t = V(g + 2 * e, 2), V(u + 2 * e, 2), V(T0 + 2 * (e & 3), 2)
            aa, bb, tt = [V(g + 2 * e + h) for h in range(2)], [V(u + 2 * e + h) for h in range(2)], [V(T0 + 2 * (e & 3) + h) for h in range(2)]
            if packed:
                add('v_pk_mul_f32 %s, %s, %s' % (t, a, a))
                add('v_pk_fma_f32 %s, %s, %s, %s op_sel_hi:[1,0,0]' % (t, t, V(CK + 2, 2), V(CK, 2)))
                add('v_pk_mul_f32 %s, %s, %s' % (t, t, a))
                add('v_exp_f32 %s, %s' % (tt[0], tt[0]))
                add('v_exp_f32 %s, %s' % (tt[1], tt[1]))
                add('v_pk_mul_f32 %s, %s, %s' % (b, a, b))
                add('v_pk_fma_f32 %s, %s, %s, %s op_sel_hi:[1,0,0]' % (t, t, V(CK + 4, 2), V(CK + 4, 2)))
                add('v_rcp_f32 %s, %s' % (tt[0], tt[0]))
                add('v_rcp_f32 %s, %s' % (tt[1], tt[1]))
                vq.run(1)
                add('v_pk_mul_f32 %s, %s, %s' % (b, b, t))
            else:
                for h in range(2):
                    add('v_mul_f32 %s, %s, %s' % (tt[h], aa[h], aa[h]))
                    add('v_fma_f32 %s, %s, %s, %s' % (tt[h], tt[h], V(CK + 2), V(CK)))
                    add('v_mul_f32 %s, %s, %s' % (tt[h], tt[h], aa[h]))
                    add('v_exp_f32 %s, %s' % (tt[h], tt[h]), 2)
                    add('v_mul_f32 %s, %s, %s' % (bb[h], aa[h], bb[h]))
                    add('v_fma_f32 %s, %s, %s, %s' % (tt[h], tt[h], V(CK + 4), V(CK + 4)))
                    add('v_rcp_f32 %s, %s' % (tt[h], tt[h]), 2)
                for h in range(2):
                    add('v_mul_f32 %s, %s, %s' % (bb[h], bb[h], tt[h]))
            add('v_cvt_pk_bf16_f32 %s, %s, %s' % (V(116 + e), bb[0], bb[1]))
            if e & 3 == 3:
                blk = 2 * p + (e >> 2)
                tokh[p] = add('buffer_store_dwordx4 %s, %s, %s, %s offen offset:%d sc1' %
                              (V(116 + (e & 4), 4), vL16, WS, 's28' if blk < 4 else 's29', 1024 * (blk & 3)))
        if not packed:
            f.add0(lambda: tokh.__setitem__(p, f.last))

    k.lg_batch = 2
    for n in range(AH):
        rd(n)
    wdl = wd_ops(G.wd_early, G.wd_f)
    nwd = G.wd_early
    for n, (acc, byte, B, first, blk) in enumerate(steps):
        if n in refill:
            k('s_barrier')
            if n == 64:
                vis[0] = RING
            g0, g1 = refill[n]
            for op in ring_ops(g0, g1):
                vq.add(op)
            vq.add0(lambda g1=g1: toks.append((vq.last, g1)))
        if n == 56:
            stats(f.add)
        if n == 80:
            assert not f.q
        if n in (82, 164):
            stamp(k)
        a = V(acc, 16)
        k('%s %s, %s, %s, %s' % (M32, a, V(WB + 4 * (n % NB), 4), B, '0' if first else a))
        n0 = k.ninst
        if n + AH < len(steps):
            rd(n + AH)
        if (n & 1 if va.q or n >= 164 + G.h_check else n % G.f_vrate == 1):
            if va.q:
                va.run(1)
            elif vq.q:
                vq.run(1)
            elif wdl and (nwd < 48 or nwd - 48 <= (n - 164) // 2):
                run_ops(k, [wdl.pop(0)])
                nwd += 1
        if n in (84, 166):
            gelu(n // 82 - 1, f.add, False)
        if n in (82 + G.h_flag, 164 + G.h_flag):
            p = n // 82 - 1
            k('s_add_u32 s24, s93, %d' % (FH, FH1)[p])
            k.wait_vm(tokh[p])
            run_ops(k, [flag_ops('s24')])
        if n == 164 + G.h_probe:
            k('s_add_u32 s25, s95, %d' % FH)
            k('buffer_load_dword v251, v250, %s, s25 offen sc1' % WS)
        if n == 164 + G.h_check:
            assert G.h_check >= 56 and not wdl
            check_or_poll(k, 'v251', 'v250', 's25', 'h0')
            for op in g_act_ops(0):
                vq.add(op)
        f.fit(G.f_rate - (k.ninst - n0) - (n & 1))
    assert not f.q
    k.lg_batch = 1
    stamp(k)
    gelu(2, k, True)
    vq.flush()
    G.tok_h = tokh[2]
    stamp(k)


def phase_g(k):
    k.comment('---- phase G: down projection')
    GB, XF = 84, 104
    vq, f = Fill(k), Fill(k)
    k('s_barrier')
    wdl = wd_ops(G.wd_f, 60)
    for p in range(3):
        def hook(n, p=p):
            if p == 0 and n == G.g_flag:
                k('s_add_u32 s24, s93, %d' % FH2)
                k.wait_vm(G.tok_h)
                run_ops(k, [flag_ops('s24')])
            if p < 2 and n == G.g_probe[p]:
                k('s_add_u32 s25, s95, %d' % (FH1, FH2)[p])
                k('buffer_load_dword v251, v250, %s, s25 offen sc1' % WS)
                for s in range(4):
                    k('s_add_u32 %s, %s, 2048' % (S(96 + s), S(96 + s)))
            if p < 2 and n == G.g_check[p]:
                check_or_poll(k, 'v251', 'v250', 's25', 'hh%d' % (p + 1))
                for op in g_act_ops(p + 1):
                    vq.add(op)
                vq.run(10)
            elif n % 5 == 0 and vq.q:
                vq.run(1)
            elif n % 3 == 1 and wdl and not vq.q and n < G.g_probe[min(p, 1)] - G.g_quiet:
                run_ops(k, [wdl.pop(0)])
            else:
                f.run(1)
        if p == 2:
            run_ops(k, wdl)
        if p == 1:
            colconst_read(f.add, 1, GB, 'v128', 'v129')
            xchg_addrs(f.add)
            row_offsets(f.add, 'v128', 'v129', 'v130')
            f.add('s_mov_b32 s28, s26')
            for d in range(10):
                f.add('v_accvgpr_read_b32 v131, %s' % A(240 + d))
                unpack(f.add, V(XF + 2 * d), V(XF + 1 + 2 * d), 'v131')
        sweep(k, range(4 * p, 4 * p + 4), p == 0, p == 2, wd_reg, lambda s, ki, p=p: greg(16 * p + 4 * s + ki), hook)
        f.flush()
        stamp(k)
    for d in range(10):
        k('v_pk_fma_f32 %s, %s, %s, %s' % (V(60 + 2 * d, 2), V(60 + 2 * d, 2), V(GB + 2 * d, 2), V(XF + 2 * d, 2)))
        k('v_cvt_pk_bf16_f32 %s, %s, %s' % (V(40 + d), V(60 + 2 * d), V(61 + 2 * d)))
        if d == 3:
            k('buffer_store_dwordx4 v[40:43], v128, %s, s28 offen %s' % (OUTS, G.out_mod))
        if d == 7:
            k('buffer_store_dwordx4 v[44:47], v128, %s, s28 offen offset:64 %s' % (OUTS, G.out_mod))
    k('buffer_store_dwordx2 v[48:49], v129, %s, s28 offen offset:128 %s' % (OUTS, G.out_mod))


def gen_main(prof=False, stop=99):
    G.prof, G.stop, G.nstamp, G.cold, G.cold2 = prof, stop, 0, [], []
    k = K()
    from gen_front import front
    header(k, KNAME)
    if prof:
        k('s_memrealtime s[100:101]')
        stamp(k)
    front(k)
    stamp(k)
    for n, ph in enumerate((phase_c, phase_d, phase_e, phase_f, phase_g)):
        if n < stop:
            ph(k)
    if prof:
        k.drain(force=True)
        stamp(k)
        k('s_lshl_b32 s24, s2, 2')
        k('s_add_u32 s24, s24, %s' % sW)
        k('s_lshl_b32 s24, s24, 8')
        k('s_add_u32 s24, s24, %d' % PROF)
        k('s_memrealtime s[30:31]')
        k('v_writelane_b32 v249, s100, 62')
        k('v_writelane_b32 v249, s30, 63')
        k('v_lshlrev_b32 v0, 2, %s' % vLANE)
        k('buffer_store_dword v249, v0, %s, s24 offen' % WS)
    k('s_endpgm')
    k.out += G.cold
    k.label('L_main_end')
    k('s_endpgm')
    k.out += G.cold2
    assert G.nstamp <= 60, G.nstamp
    import sys
    sys.stderr.write('stamps %d\n' % G.nstamp)
    return k.text(), descriptor(KNAME, 512, 102, 256), k
```
